```python
import torch

def _softmax(x, axis=-1):
    return torch.softmax(x, dim=axis)
def _gelu(x):
    return torch.nn.functional.gelu(x, approximate="tanh")
def _silu(x):
    return torch.nn.functional.silu(x)
def _sigmoid(x):
    return torch.sigmoid(x)
def _layernorm(x, axis=-1, eps=1e-5):
    m = x.mean(dim=axis, keepdim=True)
    v = x.var(dim=axis, keepdim=True, unbiased=False)
    return (x - m) / torch.sqrt(v + eps)
def _scatter_add(tgt, idx, src, axis=0):
    return tgt.clone().index_add_(axis, idx, src)
def _segment_sum(src, seg, n):
    out = torch.zeros((n,) + src.shape[1:], dtype=src.dtype)
    return out.index_add_(0, seg, src)
def _pad(x, pw):
    flat = tuple(v for pair in reversed(pw) for v in pair)
    return torch.nn.functional.pad(x, flat)

kernel_name = 'parallel_sum__sliding_block__dense_activation_relu__prompt'

def setup_inputs():

    _w = (lambda a: (lambda t: t.to(torch.bfloat16) if t.is_floating_point() else t)(torch.as_tensor(a)))
    def _A_setup():
        B, S, D = 1, 2048, 576
        return {
            "x": _w((lambda *s: torch.randn(*s, dtype=torch.bfloat16) * 0.05)(B, S, D)),
            "wqkv": _w((lambda *s: torch.randn(*s, dtype=torch.bfloat16) * 0.1)(D, 3 * D)),
            "wo": _w((lambda *s: torch.randn(*s, dtype=torch.bfloat16) * 0.05)(D, D)),
        }
    _A_in = _A_setup()

    def _B_setup():
        B, S, D, Dff = 1, 2048, 576, 4608
        return {
            "x": _w((lambda *s: torch.randn(*s, dtype=torch.bfloat16) * 0.05)(B, S, D)),
            "w1": _w((lambda *s: torch.randn(*s, dtype=torch.bfloat16) * 0.05)(D, Dff)),
            "w2": _w((lambda *s: torch.randn(*s, dtype=torch.bfloat16) * 0.05)(Dff, D)),
        }
    _B_in = _B_setup()

    return {
        "A_x": _A_in["x"],
        "A_wqkv": _A_in["wqkv"],
        "A_wo": _A_in["wo"],
        "B_x": _B_in["x"],
        "B_w1": _B_in["w1"],
        "B_w2": _B_in["w2"],
    }

def reference(A_x, A_wqkv, A_wo, B_x, B_w1, B_w2):
    def _A_ref(x, wqkv, wo):
        B, S, D = x.shape
        H = 32; Dh = D // H; W = 256
        qkv = (lambda x, *d: x.permute(*d))((x @ wqkv).reshape(B, S, 3, H, Dh), 2, 0, 3, 1, 4)
        q, k, v = qkv[0], qkv[1], qkv[2]
        scores = torch.einsum("bhqd,bhkd->bhqk", q, k) * (Dh ** -0.5)
        idx = torch.arange(S)
        mask = (idx[:, None] - idx[None, :] >= 0) & (idx[:, None] - idx[None, :] < W)
        scores = torch.where(mask[None, None], scores, -1e9)
        p = _softmax(scores, axis=-1)
        o = torch.einsum("bhqk,bhkd->bhqd", p, v)
        return (lambda x, *d: x.permute(*d))(o, 0, 2, 1, 3).reshape(B, S, D) @ wo

    def _B_ref(x, w1, w2):
        h = torch.einsum("bsd,df->bsf", x, w1)
        zero = torch.zeros_like(h)
        h = torch.maximum(h, zero)
        return torch.einsum("bsf,fd->bsd", h, w2)

    x = A_x
    xn = _layernorm(x, axis=-1)
    return x + _A_ref(xn, A_wqkv, A_wo) + _B_ref(xn, B_w1, B_w2)
```

```python
import re

def regs_of(op):
    op = op.strip()
    if op.startswith('-'): op = op[1:]
    if op.startswith('abs(') and op.endswith(')'): op = op[4:-1]
    if op.startswith('|') and op.endswith('|'): op = op[1:-1]
    m = re.fullmatch(r'([vas])\[(\d+):(\d+)\]', op)
    if m:
        return [f"{m.group(1)}{k}" for k in range(int(m.group(2)), int(m.group(3)) + 1)]
    m = re.fullmatch(r'([vas])(\d+)', op)
    if m: return [op]
    if op in ('vcc', 'exec', 'm0', 'scc'): return [op]
    if op in ('vcc_lo', 'vcc_hi'): return ['vcc']
    if op in ('exec_lo', 'exec_hi'): return ['exec']
    return []

TRANS = ('v_exp_f32', 'v_log_f32', 'v_rcp_f32', 'v_rsq_f32', 'v_sqrt_f32')

class I:
    __slots__ = ('text', 'mn', 'kind', 'R', 'W', 'cost', 'target', 'A', 'B', 'C', 'D', 'note', 'data')
    def __init__(self, text, kind=None):
        self.text = text; self.target = None; self.note = None
        self.A = self.B = self.C = self.D = (); self.data = ()
        t = text.split(';')[0].strip()
        parts = t.split(None, 1)
        mn = parts[0]; self.mn = mn
        rest = parts[1] if len(parts) > 1 else ''
        ops = [o.strip() for o in rest.split(',')] if rest else []
        mods = ''
        if ops:
            lp = ops[-1].split(None, 1)
            ops[-1] = lp[0]
            mods = lp[1] if len(lp) > 1 else ''
        R, W = set(), set()
        base = re.sub(r'_(e32|e64|sdwa|dpp)$', '', mn)
        self.cost = 1
        if kind is not None:
            self.kind = kind
        elif mn.endswith(':'):
            self.kind = 'label'; self.cost = 0
        elif mn.startswith('v_mfma'):
            self.kind = 'mfma32' if '32x32' in mn else 'mfma16'
            self.D = regs_of(ops[0]); self.A = regs_of(ops[1]); self.B = regs_of(ops[2]); self.C = regs_of(ops[3])
            W |= set(self.D); R |= set(self.A) | set(self.B) | set(self.C)
            self.cost = 4 if self.kind == 'mfma16' else 8
        elif mn.startswith('buffer_load'):
            if ' lds' in (' ' + mods):
                self.kind = 'dma'
                for o in ops: R |= set(regs_of(o))
                R.add('m0')
            else:
                self.kind = 'vld'
                W |= set(regs_of(ops[0]))
                for o in ops[1:]: R |= set(regs_of(o))
        elif mn.startswith('buffer_store'):
            self.kind = 'vst'
            for o in ops: R |= set(regs_of(o))
            self.data = regs_of(ops[0])
        elif mn.startswith('ds_read'):
            self.kind = 'dsr'; W |= set(regs_of(ops[0])); R |= set(regs_of(ops[1]))
        elif mn.startswith('ds_write'):
            self.kind = 'dsw'
            for o in ops: R |= set(regs_of(o))
        elif mn.startswith('s_load') or mn in ('s_memtime', 's_memrealtime'):
            self.kind = 'smem'; W |= set(regs_of(ops[0]))
            for o in ops[1:]: R |= set(regs_of(o))
        elif mn == 's_waitcnt': self.kind = 'wait'
        elif mn == 's_barrier': self.kind = 'barrier'
        elif mn in ('s_nop', 's_sleep', 's_setprio', 's_endpgm'): self.kind = 'nop'
        elif mn.startswith('s_cbranch') or mn == 's_branch':
            self.kind = 'branch'
            if 'scc' in mn: R.add('scc')
            if 'vcc' in mn: R.add('vcc')
            if 'exec' in mn: R.add('exec')
        elif mn.startswith('s_cmp') or mn.startswith('s_bitcmp'):
            self.kind = 'salu'; W.add('scc')
            for o in ops: R |= set(regs_of(o))
        elif mn.startswith('s_'):
            self.kind = 'salu'
            W |= set(regs_of(ops[0]))
            for o in ops[1:]: R |= set(regs_of(o))
            if base in ('s_cselect_b32', 's_cselect_b64', 's_addc_u32'): R.add('scc')
            if base not in ('s_mov_b32', 's_mov_b64', 's_mul_i32', 's_cselect_b32', 's_cselect_b64', 's_getpc_b64', 's_movk_i32'): W.add('scc')
        elif mn.startswith('v_'):
            self.kind = 'valu'
            if base in TRANS: self.kind = 'trans'; self.cost = 2
            if base.startswith('v_dot2'): self.kind = 'dl'
            if base.startswith('v_permlane'):
                self.kind = 'perm'
                for o in ops: R |= set(regs_of(o)); W |= set(regs_of(o))
            else:
                W |= set(regs_of(ops[0]))
                for o in ops[1:]: R |= set(regs_of(o))
                if base in ('v_fmac_f32', 'v_dot2c_f32_bf16'): R |= set(regs_of(ops[0]))
                if base == 'v_cndmask_b32' and len(ops) == 3: R.add('vcc')
        else:
            raise ValueError("unknown instr " + text)
        self.R, self.W = R, W
    def __repr__(self): return self.text

def WAITVM(*h):
    x = I('s_waitcnt', kind='pvm'); x.target = [q for q in h if q is not None]; x.R = set(); x.W = set(); return x
def WAITLG(*h):
    x = I('s_waitcnt', kind='plg'); x.target = [q for q in h if q is not None]; x.R = set(); x.W = set(); return x
def RAW(text, cost=0):
    x = I('s_nop', kind='raw'); x.text = text; x.R = set(); x.W = set(); x.cost = cost; return x

VMK = ('vld', 'vst', 'dma')
LGK = ('dsr', 'dsw')

def insert_waits(prog):
    out = []
    vm, lg = [], []
    smem = []
    def need(lst, ops):
        idx = -1
        for o in ops:
            for k in range(len(lst) - 1, -1, -1):
                if lst[k] is o:
                    idx = max(idx, k); break
        return idx
    for ins in prog:
        iv = il = -1; sm = False
        if ins.kind == 'pvm': iv = need(vm, ins.target)
        elif ins.kind == 'plg': il = need(lg, ins.target)
        elif ins.kind == 'wait':
            m = re.search(r'vmcnt\((\d+)\)', ins.text)
            if m:
                n = int(m.group(1)); vm = vm[len(vm) - n:] if n and n < len(vm) else ([] if n == 0 else vm)
            m = re.search(r'lgkmcnt\((\d+)\)', ins.text)
            if m:
                n = int(m.group(1))
                assert n == 0
                lg = []; smem = []
            out.append(ins); continue
        else:
            touch = ins.R | ins.W
            for k in range(len(vm) - 1, -1, -1):
                if vm[k].W & touch: iv = k; break
            for k in range(len(lg) - 1, -1, -1):
                if lg[k].W & touch: il = k; break
            for o in smem:
                if o.W & touch: sm = True
        txt = []
        if iv >= 0:
            n = len(vm) - 1 - iv
            n2 = min(n, 63)
            txt.append(f"vmcnt({n2})"); vm = vm[len(vm) - n2:] if n2 else []
        if sm or (il >= 0 and smem):
            txt.append("lgkmcnt(0)"); lg = []; smem = []
        elif il >= 0:
            n = len(lg) - 1 - il
            n2 = min(n, 15)
            txt.append(f"lgkmcnt({n2})"); lg = lg[len(lg) - n2:] if n2 else []
        if txt:
            w = I('s_waitcnt ' + ' '.join(txt), kind='waitx'); w.R = set(); w.W = set(); out.append(w)
        if ins.kind in ('pvm', 'plg'): continue
        out.append(ins)
        if ins.kind in VMK:
            vm.append(ins)
            assert len(vm) <= 63 + 40, "too many vm outstanding"
        elif ins.kind in LGK: lg.append(ins)
        elif ins.kind == 'smem': smem.append(ins)
    return out

VALUK = ('valu', 'trans', 'dl', 'perm')
def states(ins):
    if ins.kind == 'label': return 0
    if ins.mn == 's_nop' and ins.kind == 'nop': return int(ins.text.split()[1]) + 1
    if ins.kind == 'raw': return 0
    return 1

def required(p, c):
    n = 0
    pv = p.kind in VALUK
    cm = c.kind in ('mfma32', 'mfma16')
    cv = c.kind in VALUK
    if pv:
        wv = {r for r in p.W if r[0] in 'va' and r not in ('vcc',)}
        ws = {r for r in p.W if r[0] == 's' or r == 'vcc'}
        if cm and (wv & c.R): n = max(n, 2)
        if c.kind == 'perm' and (wv & c.R): n = max(n, 2)
        if c.mn.startswith('v_readfirstlane') or c.mn.startswith('v_readlane'):
            if wv & c.R: n = max(n, 1)
        if p.kind == 'trans' and cv and c.kind != 'trans' and (wv & c.R): n = max(n, 1)
        if p.kind == 'trans' and c.kind == 'trans' and (wv & c.R): n = max(n, 1)
        if cv and (ws & c.R): n = max(n, 2)
        if c.kind in VMK and (ws & c.R): n = max(n, 5)
        if c.kind == 'salu' and (ws & c.R): n = max(n, 1)
        if p.kind == 'dl':
            if wv & (c.R | c.W):
                if not (c.mn == p.mn and (wv & c.W) and not (wv & (c.R - c.W))): n = max(n, 3)
    if p.kind in ('mfma32', 'mfma16'):
        big = p.kind == 'mfma32'
        D = set(p.D)
        if cm:
            if D & (set(c.A) | set(c.B)): n = max(n, 12 if big else 8)
            if D & set(c.C):
                if not (list(c.C) == list(p.D) and c.kind == p.kind): n = max(n, 10 if big else 6)
            elif D & set(c.D):
                if c.kind != p.kind: n = max(n, 12)
        else:
            if D & (c.R | c.W): n = max(n, 12 if big else 8)
            if cv and (set(p.C) & c.W): n = max(n, 7 if big else 3)
    if p.kind == 'salu' and 'm0' in p.W and c.kind == 'dma': n = max(n, 1)
    if p.kind == 'vst' and len(p.data) >= 3 and (set(p.data) & c.W):
        n = max(n, 2 if cv else 1)
    return n

def insert_nops(prog):
    out = []
    nn = 0
    for ins in prog:
        if ins.kind in ('label', 'raw'):
            out.append(ins); continue
        dist = 0; add = 0
        for k in range(len(out) - 1, max(-1, len(out) - 40), -1):
            p = out[k]
            if dist >= 12: break
            r = required(p, ins)
            if r > dist: add = max(add, r - dist)
            dist += states(p)
        if add:
            out.append(I(f"s_nop {add - 1}")); nn += add
        out.append(ins)
    return out, nn

def render(prog):
    lines = []
    for ins in prog:
        if ins.kind == 'label': lines.append(ins.text)
        elif ins.kind == 'raw': lines.append(ins.text)
        else: lines.append("  " + ins.text)
    return "\n".join(lines) + "\n"
```

```python
import sys, math, struct
from collections import deque
from asmlib import *

KNAME = "parallel_sum__sliding_block__dense_activation_relu__prompt_kernel"
OPT = dict(timing=False, dump=None, PD=6, budget=4, pace=3)
for a in sys.argv[2:]:
    k, v = a.split('=')
    OPT[k] = (v if k == 'dump' else int(v))

def f32(x): return "0x%08x" % struct.unpack('<I', struct.pack('<f', x))[0]

FBASE, EBASE, KVBASE, PBASE = 0, 0x20000, 0x40000, 0x800000
KVB = 4864
WS_USED = 0x2C00000
DBGW = 0x3000000
WS_REC = 0x4000000 if (OPT['timing'] or OPT['dump']) else WS_USED
OOB = 0x80000000
THI = 0x5bd1e995
LDS_TOTAL = 163840
XS = 81920
GA_KS, GA_CH = 8576, 34304
GB_KS, GB_CH = 5312, 21248
IMG = 4288
VB = 133120
P2A, P2B = 20480, 21504
SX, SQ, S1, S2, SO, SOUT, SWS, SDB, SCODE = 4, 8, 12, 16, 20, 24, 28, 32, 36
def srd(b): return f"s[{b}:{b+3}]"
sI, sJ, sW, sROT = 58, 59, 60, 61
sRT = 62
sKV = 71
sXB, sQB, sHA, sHB, sSG = 80, 81, 82, 83, 84
sW2A, sW2B, sWO5, sWO6 = 85, 86, 87, 88
sKVW, sFW, sPB = 89, 90, 91
sT, sTH = 92, 93
sM0X = 94
sLO = 96
sA, sB, sC, sD = 40, 41, 42, 43
sDM = 44
sM0A, sM0B, sM0C, sM0D = 46, 47, 48, 49
sM0E = 50
sCK = 52
sRS = 54
sTS = 98
vL, vT0, vT1, vT2, vT3_ = 1, 2, 3, 4, 5
vA, vT3, vS, vP0, vP1 = 6, 7, 8, 9, 10
vDQ = 12
vDH = 16
vDS = 20
vL16, vKX, vVC = 21, 22, 23
vRS, vNB = 24, 25
vFL = 26
vH1 = 28
vQ = 60
vR = 76
vE = 96
XN = 112
vXD = 28
vXR = 32
vST = 36
vH2 = 112
vSB = 152
vM0, vM8 = 216, 232
aT = 0
aG = 128
aF = 208
aVS = 72
aSEL = 252
aK = 0
aO = 72
aRD = 104

prog = []
def E(t):
    x = t if isinstance(t, I) else I(t)
    prog.append(x); return x
def vr(b, n=4): return f"v[{b}:{b+n-1}]"
def ar(b, n=4): return f"a[{b}:{b+n-1}]"

slow_paths = []
nstamp = [0]
def stamp_ins():
    k = nstamp[0]; nstamp[0] += 1
    return RAW(f"  s_memtime s[{sTS}:{sTS+1}]\n  s_waitcnt lgkmcnt(0)\n  v_writelane_b32 v11, s{sTS}, {k}\n  s_nop 4")
def STAMP():
    if OPT['timing']:
        E("s_waitcnt lgkmcnt(0)"); E(stamp_ins())

E(f"s_cmp_ge_u32 s2, 256")
E(f"s_cbranch_scc1 L_end")
E(f"s_load_dwordx16 s[40:55], s[0:1], 0")
E(f"s_load_dwordx2 s[56:57], s[0:1], 64")
if OPT['timing']:
    E("v_mov_b32 v11, 0"); STAMP()
E(RAW(f"  s_getpc_b64 s[{SCODE}:{SCODE+1}]\nL_pc:\n  s_mov_b32 s{SCODE+2}, L_code_end-L_pc\n  s_mov_b32 s{SCODE+3}, 0x00020000"))
E(f"v_lshlrev_b32 v{vT0}, 7, v0")
E(f"buffer_load_dword v{vE}, v{vT0}, {srd(SCODE)}, 0 offen")
E(f"v_add_u32 v{vT0}, 0x8000, v{vT0}")
E(f"buffer_load_dword v{vE+1}, v{vT0}, {srd(SCODE)}, 0 offen")
E(f"v_lshrrev_b32 v{vT1}, 6, v0")
E(f"v_and_b32 v{vL}, 63, v0")
E(f"v_readfirstlane_b32 s{sW}, v{vT1}")
E(f"s_and_b32 s100, s2, 3")
E(f"s_lshl_b32 s100, s100, 2")
E(f"s_bfe_u32 s101, s2, 0x20003")
E(f"s_add_u32 s{sJ}, s100, s101")
E(f"s_bfe_u32 s100, s2, 0x10002")
E(f"s_lshl_b32 s100, s100, 3")
E(f"s_lshr_b32 s{sROT}, s2, 5")
E(f"s_add_u32 s{sI}, s100, s{sROT}")
for c in range(9):
    E(f"s_add_u32 s100, s{sROT}, {c}")
    E(f"s_sub_u32 s101, s100, 9")
    E(f"s_cmp_ge_u32 s100, 9")
    E(f"s_cselect_b32 s100, s101, s100")
    E(f"s_lshl_b32 s{sRT+c}, s100, 7")
E(f"v_lshrrev_b32 v{vT0}, 3, v{vL}")
E(f"v_lshrrev_b32 v{vT1}, 4, v{vL}")
E(f"v_and_b32 v{vT2}, 7, v{vL}")
E(f"v_xor_b32 v{vT2}, v{vT2}, v{vT1}")
E(f"v_lshlrev_b32 v{vT2}, 4, v{vT2}")
E(f"v_mul_u32_u24 v{vT0}, 1152, v{vT0}")
E(f"v_add_u32 v{vXD}, v{vT0}, v{vT2}")
E(f"v_xor_b32 v{vXD+1}, 64, v{vXD}")
E(f"v_add_u32 v{vXD+2}, {2*8192}, v{vXD}")
E(f"v_add_u32 v{vXD+3}, {3*8192}, v{vXD+1}")
E(f"v_add_u32 v{vXD+1}, 8192, v{vXD+1}")
E(f"s_lshl_b32 s100, s{sI}, 2")
E(f"s_add_u32 s100, s100, s{sW}")
E(f"s_mul_i32 s{sXB}, s100, {32*1152}")
E(f"s_mul_i32 s{sM0X}, s{sW}, 20480")
E(f"s_add_u32 s{sM0X}, s{sM0X}, {XS}")
E("s_waitcnt lgkmcnt(0)")
def mk_srd(b, p, n):
    E(f"s_mov_b32 s{b}, s{p}"); E(f"s_mov_b32 s{b+1}, s{p+1}"); E(f"s_mov_b32 s{b+2}, {n}"); E(f"s_mov_b32 s{b+3}, 0x00020000")
mk_srd(SX, 40, 2048*1152)

def x_dma(cb):
    hs = []
    E(f"s_add_u32 m0, s{sM0X}, {(cb % 5)*4096}")
    E(f"s_add_u32 s100, s{sXB}, s{sRT+cb}")
    for g in range(4):
        hs.append(E(f"buffer_load_dwordx4 v{vXD+g}, {srd(SX)}, s100 offen offset:{g*1024} lds"))
    return hs
mk_srd(SWS, 56, WS_REC)
E(f"v_mov_b32 v{vFL}, {EBASE}")
E(RAW(f"""  s_or_b32 s101, s2, s{sW}
  s_cmp_lg_u32 s101, 0
  s_cbranch_scc1 L_noep1
  buffer_load_dword v{vFL+1}, v{vFL}, {srd(SWS)}, 0 offen sc1
L_noep1:"""))
xh = {}
for cb in range(5): xh[cb] = x_dma(cb)
mk_srd(SQ, 42, 576*3456); mk_srd(SO, 44, 576*1152); mk_srd(S1, 48, 576*9216); mk_srd(S2, 50, 4608*1152)
mk_srd(SOUT, 52, 2048*1152); mk_srd(SDB, 54, 256)
E(f"v_lshrrev_b32 v{vT0}, 4, v{vL}")
E(f"v_and_b32 v{vT1}, 15, v{vL}")
E(f"v_mul_u32_u24 v{vT2}, {4*9216}, v{vT0}")
E(f"v_lshl_add_u32 v{vDH}, v{vT1}, 4, v{vT2}")
for n in range(1, 4): E(f"v_add_u32 v{vDH+n}, {n*(9216-1088)}, v{vDH}")
E(f"v_min_u32 v{vT1}, 14, v{vT1}")
E(f"v_mul_u32_u24 v{vT2}, 13, v{vT1}")
E(f"v_lshrrev_b32 v{vT2}, 6, v{vT2}")
E(f"v_mul_u32_u24 v{vT3_}, 5, v{vT2}")
E(f"v_sub_u32 v{vT1}, v{vT1}, v{vT3_}")
E(f"v_lshlrev_b32 v{vT1}, 4, v{vT1}")
E(f"v_min_u32 v{vT1}, 56, v{vT1}")
E(f"v_mul_u32_u24 v{vT3_}, 1152, v{vT2}")
E(f"v_add_u32 v{vT1}, v{vT1}, v{vT3_}")
E(f"s_mul_i32 s{sA}, s{sJ}, 72")
E(f"s_xor_b32 s{sB}, s{sJ}, 1")
E(f"s_mul_i32 s{sC}, s{sB}, 72")
E(f"v_mov_b32 v{vT3_}, s{sC}")
E(f"v_mov_b32 v{vDS}, s{sA}")
E(f"v_cmp_eq_u32 vcc, 0, v{vT2}")
E(f"v_cndmask_b32 v{vT3_}, v{vT3_}, v{vDS}, vcc")
E(f"v_add_u32 v{vT1}, v{vT1}, v{vT3_}")
E(f"v_mul_u32_u24 v{vT2}, {4*3456}, v{vT0}")
E(f"v_add_u32 v{vDQ}, v{vT1}, v{vT2}")
for n in range(1, 4): E(f"v_add_u32 v{vDQ+n}, {n*(3456-1088)}, v{vDQ}")
E(f"v_lshrrev_b32 v{vT0}, 2, v{vL}")
E(f"v_mul_u32_u24 v{vT0}, 9216, v{vT0}")
E(f"v_and_b32 v{vT1}, 3, v{vL}")
E(f"v_lshl_add_u32 v{vDS}, v{vT1}, 4, v{vT0}")
E(f"s_mul_i32 s{sQB}, s{sW}, {16*3456}")
E(f"s_and_b32 s{sA}, s{sJ}, 1")
E(f"s_mul_i32 s{sC}, s{sJ}, 288")
E(f"s_lshl_b32 s{sD}, s{sA}, 5")
E(f"s_add_u32 s{sD}, s{sD}, s{sC}")
E(f"s_xor_b32 s{sA}, s{sA}, 1")
E(f"s_lshl_b32 s{sA}, s{sA}, 8")
E(f"s_add_u32 s{sC}, s{sC}, s{sA}")
E(f"s_mul_i32 s{sA}, s{sW}, {16*9216}")
E(f"s_lshl_b32 s{sHA}, s{sD}, 1")
E(f"s_add_u32 s{sHA}, s{sHA}, s{sA}")
E(f"s_add_u32 s{sHB}, s{sHA}, 256")
E(f"s_lshl_b32 s{sSG}, s{sC}, 1")
E(f"s_add_u32 s{sSG}, s{sSG}, s{sA}")
E(f"s_mul_i32 s{sM0A}, s{sW}, {GA_KS}")
E(f"s_mul_i32 s{sM0B}, s{sW}, {GB_KS}")
E(f"s_mul_i32 s{sM0C}, s{sW}, 5120")
E(f"s_lshl_b32 s{sM0D}, s{sW}, 12")
E(f"s_lshl_b32 s{sM0E}, s{sW}, 10")
E(f"s_mul_i32 s{sA}, s{sW}, 40")
E(f"s_add_u32 s{sA}, s{sA}, s{sD}")
E(f"s_mul_i32 s{sW2A}, s{sA}, 1152")
E(f"s_lshl_b32 s{sA}, s{sW}, 5")
E(f"s_add_u32 s{sA}, s{sA}, s{sD}")
E(f"s_add_u32 s{sA}, s{sA}, 160")
E(f"s_cmp_eq_u32 s{sW}, 3")
E(f"s_cselect_b32 s{sA}, s{sC}, s{sA}")
E(f"s_mul_i32 s{sW2B}, s{sA}, 1152")
E(f"s_mul_i32 s{sC}, s{sJ}, 36")
E(f"s_lshl_b32 s{sA}, s{sW}, 3")
E(f"s_lshr_b32 s{sD}, s{sW}, 1")
E(f"s_lshl_b32 s{sD}, s{sD}, 2")
E(f"s_add_u32 s{sA}, s{sA}, s{sD}")
E(f"s_add_u32 s{sA}, s{sA}, s{sC}")
E(f"s_mul_i32 s{sWO5}, s{sA}, 1152")
E(f"s_add_u32 s{sC}, s{sC}, 16")
E(f"s_mul_i32 s{sWO6}, s{sC}, 1152")

class Chunk: pass
chunks = []
def add_chunk(kind, c, size):
    ch = Chunk(); ch.kind = kind; ch.c = c; ch.size = size; ch.n = len(chunks); ch.dmas = []; chunks.append(ch); return ch
for c in range(9): add_chunk('ga', c, GA_CH).base = (c % 4) * GA_CH
pos = GA_CH
for c in range(9):
    ch = add_chunk('gb', c, GB_CH)
    if pos + GB_CH > VB: pos = 0
    ch.base = pos; pos += GB_CH
for c in range(9):
    for half, sz in (('a', P2A), ('b', P2B)):
        ch = add_chunk('p2' + half, c, sz)
        lim = VB if (2*c + (half == 'b')) < 6 else LDS_TOTAL
        if pos + sz > lim: pos = 0
        ch.base = pos; pos += sz

def dma_items(ch):
    c, b = ch.c, ch.base
    it = []
    def grp(m0w, m0c, soff_ins, srdb, voffs):
        it.append([I(f"s_add_u32 m0, s{m0w}, {m0c}") if m0w else I(f"s_mov_b32 m0, {m0c}")] + [I(s) for s in soff_ins])
        for (v, imm) in voffs:
            d = I(f"buffer_load_dwordx4 v{v}, {srd(srdb)}, s{sDM} offen offset:{imm} lds")
            ch.dmas.append(d); it.append([d])
    four = lambda v, st: [(v + n, n * st) for n in range(4)]
    if ch.kind == 'ga':
        grp(sM0A, b, [f"s_mul_i32 s{sDM}, s{sRT+c}, 1728", f"s_add_u32 s{sDM}, s{sDM}, s{sQB}"], SQ, four(vDQ, 1088))
        grp(sM0A, b + IMG, [f"s_mul_i32 s{sDM}, s{sRT+c}, 4608", f"s_add_u32 s{sDM}, s{sDM}, s{sHA}"], S1, four(vDH, 1088))
    elif ch.kind == 'gb':
        grp(sM0B, b, [f"s_mul_i32 s{sDM+1}, s{sRT+c}, 4608", f"s_add_u32 s{sDM}, s{sDM+1}, s{sHB}"], S1, four(vDH, 1088))
        grp(sM0B, b + IMG, [f"s_add_u32 s{sDM}, s{sDM+1}, s{sSG}"], S1, [(vDS, 0)])
    elif ch.kind == 'p2a':
        grp(sM0C, b, [f"s_add_u32 s{sDM}, s{sW2A}, s{sRT+c}"], S2, four(vDQ, 1024))
        grp(sM0C, b + 4096, [f"s_add_u32 s{sDM}, s{sDM}, {32*1152}"], S2, [(vDQ, 0)])
    else:
        grp(sM0D, b, [f"s_add_u32 s{sDM}, s{sW2B}, s{sRT+c}"], S2, four(vDQ, 1024))
        grp(sM0E, b + 16384, [f"s_add_u32 s{sDM}, s{sWO5}, s{sRT+c}"], SO, [(vDQ, 0)])
        grp(None, b + 20480, [f"s_add_u32 s{sDM}, s{sWO6}, s{sRT+c}"], SO, [(vDQ, 0)])
    return it
for ch in chunks: ch.items = dma_items(ch)
def emit_chunk_now(ch):
    for g in ch.items:
        for x in g: E(x)
    ch.items = []
emit_chunk_now(chunks[0])

E(f"v_and_b32 v{vT0}, 31, v{vL}")
E(f"v_lshrrev_b32 v{vT1}, 5, v{vL}")
E(f"v_bfe_u32 v{vT2}, v{vL}, 1, 3")
E(f"v_xor_b32 v{vT2}, v{vT2}, v{vT1}")
E(f"v_lshlrev_b32 v{vT2}, 4, v{vT2}")
E(f"v_lshl_add_u32 v{vT2}, v{vT0}, 7, v{vT2}")
for s in range(4):
    E(f"v_xor_b32 v{vXR+s}, {32*s}, v{vT2}")
    E(f"v_add_u32 v{vXR+s}, s{sM0X}, v{vXR+s}")
E(f"v_lshlrev_b32 v{vL16}, 4, v{vL}")
E(f"s_mov_b32 s{sLO}, -1"); E(f"s_mov_b32 s{sLO+1}, 0")
E(f"v_lshlrev_b32 v{vT2}, 31, v{vT1}")
E(f"v_lshl_add_u32 v{vKX}, v{vT0}, 3, v{vT2}")
E(f"v_add_u32 v{vKX}, 2048, v{vKX}")
E(f"v_lshlrev_b32 v{vVC}, 4, v{vT0}")
E(f"v_add_u32 v{vVC}, 4352, v{vVC}")
E(f"v_bfe_u32 v{vT0}, v{vL}, 2, 2")
E(f"v_bfe_u32 v{vT2}, v{vL}, 4, 1")
E(f"v_and_b32 v{vT3_}, 3, v{vL}")
E(f"v_lshl_add_u32 v{vT3_}, v{vT2}, 2, v{vT3_}")
E(f"v_mul_u32_u24 v{vA}, 1088, v{vT0}")
E(f"v_lshl_add_u32 v{vA}, v{vT1}, 9, v{vA}")
E(f"v_mul_u32_u24 v{vT3}, 40, v{vT3_}")
E(f"v_add3_u32 v{vT3}, v{vT3}, v{vA}, 36")
E(f"v_add_u32 v{vT3}, 36, v{vT3}")
E(f"v_lshl_add_u32 v{vA}, v{vT3_}, 3, v{vA}")
E(f"v_lshl_add_u32 v{vS}, v{vT1}, 3, v{vT0}")
E(f"v_lshlrev_b32 v{vS}, 6, v{vS}")
E(f"v_lshl_add_u32 v{vS}, v{vT3_}, 3, v{vS}")
E(f"v_lshl_add_u32 v{vP0}, v{vT1}, 2, v{vT0}")
E(f"v_lshlrev_b32 v{vP0}, 7, v{vP0}")
E(f"v_lshl_add_u32 v{vP0}, v{vT3_}, 3, v{vP0}")
E(f"v_lshrrev_b32 v{vT2}, 1, v{vT0}")
E(f"v_lshl_add_u32 v{vP0}, v{vT2}, 6, v{vP0}")
E(f"v_xor_b32 v{vP1}, 64, v{vP0}")
E(f"s_lshl_b32 s{sA}, s{sI}, 2")
E(f"s_add_u32 s{sB}, s{sA}, s{sW}")
E(f"s_sub_u32 s{sB}, s{sB}, 8")
E(f"s_lshl_b32 s{sC}, s{sJ}, 6")
for t9 in range(9):
    E(f"s_add_i32 s100, s{sB}, {t9}")
    E(f"s_and_b32 s101, s100, 3")
    E(f"s_add_u32 s101, s101, s{sA}")
    E(f"s_cmp_lt_i32 s100, 0")
    E(f"s_cselect_b32 s100, s101, s100")
    E(f"s_add_u32 s100, s100, s{sC}")
    E(f"s_mul_i32 s100, s100, {KVB}")
    E(f"s_add_u32 s{sKV+t9}, s100, {KVBASE}")
E(f"s_xor_b32 s100, s{sJ}, 1")
E(f"s_lshl_b32 s100, s100, 6")
E(f"s_add_u32 s100, s100, s{sA}")
E(f"s_add_u32 s100, s100, s{sW}")
E(f"s_mul_i32 s100, s100, {KVB}")
E(f"s_add_u32 s{sKVW}, s100, {KVBASE}")
E(f"s_lshl_b32 s100, s{sI}, 4")
E(f"s_add_u32 s100, s100, s{sJ}")
E(f"s_lshl_b32 s100, s100, 2")
E(f"s_add_u32 s100, s100, s{sW}")
E(f"s_lshl_b32 s{sFW}, s100, 7")
E(f"s_mul_i32 s{sPB}, s{sI}, {9*262144}")
E(f"s_add_u32 s{sPB}, s{sPB}, {PBASE}")
E(f"v_and_b32 v{vT0}, 15, v{vL}")
E(f"v_and_b32 v{vT1}, 1, v{vL}")
E(f"v_lshlrev_b32 v{vT1}, 4, v{vT1}")
E(f"v_mov_b32 v{vT2}, 0x3f80")
E(f"v_lshlrev_b32 v{vT2}, v{vT1}, v{vT2}")
E(f"v_lshrrev_b32 v{vT0}, 1, v{vT0}")
for d in range(4):
    E(f"v_cmp_eq_u32 vcc, {d}, v{vT0}")
    E(f"v_cndmask_b32 v{vT1}, 0, v{vT2}, vcc")
    E(f"v_accvgpr_write_b32 a{aSEL+d}, v{vT1}")
for k in range(4): E(f"v_mov_b32 v{vST+k}, 0")

def stats(cb):
    for d in range(16):
        x = XN + 16*cb + d
        E(f"v_dot2c_f32_bf16 v{vST + (d & 1)}, 0x3f803f80, v{x}")
        E(f"v_dot2c_f32_bf16 v{vST + 2 + (d & 1)}, v{x}, v{x}")

last_rd = None
for cb in range(9):
    E(WAITVM(*xh[cb]))
    rds = [E(f"ds_read_b128 {vr(XN + 16*cb + 4*s)}, v{vXR+s} offset:{(cb % 5)*4096}") for s in range(4)]
    if cb == 0:
        E(RAW(f"""  s_or_b32 s101, s2, s{sW}
  s_cmp_lg_u32 s101, 0
  s_cbranch_scc1 L_noep2
  v_and_b32 v{vFL+1}, -16, v{vFL+1}
  v_add_u32 v{vFL+1}, 16, v{vFL+1}
  buffer_store_dword v{vFL+1}, v{vFL}, {srd(SWS)}, 0 offen sc1
  v_mov_b32 v{vT0}, 0
  v_or_b32 v{vT1}, 1, v{vFL+1}
  buffer_store_dword v{vT1}, v{vT0}, {srd(SDB)}, 0 offen sc1
  s_nop 1
L_noep2:"""))
    if cb >= 1: stats(cb - 1)
    if cb + 5 <= 8:
        E(WAITLG(*rds)); xh[cb + 5] = x_dma(cb + 5)
    if cb == 3: emit_chunk_now(chunks[1])
    last_rd = rds
E(WAITLG(*last_rd))
STAMP()

class Gap:
    def __init__(s, m): s.m = m; s.pre = []; s.post = []; s.frag = None; s.chunk = None; s.budget = OPT['budget']
gaps = []
basecur = {vA: 0, vT3: 0, vS: 0, vP0: 0, vP1: 0}
def add_mfma(text, frag=None, chunk=None):
    g = Gap(None); g.text = text; g.frag = frag; g.chunk = chunk; gaps.append(g); return len(gaps) - 1

def mf(D, A, B, C): return f"v_mfma_f32_32x32x16_bf16 {D}, {A}, {B}, {C}"
for c in range(9):
    ch = chunks[c]
    for s in range(4):
        ks = 4*c + s
        for T in range(8):
            off = ch.base + s*GA_KS
            if T < 3: fr = (vA, off + 80*T, 256)
            elif T == 3: fr = (vT3, off, 256)
            else: fr = (vA, off + IMG + 64*(T-4), 256)
            D = ar(aT + 16*T, 16)
            add_mfma(lambda A, D=D, ks=ks: mf(D, A, vr(XN + 4*ks), D if ks else "0"), fr, ch)
GA_END = len(gaps)
for c in range(9):
    ch = chunks[9 + c]
    for s in range(4):
        ks = 4*c + s
        for T in range(5):
            off = ch.base + s*GB_KS
            fr = (vA, off + 64*T, 256) if T < 4 else (vS, off + IMG, 256)
            D = ar(aG + 16*T, 16)
            add_mfma(lambda A, D=D, ks=ks: mf(D, A, vr(XN + 4*ks), D if ks else "0"), fr, ch)
GB_END = len(gaps)
TORD = [1, 2, 3, 4, 5, 6, 7, 0, 8]
steps = [(h, t) for h in range(2) for t in TORD]
def Kf(h, t): return ar(aK + 36*h + 4*t)
def Q1(h): return vr(vQ + 4*h)
def Q2(h): return vr(vQ + 8 + 4*h)
P1 = []
for u, (h, t) in enumerate(steps):
    S = vr(vSB + 16*(u % 3), 16)
    C = vr(vM0, 16) if t == 0 else (vr(vM8, 16) if t == 8 else "0")
    a = add_mfma(mf(S, Kf(h, t), Q1(h), C))
    b = add_mfma(mf(S, vr(vR + 2*t), Q2(h), S))
    P1.append((a, b))
P1_END = len(gaps)
vCM = vE
vVA, vVBb = 2, 3
basecur[vVA] = 0; basecur[vVBb] = 0
P2s = []
NS = len(steps)
for u in range(NS + 2):
    ent = {}
    if u < NS:
        h, t = steps[u]
        S = vr(vSB + 16*(u % 4), 16)
        ent['qa'] = add_mfma(mf(S, Kf(h, t), Q1(h), S if t in (0, 8) else vr(vCM, 16)))
        ent['qb'] = add_mfma(mf(S, vr(vR + 2*t), Q2(h), S))
    if u >= 2:
        h, t = steps[u - 2]
        Pb = vSB + 16*((u - 2) % 4)
        O = ar(aO + 16*h, 16)
        first = (TORD.index(t) == 0)
        for s in range(2):
            fr = (vVA if h == 0 else vVBb, (32*t + 16*s) * 80, 640)
            ent['pv%d' % s] = add_mfma(lambda A, O=O, Pb=Pb, s=s, first=first: mf(O, A, vr(Pb + 4*s), "0" if (first and s == 0) else O), fr, 'V')
    P2s.append(ent)
ATT_END = len(gaps)
vOX = vQ
vPK = 232
def hfrag(ks):
    if ks < 8: return vr(vH1 + 4*ks)
    if ks < 18: return vr(vH2 + 4*(ks - 8))
    return vr(vOX + 4*(ks - 18))
PAIR0 = []
for c in range(9):
    PAIR0.append(len(gaps))
    for ks in range(21):
        ch = chunks[18 + 2*c + (ks >= 10)]
        off = ch.base + (ks if ks < 10 else ks - 10) * 2048
        for T in range(2):
            D = vr(vSB + 32*(c & 1) + 16*T, 16)
            add_mfma(lambda A, D=D, ks=ks: mf(D, A, hfrag(ks), D if ks else "0"), (vP0 + T, off, 1024 if ks < 20 else None), ch)
NG = len(gaps)

PD = OPT['PD']
first_use, last_use = {}, {}
for g, G in enumerate(gaps):
    if G.chunk is not None:
        first_use.setdefault(G.chunk, g); last_use[G.chunk] = g
bar_at = {}
for ch in chunks[1:]:
    bar_at[first_use[ch] - PD] = ch
BV = first_use['V'] - PD
assert BV not in bar_at
bar_at[BV] = 'V'
bars = sorted(bar_at)
def release_gap(key):
    return min(b for b in bars if b > last_use[key])
for ch in chunks[2:]:
    nb = 0
    for o in chunks[:ch.n]:
        if o.base < ch.base + ch.size and ch.base < o.base + o.size: nb = max(nb, release_gap(o))
    if ch.base + ch.size > VB and ch.kind.startswith('p2'): nb = max(nb, release_gap('V'))
    if ch.kind == 'p2a' and ch.c == 0: pass
    ch.nb = nb
V_NB = max(release_gap(o) for o in chunks[:18] if o.base + o.size > VB)

fragno = 0
reads_at = {}
for g, G in enumerate(gaps):
    if G.frag is None:
        G.m = I(G.text); continue
    b = aF + 4*(fragno % 8); fragno += 1
    G.fb = b
    G.m = I(G.text(ar(b)))
    pos_ = g - PD
    if G.chunk == 'V': pos_ = max(pos_, BV)
    reads_at.setdefault(pos_, []).append(g)
def emit_reads(g):
    G = gaps[g]; bv, off, d = G.frag
    outl = []
    hi = off + (d or 0)
    if off < basecur[bv] or hi - basecur[bv] > 65535 - 8:
        nbase = off & ~0x7ff
        outl.append(I(f"v_add_u32 v{bv}, {(nbase - basecur[bv]) & 0xffffffff:#x}, v{bv}"))
        basecur[bv] = nbase
    r0 = I(f"ds_read_b64_tr_b16 {ar(G.fb, 2)}, v{bv} offset:{off - basecur[bv]}")
    outl.append(r0); G.rd = [r0]
    if d is not None:
        r1 = I(f"ds_read_b64_tr_b16 {ar(G.fb + 2, 2)}, v{bv} offset:{off + d - basecur[bv]}")
        outl.append(r1); G.rd.append(r1)
    return outl

class Stream:
    def __init__(s, name, maxper=99): s.q = deque(); s.name = name; s.maxper = maxper
    def add(s, ins, nb=0, dl=10**9):
        ins = [x if isinstance(x, I) else I(x) for x in (ins if isinstance(ins, list) else [ins])]
        s.q.append((nb, dl, ins)); return ins[-1]
norm, epi, side = Stream('norm'), Stream('epi'), Stream('side')

def norm_ops(ks):
    o = []
    for d in range(4):
        x = XN + 4*ks + d; t = vE + 2*((4*ks + d) % 4)
        o += [f"v_lshlrev_b32 v{t}, 16, v{x}", f"v_and_b32 v{t+1}, 0xffff0000, v{x}"]
    for d in range(4):
        x = XN + 4*ks + d; t = vE + 2*((4*ks + d) % 4)
        o += [f"v_fma_f32 v{t}, v{t}, v{vRS}, v{vNB}", f"v_fma_f32 v{t+1}, v{t+1}, v{vRS}, v{vNB}"]
    for d in range(4):
        x = XN + 4*ks + d; t = vE + 2*((4*ks + d) % 4)
        o += [f"v_cvt_pk_bf16_f32 v{x}, v{t}, v{t+1}"]
    return o
for ks in range(1, 36):
    for x in norm_ops(ks): norm.add(x, nb=max(0, 8*ks - 24), dl=8*ks - 1)

def poll_check(name, need, vaddr, soff="0"):
    chk = [f"s_add_u32 s{sA}, s{sT}, {need}",
           f"v_subrev_u32 v{vFL}, s{sA}, v{vFL}",
           f"v_cmp_eq_u32 s[{sCK}:{sCK+1}], s{sTH}, v{vFL+1}",
           f"v_cmp_ge_u32 vcc, {15 - need}, v{vFL}",
           f"s_and_b64 vcc, vcc, s[{sCK}:{sCK+1}]",
           f"s_cmp_eq_u64 vcc, -1"]
    slow_paths.append(f"""L_slow_{name}:
  s_mov_b32 s{sD}, 0
L_spin_{name}:
  s_sleep 2
  buffer_load_dwordx2 v[{vFL}:{vFL+1}], v{vaddr}, {srd(SWS)}, {soff} offen sc1
  s_waitcnt vmcnt(0)
  """ + "\n  s_nop 1\n  ".join(chk) + f"""
  s_cbranch_scc1 L_back_{name}
  s_add_u32 s{sD}, s{sD}, 1
  s_cmp_lt_u32 s{sD}, 0x40000
  s_cbranch_scc1 L_spin_{name}
  s_branch L_back_{name}
""")
    return [I(x) for x in chk] + [I(f"s_cbranch_scc0 L_slow_{name}"), I(f"L_back_{name}:")]
side.add([f"v_mov_b32 v{vT0}, 0", f"buffer_load_dword v{vFL}, v{vT0}, {srd(SDB)}, 0 offen sc1"], nb=100)
slow_paths.append(f"""L_slow_tag:
  s_mov_b32 s{sD}, 0
L_spin_tag:
  s_sleep 2
  buffer_load_dword v{vFL}, v{vT0}, {srd(SDB)}, 0 offen sc1
  s_waitcnt vmcnt(0)
  v_readfirstlane_b32 s{sT}, v{vFL}
  s_nop 1
  s_cmp_lg_u32 s{sT}, 0
  s_cbranch_scc1 L_back_tag
  s_add_u32 s{sD}, s{sD}, 1
  s_cmp_lt_u32 s{sD}, 0x40000
  s_cbranch_scc1 L_spin_tag
  s_branch L_back_tag
""")
side.add([f"v_readfirstlane_b32 s{sT}, v{vFL}", f"s_cmp_lg_u32 s{sT}, 0", "s_cbranch_scc0 L_slow_tag", "L_back_tag:",
          f"s_and_b32 s{sT}, s{sT}, -16", f"s_xor_b32 s{sTH}, s{sT}, {THI:#x}"], nb=160)

p2_setup = [f"v_lshrrev_b32 v{vDQ+1}, 3, v{vL}", f"v_bfe_u32 v{vDQ+2}, v{vL}, 4, 1", f"v_lshlrev_b32 v{vDQ+2}, 2, v{vDQ+2}",
            f"v_and_b32 v{vDQ+3}, 7, v{vL}", f"v_xor_b32 v{vDQ+3}, v{vDQ+3}, v{vDQ+2}", f"v_mul_u32_u24 v{vDQ+1}, 1152, v{vDQ+1}",
            f"v_lshl_add_u32 v{vDQ}, v{vDQ+3}, 4, v{vDQ+1}"] + [f"v_add_u32 v{vDQ+n}, {n*8192}, v{vDQ}" for n in range(1, 4)]

e0 = GA_END + 2
CSC = math.log2(math.e) / math.sqrt(18.0)
def rd_cvt(acc, n, dst, scale=None, relu=False, nb=e0, tb=vE, dl=10**9):
    for k0 in range(0, n, 8):
        m = min(8, n - k0)
        for k in range(m): epi.add(f"v_accvgpr_read_b32 v{tb+k}, a{acc+k0+k}", nb=nb, dl=dl)
        if scale:
            for k in range(m): epi.add(f"v_mul_f32 v{tb+k}, {scale}, v{tb+k}", nb=nb, dl=dl)
        for k in range(0, m, 2): epi.add(f"v_cvt_pk_bf16_f32 v{dst+(k0+k)//2}, v{tb+k}, v{tb+k+1}", nb=nb, dl=dl)
        if relu:
            for k in range(0, m, 2): epi.add(f"v_pk_max_i16 v{dst+(k0+k)//2}, v{dst+(k0+k)//2}, 0", nb=nb, dl=dl)
LO = f"s[{sLO}:{sLO+1}]"
kP, x8, vP_ = vH1, vH1 + 8, vH1 + 16
rd_cvt(aT + 16, 16, kP)
rd_cvt(aT + 48 + 4, 8, x8)
st = []
st.append(epi.add(f"buffer_store_dwordx4 {vr(kP)}, v{vL16}, {srd(SWS)}, s{sKVW} offen sc1", nb=e0))
epi.add(f"v_mov_b32 v{x8+6}, v{kP+4}", nb=e0); epi.add(f"v_mov_b32 v{x8+7}, v{x8+1}", nb=e0)
epi.add(f"v_cndmask_b32_e64 v{kP+4}, v{kP+4}, v{x8}, {LO}", nb=e0)
epi.add(f"v_mov_b32 v{x8+4}, 0x3f803f80", nb=e0); epi.add(f"v_mov_b32 v{x8+5}, 0x3f803f80", nb=e0)
st.append(epi.add(f"buffer_store_dwordx4 {vr(kP+4)}, v{vL16}, {srd(SWS)}, s{sKVW} offen offset:1024 sc1", nb=e0))
st.append(epi.add(f"buffer_store_dwordx2 {vr(x8+6, 2)}, v{vKX}, {srd(SWS)}, s{sKVW} offen sc1", nb=e0))
rd_cvt(aT + 32, 16, vP_)
epi.add(f"v_lshlrev_b32 v{vT1}, 26, v{vL}", nb=e0)
epi.add(f"v_and_b32 v{vT1}, {OOB:#x}, v{vT1}", nb=e0)
epi.add(f"v_add_u32 v{vT1}, v{vT1}, v{vVC}", nb=e0)
st.append(epi.add(f"buffer_store_dwordx4 {vr(vP_)}, v{vL16}, {srd(SWS)}, s{sKVW} offen offset:2304 sc1", nb=e0))
st.append(epi.add(f"buffer_store_dwordx4 {vr(vP_+4)}, v{vL16}, {srd(SWS)}, s{sKVW} offen offset:3328 sc1", nb=e0))
st.append(epi.add(f"buffer_store_dwordx4 {vr(x8+2)}, v{vT1}, {srd(SWS)}, s{sKVW} offen sc1", nb=e0))
rd_cvt(aT, 16, vQ, scale=f32(CSC))
rd_cvt(aT + 48, 4, vQ + 14, scale=f32(CSC))
epi.add(f"v_mov_b32 v{vQ+13}, 0x3f80", nb=e0)
epi.add(f"v_cndmask_b32_e64 v{vQ+8}, v{vQ+13}, v{vQ+4}, {LO}", nb=e0)
epi.add(f"v_cndmask_b32_e64 v{vQ+4}, v{vQ+4}, v{vQ+14}, {LO}", nb=e0)
epi.add(f"v_cndmask_b32_e64 v{vQ+13}, v{vQ+13}, v{vQ+15}, {LO}", nb=e0)
for k in (9, 10, 11, 12, 14, 15): epi.add(f"v_mov_b32 v{vQ+k}, 0", nb=e0)
KVPOLL = GA_END + 118
kv0 = KVPOLL + 16
for T in range(4): rd_cvt(aT + 64 + 16*T, 16, vH1 + 8*T, relu=True, dl=kv0 - 1)

vFW, vFK, vFR = 4, 5, 0
def publish(count, waits):
    return [WAITVM(*waits), I(f"s_add_u32 s{sB}, s{sT}, {count}"), I(f"v_mov_b32 v{vFL2}, s{sB}"),
            I(f"buffer_store_dwordx2 {vr(vFL2, 2)}, v{vFW}, {srd(SWS)}, s{sFW} offen sc1")]
vFL2 = 24
side.add([f"v_cmp_eq_u32 vcc, 0, v{vL}", f"v_mov_b32 v{vFW}, {OOB:#x}", f"v_mov_b32 v{vFL2+1}, s{sTH}", f"v_cndmask_b32_e64 v{vFW}, v{vFW}, 0, vcc"], nb=GA_END + 1)
KVPUB = GA_END + 70
side.add(publish(1, st), nb=KVPUB)
side.add([f"v_bfe_u32 v{vT0}, v{vL}, 2, 2", f"v_min_u32 v{vT0}, 2, v{vT0}", f"s_sub_u32 s{sA}, s{sI}, 2", f"v_add_u32 v{vT0}, s{sA}, v{vT0}"], nb=KVPUB)
side.add([f"v_mov_b32 v{vT1}, s{sI}", f"v_cmp_gt_i32 vcc, 0, v{vT0}", f"s_xor_b32 s{sA}, s{sJ}, 1", f"s_lshl_b32 s{sA}, s{sA}, 9",
          f"v_cndmask_b32 v{vT0}, v{vT0}, v{vT1}, vcc"], nb=KVPUB)
side.add([f"v_lshlrev_b32 v{vT0}, 13, v{vT0}", f"v_and_b32 v{vT1}, 3, v{vL}", f"v_lshl_add_u32 v{vT0}, v{vT1}, 7, v{vT0}",
          f"v_add_u32 v{vFK}, s{sA}, v{vT0}"], nb=KVPUB)
side.add(f"buffer_load_dwordx2 {vr(vFL, 2)}, v{vFK}, {srd(SWS)}, 0 offen sc1", nb=KVPOLL)
side.add(poll_check('kv', 1, vFK), nb=KVPOLL + 16)
kv0 = KVPOLL + 16

vld = []
for m in range(3):
    so = sKV + 4*m
    vld.append(side.add(f"buffer_load_dwordx4 {ar(aVS + 12*m)}, v{vL16}, {srd(SWS)}, s{so} offen offset:2304 sc1", nb=kv0))
    vld.append(side.add(f"buffer_load_dwordx4 {ar(aVS + 12*m + 4)}, v{vL16}, {srd(SWS)}, s{so} offen offset:3328 sc1", nb=kv0))
    vld.append(side.add(f"buffer_load_dwordx4 {ar(aVS + 12*m + 8)}, v{vVC}, {srd(SWS)}, s{so} offen sc1", nb=kv0))
rld = []
for t in TORD:
    side.add(f"buffer_load_dwordx4 {Kf(0, t)}, v{vL16}, {srd(SWS)}, s{sKV+t} offen sc1", nb=kv0)
    rld.append(side.add(f"buffer_load_dwordx2 {vr(vR + 2*t, 2)}, v{vKX}, {srd(SWS)}, s{sKV+t} offen sc1", nb=kv0))
for t in TORD:
    side.add(f"buffer_load_dwordx4 {Kf(1, t)}, v{vL16}, {srd(SWS)}, s{sKV+t} offen offset:1024 sc1", nb=kv0)
side.add([f"v_mov_b32 v{vR+18}, 0", f"v_mov_b32 v{vR+19}, 0"], nb=kv0)
side.add([f"v_and_b32 v{vT0}, 31, v{vL}", f"s_lshl_b32 s{sA}, s{sW}, 5", f"v_add_u32 v{vT0}, s{sA}, v{vT0}", f"v_mul_u32_u24 v{vT0}, 80, v{vT0}"], nb=kv0)
side.add([f"v_add_u32 v{vT1}, {VB+64}, v{vT0}", f"v_and_b32 v{vKX}, 32, v{vL}", f"v_add3_u32 v{vT0}, v{vT0}, v{vKX}, s{sA}",
          f"s_sub_u32 s{sA}, {VB}, s{sA}", f"v_add_u32 v{vT0}, s{sA}, v{vT0}"], nb=kv0)
vwr = []
vw_nb = max(V_NB, GB_END - 6)
for m in range(3):
    vwr.append(side.add(f"ds_write_b128 v{vT0}, {ar(aVS + 12*m)} offset:{10240*m}", nb=vw_nb, dl=BV))
    vwr.append(side.add(f"ds_write_b128 v{vT0}, {ar(aVS + 12*m + 4)} offset:{10240*m + 16}", nb=vw_nb, dl=BV))
    vwr.append(side.add(f"ds_write_b128 v{vT1}, {ar(aVS + 12*m + 8)} offset:{10240*m}", nb=vw_nb, dl=BV))
tabA = bytes([0, 32, 8, 40, 16, 16, 72, 72]); tabB = bytes([48, 24, 56, 64, 16, 16, 72, 72])
lo = lambda b: "0x%08x" % int.from_bytes(b[:4], 'little')
hi = lambda b: "0x%08x" % int.from_bytes(b[4:], 'little')
side.add([f"v_bfe_u32 v{vKX}, v{vL}, 4, 1", f"v_and_b32 v{vVC}, 3, v{vL}", f"v_lshl_add_u32 v{vKX}, v{vKX}, 2, v{vVC}",
          f"v_or_b32 v{vKX}, 0x0c0c0c00, v{vKX}"], nb=vw_nb, dl=BV)
side.add([f"s_mov_b32 s{sA}, {hi(tabA)}", f"v_mov_b32 v{vVC}, {lo(tabA)}", f"v_perm_b32 v{vVA}, s{sA}, v{vVC}, v{vKX}",
          f"v_mov_b32 v{vVC}, {lo(tabB)}", f"v_perm_b32 v{vVBb}, s{sA}, v{vVC}, v{vKX}"], nb=vw_nb, dl=BV)
side.add([f"v_bfe_u32 v{vKX}, v{vL}, 2, 2", f"v_lshrrev_b32 v{vVC}, 5, v{vL}", f"v_lshl_add_u32 v{vKX}, v{vVC}, 2, v{vKX}",
          f"s_lshl_b32 s{sA}, s{sW}, 5", f"v_add_u32 v{vKX}, s{sA}, v{vKX}"], nb=vw_nb, dl=BV)
side.add([f"v_mul_u32_u24 v{vKX}, 80, v{vKX}", f"v_add_u32 v{vKX}, {VB}, v{vKX}", f"v_add_u32 v{vVA}, v{vVA}, v{vKX}",
          f"v_add_u32 v{vVBb}, v{vVBb}, v{vKX}"], nb=vw_nb, dl=BV)

blk = [f"  s_cmp_ge_u32 s{sI}, 2", "  s_cbranch_scc1 L_nobias", f"  s_lshl_b32 s{sA}, s{sI}, 2", f"  s_add_u32 s{sA}, s{sA}, s{sW}",
       "  s_mov_b32 exec_lo, 0"]
for t in range(8):
    blk += [f"  s_cmp_ge_u32 s{sA}, {8 - t}", f"  s_cbranch_scc1 L_bias_done", f"  v_mov_b32 v{vR+2*t}, 0xf149", f"  v_mov_b32 v{vR+2*t+1}, 0xf149"]
blk += ["L_bias_done:", "  s_mov_b32 exec_lo, -1", "  s_nop 1", "L_nobias:"]
gaps[P1[0][0]].pre += [WAITVM(*rld), RAW("\n".join(blk))]

vTT = 248
vME = 21
epi.add([f"v_and_b32 v{vTT}, 31, v{vL}", f"v_lshrrev_b32 v{vTT+1}, 5, v{vL}", f"v_lshlrev_b32 v{vTT+1}, 2, v{vTT+1}",
         f"v_sub_u32 v{vTT}, v{vTT}, v{vTT+1}"], nb=GB_END)
epi.add([f"v_cvt_f32_i32 v{vTT}, v{vTT}", f"v_add_f32 v{vTT}, 0.5, v{vTT}", f"v_mul_f32 v{vTT+1}, {f32(1e30)}, v{vTT}"], nb=GB_END)
for k in range(16):
    cc = 8*(k >> 2) + (k & 3)
    epi.add(f"v_sub_f32 v{vM8+k}, {f32(cc*1e30)}, v{vTT+1}", nb=GB_END, dl=P1[7][0] - 1)
    epi.add(f"v_min_f32 v{vM0+k}, 0, v{vM8+k}", nb=GB_END, dl=P1[7][0] - 1)
    epi.add(f"v_min_f32_e64 v{vM8+k}, 0, -v{vM8+k}", nb=GB_END, dl=P1[7][0] - 1)
for T in range(5): rd_cvt(aG + 16*T, 16, vH2 + 8*T, relu=True, nb=GB_END + 2, tb=vTT, dl=P2s[10]['qa'])

vMX = 16
def max_ops(u, half):
    h, t = steps[u]; S = vSB + 16*(u % 3) + 8*half
    o = []
    for k in range(4):
        acc = vMX + 2*h + (k & 1)
        if TORD.index(t) == 0 and half == 0 and k < 2: o.append(I(f"v_max_f32 v{acc}, v{S+2*k}, v{S+2*k+1}"))
        else: o.append(I(f"v_max3_f32 v{acc}, v{acc}, v{S+2*k}, v{S+2*k+1}"))
    return o
def fin_max(h):
    m = vMX + 2*h
    return [I(f"v_max_f32 v{m}, v{m}, v{m+1}"), I(f"v_mov_b32 v{m+1}, v{m}"), I(f"v_permlane32_swap_b32 v{m}, v{m+1}"),
            I(f"v_max_f32 v{m}, v{m}, v{m+1}"), I(f"v_sub_f32 v{m}, 0, v{m}")]
def cm_ops(h): return [I(f"v_mov_b32 v{vCM+k}, v{vMX+2*h}") for k in range(16)]
for u in range(2, NS):
    gaps[P1[u][0]].post += max_ops(u - 2, 0); gaps[P1[u][1]].post += max_ops(u - 2, 1)
gaps[P1[11][0]].post += fin_max(0)
gaps[P1[12][0]].post += cm_ops(0)[:8]; gaps[P1[13][0]].post += cm_ops(0)[8:]
for u in range(2):
    gaps[P2s[u]['qa']].post += max_ops(NS - 2 + u, 0); gaps[P2s[u]['qb']].post += max_ops(NS - 2 + u, 1)
gaps[P2s[2]['pv1']].post += fin_max(1)
for u in range(1, NS + 1):
    S = vSB + 16*((u - 1) % 4)
    ex = [I(f"v_exp_f32 v{S+k}, v{S+k}") for k in range(16)]
    cv = [I(f"v_cvt_pk_bf16_f32 v{S+k}, v{S+2*k}, v{S+2*k+1}") for k in range(8)]
    e = P2s[u]
    if u < NS:
        gaps[e['qa']].post += ex[:8]; gaps[e['qb']].post += ex[8:]
        gaps[e['pv0'] if 'pv0' in e else e['qb']].post += cv
    else:
        gaps[e['pv0']].post += ex[:12]; gaps[e['pv1']].post += ex[12:] + cv
    if u + 1 < NS and steps[u + 1][1] in (0, 8):
        h, t = steps[u + 1]; Sn = vSB + 16*((u + 1) % 4); M = vM0 if t == 0 else vM8
        gaps[e['pv1']].post += [I(f"v_add_f32 v{Sn+k}, v{M+k}, v{vMX+2*h}") for k in range(16)]
gaps[P2s[7]['pv0']].post += cm_ops(1)
for g in range(GB_END, ATT_END): gaps[g].budget = 6 if g < P1_END else 2
def onorm(h, nb, dl):
    O = aO + 16*h; rc = vFL
    epi.add(f"v_accvgpr_read_b32 v{rc}, a{O+12}", nb=nb, dl=dl)
    for k in range(8): epi.add(f"v_accvgpr_read_b32 v{vTT+k}, a{O+k}", nb=nb, dl=dl)
    epi.add(f"v_rcp_f32 v{rc}, v{rc}", nb=nb, dl=dl)
    epi.add(f"v_accvgpr_read_b32 v{rc+1}, a{O+8+2*h}", nb=nb, dl=dl)
    for k in range(8): epi.add(f"v_mul_f32 v{vTT+k}, v{rc}, v{vTT+k}", nb=nb, dl=dl)
    for k in range(4): epi.add(f"v_cvt_pk_bf16_f32 v{vOX+4*h+k}, v{vTT+2*k}, v{vTT+2*k+1}", nb=nb, dl=dl)
    epi.add(f"v_accvgpr_read_b32 v{vTT}, a{O+9+2*h}", nb=nb, dl=dl)
    epi.add(f"v_mul_f32 v{rc+1}, v{rc}, v{rc+1}", nb=nb, dl=dl)
    epi.add(f"v_mul_f32 v{vTT}, v{rc}, v{vTT}", nb=nb, dl=dl)
    epi.add(f"v_cvt_pk_bf16_f32 v{vTT}, v{rc+1}, v{vTT}", nb=nb, dl=dl)
    epi.add(f"v_cndmask_b32_e64 v{vOX+8+h}, 0, v{vTT}, {LO}", nb=nb, dl=dl)
onorm(0, P2s[11]['pv0'], PAIR0[0] + 30)
onorm(1, PAIR0[0] + 2, PAIR0[0] + 34)

vPW, vPR, vPR2, vOUT = 16, 17, 18, 19
p0 = PAIR0[0]
side.add([f"v_bfe_u32 v{vT0}, v{vL}, 2, 3", f"v_lshlrev_b32 v{vT0}, 13, v{vT0}", f"v_and_b32 v{vT1}, 3, v{vL}", f"v_lshl_add_u32 v{vT0}, v{vT1}, 5, v{vT0}"], nb=p0)
side.add([f"v_lshrrev_b32 v{vT1}, 5, v{vL}", f"v_lshl_add_u32 v{vT0}, v{vT1}, 4, v{vT0}", f"s_lshl_b32 s{sA}, s{sW}, 16", f"s_lshl_b32 s{sB}, s{sJ}, 9",
          f"s_add_u32 s{sA}, s{sA}, s{sB}", f"v_add_u32 v{vPW}, s{sA}, v{vT0}"], nb=p0)
side.add([f"v_lshrrev_b32 v{vT0}, 4, v{vL}", f"v_lshlrev_b32 v{vT0}, 9, v{vT0}", f"v_and_b32 v{vT1}, 15, v{vL}", f"v_lshl_add_u32 v{vT0}, v{vT1}, 4, v{vT0}"], nb=p0)
side.add([f"s_lshl_b32 s{sA}, s{sJ}, 14", f"s_and_b32 s{sB}, s{sW}, 1", f"s_lshl_b32 s{sC}, s{sB}, 13", f"s_add_u32 s{sA}, s{sA}, s{sC}"], nb=p0)
side.add([f"s_lshr_b32 s{sC}, s{sW}, 1", f"s_lshl_b32 s{sD}, s{sC}, 8", f"s_add_u32 s{sA}, s{sA}, s{sD}", f"v_add_u32 v{vPR}, s{sA}, v{vT0}",
          f"v_add_u32 v{vPR2}, 4096, v{vPR}"], nb=p0)
side.add([f"s_lshl_b32 s{sA}, s{sI}, 13", f"s_lshr_b32 s{sD}, s{sJ}, 2", f"s_lshl_b32 s{sD}, s{sD}, 7", f"s_add_u32 s{sA}, s{sA}, s{sD}",
          f"v_lshlrev_b32 v{vT1}, 9, v{vT1}", f"v_add_u32 v{vFR}, s{sA}, v{vT1}"], nb=p0)
side.add([f"s_lshl_b32 s{sA}, s{sI}, 7", f"s_lshl_b32 s{sD}, s{sJ}, 3", f"s_add_u32 s{sA}, s{sA}, s{sD}", f"s_lshl_b32 s{sB}, s{sB}, 2",
          f"s_add_u32 s{sA}, s{sA}, s{sB}", f"s_mul_i32 s{sA}, s{sA}, 1152"], nb=p0)
side.add([f"s_lshl_b32 s{sC}, s{sC}, 6", f"s_add_u32 s{sA}, s{sA}, s{sC}", f"v_bfe_u32 v{vT0}, v{vL}, 1, 2", f"v_mul_u32_u24 v{vT0}, 1152, v{vT0}",
          f"v_bfe_u32 v{vT1}, v{vL}, 3, 1"], nb=p0)
side.add([f"v_lshl_add_u32 v{vT0}, v{vT1}, 5, v{vT0}", f"v_bfe_u32 v{vT1}, v{vL}, 4, 1", f"v_lshl_add_u32 v{vT0}, v{vT1}, 4, v{vT0}",
          f"v_and_b32 v{vT1}, 1, v{vL}", f"v_lshl_add_u32 v{vT0}, v{vT1}, 3, v{vT0}"], nb=p0)
side.add([f"v_lshlrev_b32 v{vT1}, 26, v{vL}", f"v_and_b32 v{vT1}, {OOB:#x}, v{vT1}", f"v_add3_u32 v{vOUT}, v{vT0}, v{vT1}, s{sA}"], nb=p0)

def p2_epi(p):
    A = vSB + 32*(p & 1)
    o = [[I(f"s_add_u32 s{sRS}, s{sPB}, {p*262144}")]]
    sts = []
    for q4 in range(4):
        for k in range(4): o.append([I(f"v_cvt_pk_bf16_f32 v{vPK+4*q4+k}, v{A+8*q4+2*k}, v{A+8*q4+2*k+1}")])
        x = I(f"buffer_store_dwordx4 {vr(vPK+4*q4)}, v{vPW}, {srd(SWS)}, s{sRS} offen offset:{128*q4} sc1")
        o.append([x]); sts.append(x)
    return o, sts
def red_loads(p, k):
    a = aRD + 16*k; x = 216 + 8*(k & 1) if k < 2 else 76 + 8*(k - 2)
    o = [[I(f"s_add_u32 s{sRS+1}, s{sPB}, {p*262144}")]]
    for n in range(4):
        o.append([I(f"buffer_load_dwordx4 {ar(a+4*n)}, v{vPR if n < 2 else vPR2}, {srd(SWS)}, s{sRS+1} offen offset:{2048*(n&1)} sc1")])
    o.append([I(f"buffer_load_dwordx2 {vr(x, 2)}, v{vOUT}, {srd(SX)}, s{sRT+p} offen")])
    return o
def red_comp(p, k):
    a = aRD + 16*k; x = 216 + 8*(k & 1) if k < 2 else 76 + 8*(k - 2)
    C = x + 4
    o = [[I(f"v_lshlrev_b32 v{C}, 16, v{x}")], [I(f"v_and_b32 v{C+1}, 0xffff0000, v{x}")],
         [I(f"v_lshlrev_b32 v{C+2}, 16, v{x+1}")], [I(f"v_and_b32 v{C+3}, 0xffff0000, v{x+1}")]]
    mm = [[I(f"v_mfma_f32_16x16x32_bf16 {vr(C)}, {ar(aSEL)}, {ar(a+4*n)}, {vr(C)}")] for n in range(4)]
    fin = [[I(f"v_cvt_pk_bf16_f32 v{x+2}, v{C}, v{C+1}")], [I(f"v_cvt_pk_bf16_f32 v{x+3}, v{C+2}, v{C+3}")],
           [I(f"buffer_store_dwordx2 {vr(x+2, 2)}, v{vOUT}, {srd(SOUT)}, s{sRT+p} offen")]]
    return o, mm, fin
pst = {}
ev = []
for c in range(1, 9):
    o, pst[c - 1] = p2_epi(c - 1)
    for x in o: epi.add(x, nb=PAIR0[c] + 3, dl=PAIR0[c] + 40)
for c in range(2, 9):
    if c >= 4:
        p = c - 4
        ev.append((PAIR0[c] + 1, [[I(f"buffer_load_dwordx2 {vr(vFL, 2)}, v{vFR}, {srd(SWS)}, 0 offen sc1")]]))
        ev.append((PAIR0[c] + 14, [poll_check(f'r{p}', 2 + p, vFR)] + red_loads(p, p & 1)))
    if c >= 5:
        p = c - 5
        o, mm, fin = red_comp(p, p & 1)
        ev.append((PAIR0[c] + 4, o + mm)); ev.append((PAIR0[c] + 11, fin))
    ev.append((PAIR0[c] + 26, [publish(2 + c - 2, pst[c - 2])]))
for gp, items in sorted(ev, key=lambda x: x[0]):
    for it in items: side.add(it, nb=gp)

E(WAITVM(*chunks[0].dmas)); E("s_barrier")
for pos_ in sorted(k for k in reads_at if k < 0):
    for g in reads_at[pos_]:
        for x in emit_reads(g): E(x)
stats(8)
E(f"v_add_f32 v{vST}, v{vST}, v{vST+1}"); E(f"v_add_f32 v{vST+2}, v{vST+2}, v{vST+3}")
E(f"v_mov_b32 v{vST+1}, v{vST}"); E(f"v_mov_b32 v{vST+3}, v{vST+2}")
E(f"v_permlane32_swap_b32 v{vST}, v{vST+1}"); E(f"v_permlane32_swap_b32 v{vST+2}, v{vST+3}")
E(f"v_add_f32 v{vST}, v{vST}, v{vST+1}"); E(f"v_add_f32 v{vST+2}, v{vST+2}, v{vST+3}")
E(f"v_mul_f32 v{vST}, {f32(1/576)}, v{vST}")
E(f"v_mul_f32 v{vST+2}, {f32(1/576)}, v{vST+2}")
E(f"v_fma_f32 v{vST+2}, -v{vST}, v{vST}, v{vST+2}")
E(f"v_max_f32 v{vST+2}, 0, v{vST+2}")
E(f"v_add_f32 v{vST+2}, {f32(1e-5)}, v{vST+2}")
E(f"v_rsq_f32 v{vRS}, v{vST+2}")
E(f"v_mul_f32_e64 v{vNB}, -v{vST}, v{vRS}")
for x in norm_ops(0): E(x)
STAMP()

dq = deque()
for ch in chunks[2:]:
    if ch.n == 18: dq.append((max(ch.nb - 1, 180), None, [I(x) for x in p2_setup[:5]])); dq.append((0, None, [I(x) for x in p2_setup[5:]]))
    for it in ch.items: dq.append((ch.nb, ch, it))
last_dma = -99
marks = {GA_END: 1, GB_END: 1, P1_END: 1, ATT_END: 1}
nfr = 0
fr_list = [g for g in range(NG) if gaps[g].frag is not None]
for g, G in enumerate(gaps):
    if g in marks: STAMP()
    for s_ in (norm, epi, side):
        lastdl = max([k for k, (nb, dl, _) in enumerate(s_.q) if dl <= g] + [-1])
        for _ in range(lastdl + 1):
            nb, dl, ins = s_.q.popleft()
            assert nb <= g, (s_.name, nb, dl, g, ins)
            for x in ins: E(x)
    if g in bar_at:
        key = bar_at[g]
        if key == 'V': E(WAITLG(*vwr))
        else:
            assert not any(it[1] is key for it in dq), ("late DMA", key.n, g)
            E(WAITVM(*key.dmas))
        E("s_barrier")
    for x in G.pre: E(x)
    if G.frag is not None:
        k = fr_list.index(g)
        if k % 2 == 0 and k + 1 < len(fr_list) and hasattr(gaps[fr_list[k + 1]], 'rd') and fr_list[k + 1] - g <= 2:
            E(WAITLG(*gaps[fr_list[k + 1]].rd))
    E(G.m)
    cost = 0
    for gg in reads_at.get(g, []):
        for x in emit_reads(gg):
            E(x)
            if x.kind != 'dsr': cost += 1
    if not reads_at.get(g): cost -= 2
    for x in G.post: E(x); cost += x.cost
    while dq and dq[0][0] <= g:
        isd = dq[0][2][0].kind == 'dma'
        if isd and g - last_dma < OPT['pace'] and not (g >= GB_END and g < ATT_END): break
        if cost >= G.budget + (1 if isd else 0) and not (GB_END <= g < ATT_END): break
        _, chx, ins = dq.popleft()
        for x in ins: E(x); cost += x.cost
        if isd: last_dma = g; chx.lastg = g
        break
    for s_ in (norm, side, epi):
        while s_.q and s_.q[0][0] <= g and cost < G.budget:
            _, _, ins = s_.q.popleft()
            for x in ins: E(x); cost += x.cost
assert not dq and not norm.q and not epi.q, (len(dq), len(norm.q), len(epi.q))
while side.q:
    for x in side.q.popleft()[2]: E(x)
STAMP()
o, pst[8] = p2_epi(8)
for it in o:
    for x in it: E(x)
E(f"buffer_load_dwordx2 {vr(vFL, 2)}, v{vFR}, {srd(SWS)}, 0 offen sc1")
o4, mm4, fin4 = red_comp(4, 0)
for it in o4 + mm4 + fin4:
    for x in it: E(x)
for x in poll_check('r5', 7, vFR): E(x)
for it in red_loads(5, 1):
    for x in it: E(x)
for x in publish(10, pst[8]): E(x)
STAMP()
E(f"buffer_load_dwordx2 {vr(vFL, 2)}, v{vFR}, {srd(SWS)}, 0 offen sc1")
o5, mm5, fin5 = red_comp(5, 1)
for it in o5 + mm5 + fin5:
    for x in it: E(x)
for x in poll_check('r8', 10, vFR): E(x)
STAMP()
for p, k in ((6, 0), (7, 2), (8, 3)):
    for it in red_loads(p, k):
        for x in it: E(x)
fins = []
for p, k in ((6, 0), (7, 2), (8, 3)):
    o, mm, fin = red_comp(p, k)
    for it in o + mm:
        for x in it: E(x)
    fins += fin
for it in fins:
    for x in it: E(x)
if OPT['timing']:
    E("s_waitcnt vmcnt(0)"); STAMP()
    E(f"s_lshl_b32 s{sA}, s2, 10"); E(f"s_lshl_b32 s{sB}, s{sW}, 8"); E(f"s_add_u32 s{sA}, s{sA}, s{sB}"); E(f"s_add_u32 s{sA}, s{sA}, {DBGW}")
    E(f"v_lshlrev_b32 v{vT0}, 2, v{vL}")
    E(f"buffer_store_dword v11, v{vT0}, {srd(SWS)}, s{sA} offen")
E("L_end:")
E("s_endpgm")

seen = set()
for x in prog:
    if x.kind in ('pvm', 'plg'):
        for t in x.target: assert id(t) in seen, ("wait on unissued op", t)
    seen.add(id(x))
p1 = insert_waits(prog)
p2, nn = insert_nops(p1)
hdr = open('parallel_sum__sliding_block__dense_activation_relu__prompt.s.ref').read().split('\n')
hdr = [l for l in hdr if l.startswith(';') and '@launch' not in l]
txt = "\n".join(hdr) + f"\n; @launch grid=(256,1,1) block=(256,1,1) lds={LDS_TOTAL}\n"
txt += f""".amdgcn_target "amdgcn-amd-amdhsa--gfx950"
.text
.globl {KNAME}
.p2align 8
.type {KNAME},@function
{KNAME}:
"""
txt += render(p2) + "".join(slow_paths) + "L_code_end:\n  s_endpgm\n.fill 64, 4, 0xbf800000\n"
txt += f""".section .rodata,"a"
.p2align 6
.amdhsa_kernel {KNAME}
  .amdhsa_next_free_vgpr 512
  .amdhsa_next_free_sgpr 102
  .amdhsa_accum_offset 256
  .amdhsa_group_segment_fixed_size 0
  .amdhsa_kernarg_size 72
  .amdhsa_user_sgpr_count 2
  .amdhsa_user_sgpr_kernarg_segment_ptr 1
  .amdhsa_system_sgpr_workgroup_id_x 1
.end_amdhsa_kernel
"""
open(sys.argv[1], 'w').write(txt)
from collections import Counter
cn = Counter(x.kind for x in p2)
print("instrs", len(p2), "nop states", nn, dict(cn), file=sys.stderr)
print("chunks (n, nb, last dma gap, barrier gap)", [(c.n, getattr(c, 'nb', None), getattr(c, 'lastg', None), first_use[c] - PD) for c in chunks], file=sys.stderr)
```

```python
import sys, math, struct
from collections import deque
from asmlib import *

KNAME = "parallel_sum__sliding_block__dense_activation_relu__prompt_kernel"
OPT = dict(dbgt=0, timing=False, dump=None, PD=6, budget=4, pace=3)
for a in sys.argv[2:]:
    k, v = a.split('=')
    OPT[k] = (v if k == 'dump' else int(v))

def f32(x): return "0x%08x" % struct.unpack('<I', struct.pack('<f', x))[0]

FBASE, EBASE, KVBASE, PBASE = 0, 0x20000, 0x40000, 0x800000
KVB = 4864
WS_USED = 0x2C00000
DBGW = 0x3000000
WS_REC = 0x4000000 if (OPT['timing'] or OPT['dump']) else WS_USED
OOB = 0x80000000
THI = 0x5bd1e995
LDS_TOTAL = 163840
XS = 81920
GA_KS, GA_CH = 8576, 34304
GB_KS, GB_CH = 5312, 21248
IMG = 4288
VB = 133120
P2A, P2B = 20480, 21504
SX, SQ, S1, S2, SO, SOUT, SWS, SDB, SCODE = 4, 8, 12, 16, 20, 24, 28, 32, 36
def srd(b): return f"s[{b}:{b+3}]"
sI, sJ, sW, sROT = 58, 59, 60, 61
sRT = 62
sKV = 71
sXB, sQB, sHA, sHB, sSG = 80, 81, 82, 83, 84
sW2A, sW2B, sWO5, sWO6 = 85, 86, 87, 88
sKVW, sFW, sPB = 89, 90, 91
sT, sTH = 92, 93
sM0X = 94
sLO = 96
sA, sB, sC, sD = 40, 41, 42, 43
sDM = 44
sM0A, sM0B, sM0C, sM0D = 46, 47, 48, 49
sM0E = 50
sCK = 52
sRS = 54
sTS = 98
vL, vT0, vT1, vT2, vT3_ = 1, 2, 3, 4, 5
vA, vT3, vS, vP0, vP1 = 6, 7, 8, 9, 10
vDQ = 12
vDH = 16
vDS = 20
vL16, vKX, vVC = 21, 22, 23
vRS, vNB = 24, 25
vFL = 26
vH1 = 28
vQ = 60
vR = 76
vE = 96
XN = 112
vXD = 28
vXR = 32
vST = 36
vH2 = 112
vSB = 152
vM0, vM8 = 216, 232
aT = 0
aG = 128
aF = 208
aVS = 72
aSEL = 252
aK = 0
aO = 72
aRD = 104

prog = []
def E(t):
    x = t if isinstance(t, I) else I(t)
    prog.append(x); return x
def vr(b, n=4): return f"v[{b}:{b+n-1}]"
def ar(b, n=4): return f"a[{b}:{b+n-1}]"

slow_paths = []
nstamp = [0]
def stamp_ins():
    k = nstamp[0]; nstamp[0] += 1
    return RAW(f"  s_memtime s[{sTS}:{sTS+1}]\n  s_waitcnt lgkmcnt(0)\n  v_writelane_b32 v11, s{sTS}, {k}\n  s_nop 4")
def STAMP():
    if OPT['timing']:
        E("s_waitcnt lgkmcnt(0)"); E(stamp_ins())

E(f"s_cmp_ge_u32 s2, 256")
E(f"s_cbranch_scc1 L_end")
E(f"s_load_dwordx16 s[40:55], s[0:1], 0")
E(f"s_load_dwordx2 s[56:57], s[0:1], 64")
if OPT['timing']:
    E("v_mov_b32 v11, 0"); STAMP()
    if OPT['dbgt']: E(RAW("  s_memrealtime s[98:99]\n  s_waitcnt lgkmcnt(0)\n  v_writelane_b32 v11, s98, 13\n  s_nop 4"))
E(RAW(f"  s_getpc_b64 s[{SCODE}:{SCODE+1}]\nL_pc:\n  s_mov_b32 s{SCODE+2}, L_code_end-L_pc\n  s_mov_b32 s{SCODE+3}, 0x00020000"))
E(f"v_lshlrev_b32 v{vT0}, 7, v0")
E(f"buffer_load_dword v{vE}, v{vT0}, {srd(SCODE)}, 0 offen")
E(f"v_add_u32 v{vT0}, 0x8000, v{vT0}")
E(f"buffer_load_dword v{vE+1}, v{vT0}, {srd(SCODE)}, 0 offen")
E(f"v_lshrrev_b32 v{vT1}, 6, v0")
E(f"v_and_b32 v{vL}, 63, v0")
E(f"v_readfirstlane_b32 s{sW}, v{vT1}")
E(f"s_and_b32 s100, s2, 3")
E(f"s_lshl_b32 s100, s100, 2")
E(f"s_bfe_u32 s101, s2, 0x20003")
E(f"s_add_u32 s{sJ}, s100, s101")
E(f"s_bfe_u32 s100, s2, 0x10002")
E(f"s_lshl_b32 s100, s100, 3")
E(f"s_lshr_b32 s{sROT}, s2, 5")
E(f"s_add_u32 s{sI}, s100, s{sROT}")
for c in range(9):
    E(f"s_add_u32 s100, s{sROT}, {c}")
    E(f"s_sub_u32 s101, s100, 9")
    E(f"s_cmp_ge_u32 s100, 9")
    E(f"s_cselect_b32 s100, s101, s100")
    E(f"s_lshl_b32 s{sRT+c}, s100, 7")
E(f"v_lshrrev_b32 v{vT0}, 3, v{vL}")
E(f"v_lshrrev_b32 v{vT1}, 4, v{vL}")
E(f"v_and_b32 v{vT2}, 7, v{vL}")
E(f"v_xor_b32 v{vT2}, v{vT2}, v{vT1}")
E(f"v_lshlrev_b32 v{vT2}, 4, v{vT2}")
E(f"v_mul_u32_u24 v{vT0}, 1152, v{vT0}")
E(f"v_add_u32 v{vXD}, v{vT0}, v{vT2}")
E(f"v_xor_b32 v{vXD+1}, 64, v{vXD}")
E(f"v_add_u32 v{vXD+2}, {2*8192}, v{vXD}")
E(f"v_add_u32 v{vXD+3}, {3*8192}, v{vXD+1}")
E(f"v_add_u32 v{vXD+1}, 8192, v{vXD+1}")
E(f"s_lshl_b32 s100, s{sI}, 2")
E(f"s_add_u32 s100, s100, s{sW}")
E(f"s_mul_i32 s{sXB}, s100, {32*1152}")
E(f"s_mul_i32 s{sM0X}, s{sW}, 20480")
E(f"s_add_u32 s{sM0X}, s{sM0X}, {XS}")
E("s_waitcnt lgkmcnt(0)")
def mk_srd(b, p, n):
    E(f"s_mov_b32 s{b}, s{p}"); E(f"s_mov_b32 s{b+1}, s{p+1}"); E(f"s_mov_b32 s{b+2}, {n}"); E(f"s_mov_b32 s{b+3}, 0x00020000")
mk_srd(SX, 40, 2048*1152)

def x_dma(cb):
    hs = []
    E(f"s_add_u32 m0, s{sM0X}, {(cb % 5)*4096}")
    E(f"s_add_u32 s100, s{sXB}, s{sRT+cb}")
    for g in range(4):
        hs.append(E(f"buffer_load_dwordx4 v{vXD+g}, {srd(SX)}, s100 offen offset:{g*1024} lds"))
    return hs
mk_srd(SWS, 56, WS_REC)
E(f"v_mov_b32 v{vFL}, {EBASE}")
E(RAW(f"""  s_or_b32 s101, s2, s{sW}
  s_cmp_lg_u32 s101, 0
  s_cbranch_scc1 L_noep1
  buffer_load_dword v{vFL+1}, v{vFL}, {srd(SWS)}, 0 offen sc1
L_noep1:"""))
xh = {}
for cb in range(5): xh[cb] = x_dma(cb)
mk_srd(SQ, 42, 576*3456); mk_srd(SO, 44, 576*1152); mk_srd(S1, 48, 576*9216); mk_srd(S2, 50, 4608*1152)
mk_srd(SOUT, 52, 2048*1152); mk_srd(SDB, 54, 256)
E(f"v_lshrrev_b32 v{vT0}, 4, v{vL}")
E(f"v_and_b32 v{vT1}, 15, v{vL}")
E(f"v_mul_u32_u24 v{vT2}, {4*9216}, v{vT0}")
E(f"v_lshl_add_u32 v{vDH}, v{vT1}, 4, v{vT2}")
for n in range(1, 4): E(f"v_add_u32 v{vDH+n}, {n*(9216-1088)}, v{vDH}")
E(f"v_min_u32 v{vT1}, 14, v{vT1}")
E(f"v_mul_u32_u24 v{vT2}, 13, v{vT1}")
E(f"v_lshrrev_b32 v{vT2}, 6, v{vT2}")
E(f"v_mul_u32_u24 v{vT3_}, 5, v{vT2}")
E(f"v_sub_u32 v{vT1}, v{vT1}, v{vT3_}")
E(f"v_lshlrev_b32 v{vT1}, 4, v{vT1}")
E(f"v_min_u32 v{vT1}, 56, v{vT1}")
E(f"v_mul_u32_u24 v{vT3_}, 1152, v{vT2}")
E(f"v_add_u32 v{vT1}, v{vT1}, v{vT3_}")
E(f"s_mul_i32 s{sA}, s{sJ}, 72")
E(f"s_xor_b32 s{sB}, s{sJ}, 1")
E(f"s_mul_i32 s{sC}, s{sB}, 72")
E(f"v_mov_b32 v{vT3_}, s{sC}")
E(f"v_mov_b32 v{vDS}, s{sA}")
E(f"v_cmp_eq_u32 vcc, 0, v{vT2}")
E(f"v_cndmask_b32 v{vT3_}, v{vT3_}, v{vDS}, vcc")
E(f"v_add_u32 v{vT1}, v{vT1}, v{vT3_}")
E(f"v_mul_u32_u24 v{vT2}, {4*3456}, v{vT0}")
E(f"v_add_u32 v{vDQ}, v{vT1}, v{vT2}")
for n in range(1, 4): E(f"v_add_u32 v{vDQ+n}, {n*(3456-1088)}, v{vDQ}")
E(f"v_lshrrev_b32 v{vT0}, 2, v{vL}")
E(f"v_mul_u32_u24 v{vT0}, 9216, v{vT0}")
E(f"v_and_b32 v{vT1}, 3, v{vL}")
E(f"v_lshl_add_u32 v{vDS}, v{vT1}, 4, v{vT0}")
E(f"s_mul_i32 s{sQB}, s{sW}, {16*3456}")
E(f"s_and_b32 s{sA}, s{sJ}, 1")
E(f"s_mul_i32 s{sC}, s{sJ}, 288")
E(f"s_lshl_b32 s{sD}, s{sA}, 5")
E(f"s_add_u32 s{sD}, s{sD}, s{sC}")
E(f"s_xor_b32 s{sA}, s{sA}, 1")
E(f"s_lshl_b32 s{sA}, s{sA}, 8")
E(f"s_add_u32 s{sC}, s{sC}, s{sA}")
E(f"s_mul_i32 s{sA}, s{sW}, {16*9216}")
E(f"s_lshl_b32 s{sHA}, s{sD}, 1")
E(f"s_add_u32 s{sHA}, s{sHA}, s{sA}")
E(f"s_add_u32 s{sHB}, s{sHA}, 256")
E(f"s_lshl_b32 s{sSG}, s{sC}, 1")
E(f"s_add_u32 s{sSG}, s{sSG}, s{sA}")
E(f"s_mul_i32 s{sM0A}, s{sW}, {GA_KS}")
E(f"s_mul_i32 s{sM0B}, s{sW}, {GB_KS}")
E(f"s_mul_i32 s{sM0C}, s{sW}, 5120")
E(f"s_lshl_b32 s{sM0D}, s{sW}, 12")
E(f"s_lshl_b32 s{sM0E}, s{sW}, 10")
E(f"s_mul_i32 s{sA}, s{sW}, 40")
E(f"s_add_u32 s{sA}, s{sA}, s{sD}")
E(f"s_mul_i32 s{sW2A}, s{sA}, 1152")
E(f"s_lshl_b32 s{sA}, s{sW}, 5")
E(f"s_add_u32 s{sA}, s{sA}, s{sD}")
E(f"s_add_u32 s{sA}, s{sA}, 160")
E(f"s_cmp_eq_u32 s{sW}, 3")
E(f"s_cselect_b32 s{sA}, s{sC}, s{sA}")
E(f"s_mul_i32 s{sW2B}, s{sA}, 1152")
E(f"s_mul_i32 s{sC}, s{sJ}, 36")
E(f"s_lshl_b32 s{sA}, s{sW}, 3")
E(f"s_lshr_b32 s{sD}, s{sW}, 1")
E(f"s_lshl_b32 s{sD}, s{sD}, 2")
E(f"s_add_u32 s{sA}, s{sA}, s{sD}")
E(f"s_add_u32 s{sA}, s{sA}, s{sC}")
E(f"s_mul_i32 s{sWO5}, s{sA}, 1152")
E(f"s_add_u32 s{sC}, s{sC}, 16")
E(f"s_mul_i32 s{sWO6}, s{sC}, 1152")

class Chunk: pass
chunks = []
def add_chunk(kind, c, size):
    ch = Chunk(); ch.kind = kind; ch.c = c; ch.size = size; ch.n = len(chunks); ch.dmas = []; chunks.append(ch); return ch
for c in range(9): add_chunk('ga', c, GA_CH).base = (c % 4) * GA_CH
pos = GA_CH
for c in range(9):
    ch = add_chunk('gb', c, GB_CH)
    if pos + GB_CH > VB: pos = 0
    ch.base = pos; pos += GB_CH
for c in range(9):
    for half, sz in (('a', P2A), ('b', P2B)):
        ch = add_chunk('p2' + half, c, sz)
        lim = VB if (2*c + (half == 'b')) < 6 else LDS_TOTAL
        if pos + sz > lim: pos = 0
        ch.base = pos; pos += sz

def dma_items(ch):
    c, b = ch.c, ch.base
    it = []
    def grp(m0w, m0c, soff_ins, srdb, voffs):
        it.append([I(f"s_add_u32 m0, s{m0w}, {m0c}") if m0w else I(f"s_mov_b32 m0, {m0c}")] + [I(s) for s in soff_ins])
        for (v, imm) in voffs:
            d = I(f"buffer_load_dwordx4 v{v}, {srd(srdb)}, s{sDM} offen offset:{imm} lds")
            ch.dmas.append(d); it.append([d])
    four = lambda v, st: [(v + n, n * st) for n in range(4)]
    if ch.kind == 'ga':
        grp(sM0A, b, [f"s_mul_i32 s{sDM}, s{sRT+c}, 1728", f"s_add_u32 s{sDM}, s{sDM}, s{sQB}"], SQ, four(vDQ, 1088))
        grp(sM0A, b + IMG, [f"s_mul_i32 s{sDM}, s{sRT+c}, 4608", f"s_add_u32 s{sDM}, s{sDM}, s{sHA}"], S1, four(vDH, 1088))
    elif ch.kind == 'gb':
        grp(sM0B, b, [f"s_mul_i32 s{sDM+1}, s{sRT+c}, 4608", f"s_add_u32 s{sDM}, s{sDM+1}, s{sHB}"], S1, four(vDH, 1088))
        grp(sM0B, b + IMG, [f"s_add_u32 s{sDM}, s{sDM+1}, s{sSG}"], S1, [(vDS, 0)])
    elif ch.kind == 'p2a':
        grp(sM0C, b, [f"s_add_u32 s{sDM}, s{sW2A}, s{sRT+c}"], S2, four(vDQ, 1024))
        grp(sM0C, b + 4096, [f"s_add_u32 s{sDM}, s{sDM}, {32*1152}"], S2, [(vDQ, 0)])
    else:
        grp(sM0D, b, [f"s_add_u32 s{sDM}, s{sW2B}, s{sRT+c}"], S2, four(vDQ, 1024))
        grp(sM0E, b + 16384, [f"s_add_u32 s{sDM}, s{sWO5}, s{sRT+c}"], SO, [(vDQ, 0)])
        grp(None, b + 20480, [f"s_add_u32 s{sDM}, s{sWO6}, s{sRT+c}"], SO, [(vDQ, 0)])
    return it
for ch in chunks: ch.items = dma_items(ch)
def emit_chunk_now(ch):
    for g in ch.items:
        for x in g: E(x)
    ch.items = []
emit_chunk_now(chunks[0])

E(f"v_and_b32 v{vT0}, 31, v{vL}")
E(f"v_lshrrev_b32 v{vT1}, 5, v{vL}")
E(f"v_bfe_u32 v{vT2}, v{vL}, 1, 3")
E(f"v_xor_b32 v{vT2}, v{vT2}, v{vT1}")
E(f"v_lshlrev_b32 v{vT2}, 4, v{vT2}")
E(f"v_lshl_add_u32 v{vT2}, v{vT0}, 7, v{vT2}")
for s in range(4):
    E(f"v_xor_b32 v{vXR+s}, {32*s}, v{vT2}")
    E(f"v_add_u32 v{vXR+s}, s{sM0X}, v{vXR+s}")
E(f"v_lshlrev_b32 v{vL16}, 4, v{vL}")
E(f"s_mov_b32 s{sLO}, -1"); E(f"s_mov_b32 s{sLO+1}, 0")
E(f"v_lshlrev_b32 v{vT2}, 31, v{vT1}")
E(f"v_lshl_add_u32 v{vKX}, v{vT0}, 3, v{vT2}")
E(f"v_add_u32 v{vKX}, 2048, v{vKX}")
E(f"v_lshlrev_b32 v{vVC}, 4, v{vT0}")
E(f"v_add_u32 v{vVC}, 4352, v{vVC}")
E(f"v_bfe_u32 v{vT0}, v{vL}, 2, 2")
E(f"v_bfe_u32 v{vT2}, v{vL}, 4, 1")
E(f"v_and_b32 v{vT3_}, 3, v{vL}")
E(f"v_lshl_add_u32 v{vT3_}, v{vT2}, 2, v{vT3_}")
E(f"v_mul_u32_u24 v{vA}, 1088, v{vT0}")
E(f"v_lshl_add_u32 v{vA}, v{vT1}, 9, v{vA}")
E(f"v_mul_u32_u24 v{vT3}, 40, v{vT3_}")
E(f"v_add3_u32 v{vT3}, v{vT3}, v{vA}, 36")
E(f"v_add_u32 v{vT3}, 36, v{vT3}")
E(f"v_lshl_add_u32 v{vA}, v{vT3_}, 3, v{vA}")
E(f"v_lshl_add_u32 v{vS}, v{vT1}, 3, v{vT0}")
E(f"v_lshlrev_b32 v{vS}, 6, v{vS}")
E(f"v_lshl_add_u32 v{vS}, v{vT3_}, 3, v{vS}")
E(f"v_lshl_add_u32 v{vP0}, v{vT1}, 2, v{vT0}")
E(f"v_lshlrev_b32 v{vP0}, 7, v{vP0}")
E(f"v_lshl_add_u32 v{vP0}, v{vT3_}, 3, v{vP0}")
E(f"v_lshrrev_b32 v{vT2}, 1, v{vT0}")
E(f"v_lshl_add_u32 v{vP0}, v{vT2}, 6, v{vP0}")
E(f"v_xor_b32 v{vP1}, 64, v{vP0}")
E(f"s_lshl_b32 s{sA}, s{sI}, 2")
E(f"s_add_u32 s{sB}, s{sA}, s{sW}")
E(f"s_sub_u32 s{sB}, s{sB}, 8")
E(f"s_lshl_b32 s{sC}, s{sJ}, 6")
for t9 in range(9):
    E(f"s_add_i32 s100, s{sB}, {t9}")
    E(f"s_and_b32 s101, s100, 3")
    E(f"s_add_u32 s101, s101, s{sA}")
    E(f"s_cmp_lt_i32 s100, 0")
    E(f"s_cselect_b32 s100, s101, s100")
    E(f"s_add_u32 s100, s100, s{sC}")
    E(f"s_mul_i32 s100, s100, {KVB}")
    E(f"s_add_u32 s{sKV+t9}, s100, {KVBASE}")
E(f"s_xor_b32 s100, s{sJ}, 1")
E(f"s_lshl_b32 s100, s100, 6")
E(f"s_add_u32 s100, s100, s{sA}")
E(f"s_add_u32 s100, s100, s{sW}")
E(f"s_mul_i32 s100, s100, {KVB}")
E(f"s_add_u32 s{sKVW}, s100, {KVBASE}")
E(f"s_lshl_b32 s100, s{sI}, 4")
E(f"s_add_u32 s100, s100, s{sJ}")
E(f"s_lshl_b32 s100, s100, 2")
E(f"s_add_u32 s100, s100, s{sW}")
E(f"s_lshl_b32 s{sFW}, s100, 7")
E(f"s_mul_i32 s{sPB}, s{sI}, {9*262144}")
E(f"s_add_u32 s{sPB}, s{sPB}, {PBASE}")
E(f"v_and_b32 v{vT0}, 15, v{vL}")
E(f"v_and_b32 v{vT1}, 1, v{vL}")
E(f"v_lshlrev_b32 v{vT1}, 4, v{vT1}")
E(f"v_mov_b32 v{vT2}, 0x3f80")
E(f"v_lshlrev_b32 v{vT2}, v{vT1}, v{vT2}")
E(f"v_lshrrev_b32 v{vT0}, 1, v{vT0}")
for d in range(4):
    E(f"v_cmp_eq_u32 vcc, {d}, v{vT0}")
    E(f"v_cndmask_b32 v{vT1}, 0, v{vT2}, vcc")
    E(f"v_accvgpr_write_b32 a{aSEL+d}, v{vT1}")
for k in range(4): E(f"v_mov_b32 v{vST+k}, 0")

def stats(cb):
    for d in range(16):
        x = XN + 16*cb + d
        E(f"v_dot2c_f32_bf16 v{vST + (d & 1)}, 0x3f803f80, v{x}")
        E(f"v_dot2c_f32_bf16 v{vST + 2 + (d & 1)}, v{x}, v{x}")

last_rd = None
for cb in range(9):
    E(WAITVM(*xh[cb]))
    rds = [E(f"ds_read_b128 {vr(XN + 16*cb + 4*s)}, v{vXR+s} offset:{(cb % 5)*4096}") for s in range(4)]
    if cb == 0:
        E(RAW(f"""  s_or_b32 s101, s2, s{sW}
  s_cmp_lg_u32 s101, 0
  s_cbranch_scc1 L_noep2
  v_and_b32 v{vFL+1}, -16, v{vFL+1}
  v_add_u32 v{vFL+1}, 16, v{vFL+1}
  buffer_store_dword v{vFL+1}, v{vFL}, {srd(SWS)}, 0 offen sc1
  v_mov_b32 v{vT0}, 0
  v_or_b32 v{vT1}, 1, v{vFL+1}
  buffer_store_dword v{vT1}, v{vT0}, {srd(SDB)}, 0 offen sc1
  s_nop 1
L_noep2:"""))
    if cb >= 1: stats(cb - 1)
    if cb + 5 <= 8:
        E(WAITLG(*rds)); xh[cb + 5] = x_dma(cb + 5)
    if cb == 3: emit_chunk_now(chunks[1])
    last_rd = rds
E(WAITLG(*last_rd))
STAMP()

class Gap:
    def __init__(s, m): s.m = m; s.pre = []; s.post = []; s.frag = None; s.chunk = None; s.budget = OPT['budget']
gaps = []
basecur = {vA: 0, vT3: 0, vS: 0, vP0: 0, vP1: 0}
def add_mfma(text, frag=None, chunk=None):
    g = Gap(None); g.text = text; g.frag = frag; g.chunk = chunk; gaps.append(g); return len(gaps) - 1

def mf(D, A, B, C): return f"v_mfma_f32_32x32x16_bf16 {D}, {A}, {B}, {C}"
for c in range(9):
    ch = chunks[c]
    for s in range(4):
        ks = 4*c + s
        for T in range(8):
            off = ch.base + s*GA_KS
            if T < 3: fr = (vA, off + 80*T, 256)
            elif T == 3: fr = (vT3, off, 256)
            else: fr = (vA, off + IMG + 64*(T-4), 256)
            D = ar(aT + 16*T, 16)
            add_mfma(lambda A, D=D, ks=ks: mf(D, A, vr(XN + 4*ks), D if ks else "0"), fr, ch)
GA_END = len(gaps)
for c in range(9):
    ch = chunks[9 + c]
    for s in range(4):
        ks = 4*c + s
        for T in range(5):
            off = ch.base + s*GB_KS
            fr = (vA, off + 64*T, 256) if T < 4 else (vS, off + IMG, 256)
            D = ar(aG + 16*T, 16)
            add_mfma(lambda A, D=D, ks=ks: mf(D, A, vr(XN + 4*ks), D if ks else "0"), fr, ch)
GB_END = len(gaps)
TORD = [1, 2, 3, 4, 5, 6, 7, 0, 8]
steps = [(h, t) for h in range(2) for t in TORD]
def Kf(h, t): return ar(aK + 36*h + 4*t)
def Q1(h): return vr(vQ + 4*h)
def Q2(h): return vr(vQ + 8 + 4*h)
P1 = []
for u, (h, t) in enumerate(steps):
    S = vr(vSB + 16*(u % 3), 16)
    C = vr(vM0, 16) if t == 0 else (vr(vM8, 16) if t == 8 else "0")
    a = add_mfma(mf(S, Kf(h, t), Q1(h), C))
    b = add_mfma(mf(S, vr(vR + 2*t), Q2(h), S))
    P1.append((a, b))
P1_END = len(gaps)
vCM = vE
vVA, vVBb = 2, 3
basecur[vVA] = 0; basecur[vVBb] = 0
P2s = []
NS = len(steps)
for u in range(NS + 2):
    ent = {}
    if u < NS:
        h, t = steps[u]
        S = vr(vSB + 16*(u % 4), 16)
        ent['qa'] = add_mfma(mf(S, Kf(h, t), Q1(h), S if t in (0, 8) else vr(vCM, 16)))
        ent['qb'] = add_mfma(mf(S, vr(vR + 2*t), Q2(h), S))
    if u >= 2:
        h, t = steps[u - 2]
        Pb = vSB + 16*((u - 2) % 4)
        O = ar(aO + 16*h, 16)
        first = (TORD.index(t) == 0)
        for s in range(2):
            fr = (vVA if h == 0 else vVBb, (32*t + 16*s) * 80, 640)
            ent['pv%d' % s] = add_mfma(lambda A, O=O, Pb=Pb, s=s, first=first: mf(O, A, vr(Pb + 4*s), "0" if (first and s == 0) else O), fr, 'V')
    P2s.append(ent)
ATT_END = len(gaps)
vOX = vQ
vPK = 232
def hfrag(ks):
    if ks < 8: return vr(vH1 + 4*ks)
    if ks < 18: return vr(vH2 + 4*(ks - 8))
    return vr(vOX + 4*(ks - 18))
PAIR0 = []
for c in range(9):
    PAIR0.append(len(gaps))
    for ks in range(21):
        ch = chunks[18 + 2*c + (ks >= 10)]
        off = ch.base + (ks if ks < 10 else ks - 10) * 2048
        for T in range(2):
            D = vr(vSB + 32*(c & 1) + 16*T, 16)
            add_mfma(lambda A, D=D, ks=ks: mf(D, A, hfrag(ks), D if ks else "0"), (vP0 + T, off, 1024 if ks < 20 else None), ch)
NG = len(gaps)

PD = OPT['PD']
first_use, last_use = {}, {}
for g, G in enumerate(gaps):
    if G.chunk is not None:
        first_use.setdefault(G.chunk, g); last_use[G.chunk] = g
bar_at = {}
for ch in chunks[1:]:
    bar_at[first_use[ch] - PD] = ch
BV = first_use['V'] - PD
assert BV not in bar_at
bar_at[BV] = 'V'
bars = sorted(bar_at)
def release_gap(key):
    return min(b for b in bars if b > last_use[key])
for ch in chunks[2:]:
    nb = 0
    for o in chunks[:ch.n]:
        if o.base < ch.base + ch.size and ch.base < o.base + o.size: nb = max(nb, release_gap(o))
    if ch.base + ch.size > VB and ch.kind.startswith('p2'): nb = max(nb, release_gap('V'))
    if ch.kind == 'p2a' and ch.c == 0: pass
    ch.nb = nb
V_NB = max(release_gap(o) for o in chunks[:18] if o.base + o.size > VB)

fragno = 0
reads_at = {}
for g, G in enumerate(gaps):
    if G.frag is None:
        G.m = I(G.text); continue
    b = aF + 4*(fragno % 8); fragno += 1
    G.fb = b
    G.m = I(G.text(ar(b)))
    pos_ = g - PD
    if G.chunk == 'V': pos_ = max(pos_, BV)
    reads_at.setdefault(pos_, []).append(g)
def emit_reads(g):
    G = gaps[g]; bv, off, d = G.frag
    outl = []
    hi = off + (d or 0)
    if off < basecur[bv] or hi - basecur[bv] > 65535 - 8:
        nbase = off & ~0x7ff
        outl.append(I(f"v_add_u32 v{bv}, {(nbase - basecur[bv]) & 0xffffffff:#x}, v{bv}"))
        basecur[bv] = nbase
    r0 = I(f"ds_read_b64_tr_b16 {ar(G.fb, 2)}, v{bv} offset:{off - basecur[bv]}")
    outl.append(r0); G.rd = [r0]
    if d is not None:
        r1 = I(f"ds_read_b64_tr_b16 {ar(G.fb + 2, 2)}, v{bv} offset:{off + d - basecur[bv]}")
        outl.append(r1); G.rd.append(r1)
    return outl

class Stream:
    def __init__(s, name, maxper=99): s.q = deque(); s.name = name; s.maxper = maxper
    def add(s, ins, nb=0, dl=10**9):
        ins = [x if isinstance(x, I) else I(x) for x in (ins if isinstance(ins, list) else [ins])]
        s.q.append((nb, dl, ins)); return ins[-1]
norm, epi, side = Stream('norm'), Stream('epi'), Stream('side')

def norm_ops(ks):
    o = []
    for d in range(4):
        x = XN + 4*ks + d; t = vE + 2*((4*ks + d) % 4)
        o += [f"v_lshlrev_b32 v{t}, 16, v{x}", f"v_and_b32 v{t+1}, 0xffff0000, v{x}"]
    for d in range(4):
        x = XN + 4*ks + d; t = vE + 2*((4*ks + d) % 4)
        o += [f"v_fma_f32 v{t}, v{t}, v{vRS}, v{vNB}", f"v_fma_f32 v{t+1}, v{t+1}, v{vRS}, v{vNB}"]
    for d in range(4):
        x = XN + 4*ks + d; t = vE + 2*((4*ks + d) % 4)
        o += [f"v_cvt_pk_bf16_f32 v{x}, v{t}, v{t+1}"]
    return o
for ks in range(1, 36):
    for x in norm_ops(ks): norm.add(x, nb=max(0, 8*ks - 24), dl=8*ks - 1)

def poll_check(name, need, vaddr, soff="0"):
    chk = [f"s_add_u32 s{sA}, s{sT}, {need}",
           f"v_subrev_u32 v{vFL}, s{sA}, v{vFL}",
           f"v_cmp_eq_u32 s[{sCK}:{sCK+1}], s{sTH}, v{vFL+1}",
           f"v_cmp_ge_u32 vcc, {15 - need}, v{vFL}",
           f"s_and_b64 vcc, vcc, s[{sCK}:{sCK+1}]",
           f"s_cmp_eq_u64 vcc, -1"]
    slow_paths.append(f"""L_slow_{name}:
  s_mov_b32 s{sD}, 0
L_spin_{name}:
  s_sleep 2
  buffer_load_dwordx2 v[{vFL}:{vFL+1}], v{vaddr}, {srd(SWS)}, {soff} offen sc1
  s_waitcnt vmcnt(0)
  """ + "\n  s_nop 1\n  ".join(chk) + f"""
  s_cbranch_scc1 L_back_{name}
  s_add_u32 s{sD}, s{sD}, 1
  s_cmp_lt_u32 s{sD}, 0x40000
  s_cbranch_scc1 L_spin_{name}
  s_branch L_back_{name}
""")
    return [I(x) for x in chk] + [I(f"s_cbranch_scc0 L_slow_{name}"), I(f"L_back_{name}:")]
side.add([f"v_mov_b32 v{vT0}, 0", f"buffer_load_dword v{vFL}, v{vT0}, {srd(SDB)}, 0 offen sc1"], nb=100)
slow_paths.append(f"""L_slow_tag:
  s_mov_b32 s{sD}, 0
L_spin_tag:
  s_sleep 2
  buffer_load_dword v{vFL}, v{vT0}, {srd(SDB)}, 0 offen sc1
  s_waitcnt vmcnt(0)
  v_readfirstlane_b32 s{sT}, v{vFL}
  s_nop 1
  s_cmp_lg_u32 s{sT}, 0
  s_cbranch_scc1 L_back_tag
  s_add_u32 s{sD}, s{sD}, 1
  s_cmp_lt_u32 s{sD}, 0x40000
  s_cbranch_scc1 L_spin_tag
  s_branch L_back_tag
""")
side.add([f"v_readfirstlane_b32 s{sT}, v{vFL}", f"s_cmp_lg_u32 s{sT}, 0", "s_cbranch_scc0 L_slow_tag", "L_back_tag:",
          f"s_and_b32 s{sT}, s{sT}, -16", f"s_xor_b32 s{sTH}, s{sT}, {THI:#x}"], nb=160)

p2_setup = [f"v_lshrrev_b32 v{vDQ+1}, 3, v{vL}", f"v_bfe_u32 v{vDQ+2}, v{vL}, 4, 1", f"v_lshlrev_b32 v{vDQ+2}, 2, v{vDQ+2}",
            f"v_and_b32 v{vDQ+3}, 7, v{vL}", f"v_xor_b32 v{vDQ+3}, v{vDQ+3}, v{vDQ+2}", f"v_mul_u32_u24 v{vDQ+1}, 1152, v{vDQ+1}",
            f"v_lshl_add_u32 v{vDQ}, v{vDQ+3}, 4, v{vDQ+1}"] + [f"v_add_u32 v{vDQ+n}, {n*8192}, v{vDQ}" for n in range(1, 4)]

e0 = GA_END + 2
CSC = math.log2(math.e) / math.sqrt(18.0)
def rd_cvt(acc, n, dst, scale=None, relu=False, nb=e0, tb=vE, dl=10**9):
    for k0 in range(0, n, 8):
        m = min(8, n - k0)
        for k in range(m): epi.add(f"v_accvgpr_read_b32 v{tb+k}, a{acc+k0+k}", nb=nb, dl=dl)
        if scale:
            for k in range(m): epi.add(f"v_mul_f32 v{tb+k}, {scale}, v{tb+k}", nb=nb, dl=dl)
        for k in range(0, m, 2): epi.add(f"v_cvt_pk_bf16_f32 v{dst+(k0+k)//2}, v{tb+k}, v{tb+k+1}", nb=nb, dl=dl)
        if relu:
            for k in range(0, m, 2): epi.add(f"v_pk_max_i16 v{dst+(k0+k)//2}, v{dst+(k0+k)//2}, 0", nb=nb, dl=dl)
LO = f"s[{sLO}:{sLO+1}]"
kP, x8, vP_ = vH1, vH1 + 8, vH1 + 16
rd_cvt(aT + 16, 16, kP)
rd_cvt(aT + 48 + 4, 8, x8)
st = []
st.append(epi.add(f"buffer_store_dwordx4 {vr(kP)}, v{vL16}, {srd(SWS)}, s{sKVW} offen sc1", nb=e0))
epi.add(f"v_mov_b32 v{x8+6}, v{kP+4}", nb=e0); epi.add(f"v_mov_b32 v{x8+7}, v{x8+1}", nb=e0)
epi.add(f"v_cndmask_b32_e64 v{kP+4}, v{kP+4}, v{x8}, {LO}", nb=e0)
epi.add(f"v_mov_b32 v{x8+4}, 0x3f803f80", nb=e0); epi.add(f"v_mov_b32 v{x8+5}, 0x3f803f80", nb=e0)
st.append(epi.add(f"buffer_store_dwordx4 {vr(kP+4)}, v{vL16}, {srd(SWS)}, s{sKVW} offen offset:1024 sc1", nb=e0))
st.append(epi.add(f"buffer_store_dwordx2 {vr(x8+6, 2)}, v{vKX}, {srd(SWS)}, s{sKVW} offen sc1", nb=e0))
rd_cvt(aT + 32, 16, vP_)
epi.add(f"v_lshlrev_b32 v{vT1}, 26, v{vL}", nb=e0)
epi.add(f"v_and_b32 v{vT1}, {OOB:#x}, v{vT1}", nb=e0)
epi.add(f"v_add_u32 v{vT1}, v{vT1}, v{vVC}", nb=e0)
st.append(epi.add(f"buffer_store_dwordx4 {vr(vP_)}, v{vL16}, {srd(SWS)}, s{sKVW} offen offset:2304 sc1", nb=e0))
st.append(epi.add(f"buffer_store_dwordx4 {vr(vP_+4)}, v{vL16}, {srd(SWS)}, s{sKVW} offen offset:3328 sc1", nb=e0))
st.append(epi.add(f"buffer_store_dwordx4 {vr(x8+2)}, v{vT1}, {srd(SWS)}, s{sKVW} offen sc1", nb=e0))
rd_cvt(aT, 16, vQ, scale=f32(CSC))
rd_cvt(aT + 48, 4, vQ + 14, scale=f32(CSC))
epi.add(f"v_mov_b32 v{vQ+13}, 0x3f80", nb=e0)
epi.add(f"v_cndmask_b32_e64 v{vQ+8}, v{vQ+13}, v{vQ+4}, {LO}", nb=e0)
epi.add(f"v_cndmask_b32_e64 v{vQ+4}, v{vQ+4}, v{vQ+14}, {LO}", nb=e0)
epi.add(f"v_cndmask_b32_e64 v{vQ+13}, v{vQ+13}, v{vQ+15}, {LO}", nb=e0)
for k in (9, 10, 11, 12, 14, 15): epi.add(f"v_mov_b32 v{vQ+k}, 0", nb=e0)
KVPOLL = GA_END + 118
kv0 = KVPOLL + 16
for T in range(4): rd_cvt(aT + 64 + 16*T, 16, vH1 + 8*T, relu=True, dl=kv0 - 1)

vFW, vFK, vFR = 4, 5, 0
def publish(count, waits):
    return [WAITVM(*waits), I(f"s_add_u32 s{sB}, s{sT}, {count}"), I(f"v_mov_b32 v{vFL2}, s{sB}"),
            I(f"buffer_store_dwordx2 {vr(vFL2, 2)}, v{vFW}, {srd(SWS)}, s{sFW} offen sc1")]
vFL2 = 24
side.add([f"v_cmp_eq_u32 vcc, 0, v{vL}", f"v_mov_b32 v{vFW}, {OOB:#x}", f"v_mov_b32 v{vFL2+1}, s{sTH}", f"v_cndmask_b32_e64 v{vFW}, v{vFW}, 0, vcc"], nb=GA_END + 1)
KVPUB = GA_END + 70
side.add(publish(1, st), nb=KVPUB)
side.add([f"v_bfe_u32 v{vT0}, v{vL}, 2, 2", f"v_min_u32 v{vT0}, 2, v{vT0}", f"s_sub_u32 s{sA}, s{sI}, 2", f"v_add_u32 v{vT0}, s{sA}, v{vT0}"], nb=KVPUB)
side.add([f"v_mov_b32 v{vT1}, s{sI}", f"v_cmp_gt_i32 vcc, 0, v{vT0}", f"s_xor_b32 s{sA}, s{sJ}, 1", f"s_lshl_b32 s{sA}, s{sA}, 9",
          f"v_cndmask_b32 v{vT0}, v{vT0}, v{vT1}, vcc"], nb=KVPUB)
side.add([f"v_lshlrev_b32 v{vT0}, 13, v{vT0}", f"v_and_b32 v{vT1}, 3, v{vL}", f"v_lshl_add_u32 v{vT0}, v{vT1}, 7, v{vT0}",
          f"v_add_u32 v{vFK}, s{sA}, v{vT0}"], nb=KVPUB)
side.add(f"buffer_load_dwordx2 {vr(vFL, 2)}, v{vFK}, {srd(SWS)}, 0 offen sc1", nb=KVPOLL)
side.add(poll_check('kv', 1, vFK), nb=KVPOLL + 16)
kv0 = KVPOLL + 16

vld = []
for m in range(3):
    so = sKV + 4*m
    vld.append(side.add(f"buffer_load_dwordx4 {ar(aVS + 12*m)}, v{vL16}, {srd(SWS)}, s{so} offen offset:2304 sc1", nb=kv0))
    vld.append(side.add(f"buffer_load_dwordx4 {ar(aVS + 12*m + 4)}, v{vL16}, {srd(SWS)}, s{so} offen offset:3328 sc1", nb=kv0))
    vld.append(side.add(f"buffer_load_dwordx4 {ar(aVS + 12*m + 8)}, v{vVC}, {srd(SWS)}, s{so} offen sc1", nb=kv0))
rld = []
for t in TORD:
    side.add(f"buffer_load_dwordx4 {Kf(0, t)}, v{vL16}, {srd(SWS)}, s{sKV+t} offen sc1", nb=kv0)
    rld.append(side.add(f"buffer_load_dwordx2 {vr(vR + 2*t, 2)}, v{vKX}, {srd(SWS)}, s{sKV+t} offen sc1", nb=kv0))
for t in TORD:
    side.add(f"buffer_load_dwordx4 {Kf(1, t)}, v{vL16}, {srd(SWS)}, s{sKV+t} offen offset:1024 sc1", nb=kv0)
side.add([f"v_mov_b32 v{vR+18}, 0", f"v_mov_b32 v{vR+19}, 0"], nb=kv0)
side.add([f"v_and_b32 v{vT0}, 31, v{vL}", f"s_lshl_b32 s{sA}, s{sW}, 5", f"v_add_u32 v{vT0}, s{sA}, v{vT0}", f"v_mul_u32_u24 v{vT0}, 80, v{vT0}"], nb=kv0)
side.add([f"v_add_u32 v{vT1}, {VB+64}, v{vT0}", f"v_and_b32 v{vKX}, 32, v{vL}", f"v_add3_u32 v{vT0}, v{vT0}, v{vKX}, s{sA}",
          f"s_sub_u32 s{sA}, {VB}, s{sA}", f"v_add_u32 v{vT0}, s{sA}, v{vT0}"], nb=kv0)
vwr = []
vw_nb = max(V_NB, GB_END - 6)
for m in range(3):
    vwr.append(side.add(f"ds_write_b128 v{vT0}, {ar(aVS + 12*m)} offset:{10240*m}", nb=vw_nb, dl=BV))
    vwr.append(side.add(f"ds_write_b128 v{vT0}, {ar(aVS + 12*m + 4)} offset:{10240*m + 16}", nb=vw_nb, dl=BV))
    vwr.append(side.add(f"ds_write_b128 v{vT1}, {ar(aVS + 12*m + 8)} offset:{10240*m}", nb=vw_nb, dl=BV))
tabA = bytes([0, 32, 8, 40, 16, 16, 72, 72]); tabB = bytes([48, 24, 56, 64, 16, 16, 72, 72])
lo = lambda b: "0x%08x" % int.from_bytes(b[:4], 'little')
hi = lambda b: "0x%08x" % int.from_bytes(b[4:], 'little')
side.add([f"v_bfe_u32 v{vKX}, v{vL}, 4, 1", f"v_and_b32 v{vVC}, 3, v{vL}", f"v_lshl_add_u32 v{vKX}, v{vKX}, 2, v{vVC}",
          f"v_or_b32 v{vKX}, 0x0c0c0c00, v{vKX}"], nb=vw_nb, dl=BV)
side.add([f"s_mov_b32 s{sA}, {hi(tabA)}", f"v_mov_b32 v{vVC}, {lo(tabA)}", f"v_perm_b32 v{vVA}, s{sA}, v{vVC}, v{vKX}",
          f"v_mov_b32 v{vVC}, {lo(tabB)}", f"v_perm_b32 v{vVBb}, s{sA}, v{vVC}, v{vKX}"], nb=vw_nb, dl=BV)
side.add([f"v_bfe_u32 v{vKX}, v{vL}, 2, 2", f"v_lshrrev_b32 v{vVC}, 5, v{vL}", f"v_lshl_add_u32 v{vKX}, v{vVC}, 2, v{vKX}",
          f"s_lshl_b32 s{sA}, s{sW}, 5", f"v_add_u32 v{vKX}, s{sA}, v{vKX}"], nb=vw_nb, dl=BV)
side.add([f"v_mul_u32_u24 v{vKX}, 80, v{vKX}", f"v_add_u32 v{vKX}, {VB}, v{vKX}", f"v_add_u32 v{vVA}, v{vVA}, v{vKX}",
          f"v_add_u32 v{vVBb}, v{vVBb}, v{vKX}"], nb=vw_nb, dl=BV)

blk = [f"  s_cmp_ge_u32 s{sI}, 2", "  s_cbranch_scc1 L_nobias", f"  s_lshl_b32 s{sA}, s{sI}, 2", f"  s_add_u32 s{sA}, s{sA}, s{sW}",
       "  s_mov_b32 exec_lo, 0"]
for t in range(8):
    blk += [f"  s_cmp_ge_u32 s{sA}, {8 - t}", f"  s_cbranch_scc1 L_bias_done", f"  v_mov_b32 v{vR+2*t}, 0xf149", f"  v_mov_b32 v{vR+2*t+1}, 0xf149"]
blk += ["L_bias_done:", "  s_mov_b32 exec_lo, -1", "  s_nop 1", "L_nobias:"]
gaps[P1[0][0]].pre += [WAITVM(*rld), RAW("\n".join(blk))]

vTT = 248
vME = 21
epi.add([f"v_and_b32 v{vTT}, 31, v{vL}", f"v_lshrrev_b32 v{vTT+1}, 5, v{vL}", f"v_lshlrev_b32 v{vTT+1}, 2, v{vTT+1}",
         f"v_sub_u32 v{vTT}, v{vTT}, v{vTT+1}"], nb=GB_END)
epi.add([f"v_cvt_f32_i32 v{vTT}, v{vTT}", f"v_add_f32 v{vTT}, 0.5, v{vTT}", f"v_mul_f32 v{vTT+1}, {f32(1e30)}, v{vTT}"], nb=GB_END)
for k in range(16):
    cc = 8*(k >> 2) + (k & 3)
    epi.add(f"v_sub_f32 v{vM8+k}, {f32(cc*1e30)}, v{vTT+1}", nb=GB_END, dl=P1[7][0] - 1)
    epi.add(f"v_min_f32 v{vM0+k}, 0, v{vM8+k}", nb=GB_END, dl=P1[7][0] - 1)
    epi.add(f"v_min_f32_e64 v{vM8+k}, 0, -v{vM8+k}", nb=GB_END, dl=P1[7][0] - 1)
for T in range(5): rd_cvt(aG + 16*T, 16, vH2 + 8*T, relu=True, nb=GB_END + 2, tb=vTT, dl=P2s[10]['qa'])

vMX = 16
def max_ops(u, half):
    h, t = steps[u]; S = vSB + 16*(u % 3) + 8*half
    o = []
    for k in range(4):
        acc = vMX + 2*h + (k & 1)
        if TORD.index(t) == 0 and half == 0 and k < 2: o.append(I(f"v_max_f32 v{acc}, v{S+2*k}, v{S+2*k+1}"))
        else: o.append(I(f"v_max3_f32 v{acc}, v{acc}, v{S+2*k}, v{S+2*k+1}"))
    return o
def fin_max(h):
    m = vMX + 2*h
    return [I(f"v_max_f32 v{m}, v{m}, v{m+1}"), I(f"v_mov_b32 v{m+1}, v{m}"), I(f"v_permlane32_swap_b32 v{m}, v{m+1}"),
            I(f"v_max_f32 v{m}, v{m}, v{m+1}"), I(f"v_sub_f32 v{m}, 0, v{m}")]
def cm_ops(h): return [I(f"v_mov_b32 v{vCM+k}, v{vMX+2*h}") for k in range(16)]
for u in range(2, NS):
    gaps[P1[u][0]].post += max_ops(u - 2, 0); gaps[P1[u][1]].post += max_ops(u - 2, 1)
gaps[P1[11][0]].post += fin_max(0)
gaps[P1[12][0]].post += cm_ops(0)[:8]; gaps[P1[13][0]].post += cm_ops(0)[8:]
for u in range(2):
    gaps[P2s[u]['qa']].post += max_ops(NS - 2 + u, 0); gaps[P2s[u]['qb']].post += max_ops(NS - 2 + u, 1)
gaps[P2s[2]['pv1']].post += fin_max(1)
for u in range(1, NS + 1):
    S = vSB + 16*((u - 1) % 4)
    ex = [I(f"v_exp_f32 v{S+k}, v{S+k}") for k in range(16)]
    cv = [I(f"v_cvt_pk_bf16_f32 v{S+k}, v{S+2*k}, v{S+2*k+1}") for k in range(8)]
    e = P2s[u]
    if u < NS:
        gaps[e['qa']].post += ex[:8]; gaps[e['qb']].post += ex[8:]
        gaps[e['pv0'] if 'pv0' in e else e['qb']].post += cv
    else:
        gaps[e['pv0']].post += ex[:12]; gaps[e['pv1']].post += ex[12:] + cv
    if u + 1 < NS and steps[u + 1][1] in (0, 8):
        h, t = steps[u + 1]; Sn = vSB + 16*((u + 1) % 4); M = vM0 if t == 0 else vM8
        gaps[e['pv1']].post += [I(f"v_add_f32 v{Sn+k}, v{M+k}, v{vMX+2*h}") for k in range(16)]
gaps[P2s[7]['pv0']].post += cm_ops(1)
for g in range(GB_END, ATT_END): gaps[g].budget = 6 if g < P1_END else 2
def onorm(h, nb, dl):
    O = aO + 16*h; rc = vFL
    epi.add(f"v_accvgpr_read_b32 v{rc}, a{O+12}", nb=nb, dl=dl)
    for k in range(8): epi.add(f"v_accvgpr_read_b32 v{vTT+k}, a{O+k}", nb=nb, dl=dl)
    epi.add(f"v_rcp_f32 v{rc}, v{rc}", nb=nb, dl=dl)
    epi.add(f"v_accvgpr_read_b32 v{rc+1}, a{O+8+2*h}", nb=nb, dl=dl)
    for k in range(8): epi.add(f"v_mul_f32 v{vTT+k}, v{rc}, v{vTT+k}", nb=nb, dl=dl)
    for k in range(4): epi.add(f"v_cvt_pk_bf16_f32 v{vOX+4*h+k}, v{vTT+2*k}, v{vTT+2*k+1}", nb=nb, dl=dl)
    epi.add(f"v_accvgpr_read_b32 v{vTT}, a{O+9+2*h}", nb=nb, dl=dl)
    epi.add(f"v_mul_f32 v{rc+1}, v{rc}, v{rc+1}", nb=nb, dl=dl)
    epi.add(f"v_mul_f32 v{vTT}, v{rc}, v{vTT}", nb=nb, dl=dl)
    epi.add(f"v_cvt_pk_bf16_f32 v{vTT}, v{rc+1}, v{vTT}", nb=nb, dl=dl)
    epi.add(f"v_cndmask_b32_e64 v{vOX+8+h}, 0, v{vTT}, {LO}", nb=nb, dl=dl)
onorm(0, P2s[11]['pv0'], PAIR0[0] + 30)
onorm(1, PAIR0[0] + 2, PAIR0[0] + 34)

vPW, vPR, vPR2, vOUT = 16, 17, 18, 19
p0 = PAIR0[0]
side.add([f"v_bfe_u32 v{vT0}, v{vL}, 2, 3", f"v_lshlrev_b32 v{vT0}, 13, v{vT0}", f"v_and_b32 v{vT1}, 3, v{vL}", f"v_lshl_add_u32 v{vT0}, v{vT1}, 5, v{vT0}"], nb=p0)
side.add([f"v_lshrrev_b32 v{vT1}, 5, v{vL}", f"v_lshl_add_u32 v{vT0}, v{vT1}, 4, v{vT0}", f"s_lshl_b32 s{sA}, s{sW}, 16", f"s_lshl_b32 s{sB}, s{sJ}, 9",
          f"s_add_u32 s{sA}, s{sA}, s{sB}", f"v_add_u32 v{vPW}, s{sA}, v{vT0}"], nb=p0)
side.add([f"v_lshrrev_b32 v{vT0}, 4, v{vL}", f"v_lshlrev_b32 v{vT0}, 9, v{vT0}", f"v_and_b32 v{vT1}, 15, v{vL}", f"v_lshl_add_u32 v{vT0}, v{vT1}, 4, v{vT0}"], nb=p0)
side.add([f"s_lshl_b32 s{sA}, s{sJ}, 14", f"s_and_b32 s{sB}, s{sW}, 1", f"s_lshl_b32 s{sC}, s{sB}, 13", f"s_add_u32 s{sA}, s{sA}, s{sC}"], nb=p0)
side.add([f"s_lshr_b32 s{sC}, s{sW}, 1", f"s_lshl_b32 s{sD}, s{sC}, 8", f"s_add_u32 s{sA}, s{sA}, s{sD}", f"v_add_u32 v{vPR}, s{sA}, v{vT0}",
          f"v_add_u32 v{vPR2}, 4096, v{vPR}"], nb=p0)
side.add([f"s_lshl_b32 s{sA}, s{sI}, 13", f"s_lshr_b32 s{sD}, s{sJ}, 2", f"s_lshl_b32 s{sD}, s{sD}, 7", f"s_add_u32 s{sA}, s{sA}, s{sD}",
          f"v_lshlrev_b32 v{vT1}, 9, v{vT1}", f"v_add_u32 v{vFR}, s{sA}, v{vT1}"], nb=p0)
side.add([f"s_lshl_b32 s{sA}, s{sI}, 7", f"s_lshl_b32 s{sD}, s{sJ}, 3", f"s_add_u32 s{sA}, s{sA}, s{sD}", f"s_lshl_b32 s{sB}, s{sB}, 2",
          f"s_add_u32 s{sA}, s{sA}, s{sB}", f"s_mul_i32 s{sA}, s{sA}, 1152"], nb=p0)
side.add([f"s_lshl_b32 s{sC}, s{sC}, 6", f"s_add_u32 s{sA}, s{sA}, s{sC}", f"v_bfe_u32 v{vT0}, v{vL}, 1, 2", f"v_mul_u32_u24 v{vT0}, 1152, v{vT0}",
          f"v_bfe_u32 v{vT1}, v{vL}, 3, 1"], nb=p0)
side.add([f"v_lshl_add_u32 v{vT0}, v{vT1}, 5, v{vT0}", f"v_bfe_u32 v{vT1}, v{vL}, 4, 1", f"v_lshl_add_u32 v{vT0}, v{vT1}, 4, v{vT0}",
          f"v_and_b32 v{vT1}, 1, v{vL}", f"v_lshl_add_u32 v{vT0}, v{vT1}, 3, v{vT0}"], nb=p0)
side.add([f"v_lshlrev_b32 v{vT1}, 26, v{vL}", f"v_and_b32 v{vT1}, {OOB:#x}, v{vT1}", f"v_add3_u32 v{vOUT}, v{vT0}, v{vT1}, s{sA}"], nb=p0)

def p2_epi(p):
    A = vSB + 32*(p & 1)
    o = [[I(f"s_add_u32 s{sRS}, s{sPB}, {p*262144}")]]
    sts = []
    for q4 in range(4):
        for k in range(4): o.append([I(f"v_cvt_pk_bf16_f32 v{vPK+4*q4+k}, v{A+8*q4+2*k}, v{A+8*q4+2*k+1}")])
        x = I(f"buffer_store_dwordx4 {vr(vPK+4*q4)}, v{vPW}, {srd(SWS)}, s{sRS} offen offset:{128*q4} sc1")
        o.append([x]); sts.append(x)
    return o, sts
def red_loads(p, k):
    a = aRD + 16*k; x = 216 + 8*(k & 1) if k < 2 else 76 + 8*(k - 2)
    o = [[I(f"s_add_u32 s{sRS+1}, s{sPB}, {p*262144}")]]
    for n in range(4):
        o.append([I(f"buffer_load_dwordx4 {ar(a+4*n)}, v{vPR if n < 2 else vPR2}, {srd(SWS)}, s{sRS+1} offen offset:{2048*(n&1)} sc1")])
    o.append([I(f"buffer_load_dwordx2 {vr(x, 2)}, v{vOUT}, {srd(SX)}, s{sRT+p} offen")])
    return o
def red_comp(p, k):
    a = aRD + 16*k; x = 216 + 8*(k & 1) if k < 2 else 76 + 8*(k - 2)
    C = x + 4
    o = [[I(f"v_lshlrev_b32 v{C}, 16, v{x}")], [I(f"v_and_b32 v{C+1}, 0xffff0000, v{x}")],
         [I(f"v_lshlrev_b32 v{C+2}, 16, v{x+1}")], [I(f"v_and_b32 v{C+3}, 0xffff0000, v{x+1}")]]
    mm = [[I(f"v_mfma_f32_16x16x32_bf16 {vr(C)}, {ar(aSEL)}, {ar(a+4*n)}, {vr(C)}")] for n in range(4)]
    fin = [[I(f"v_cvt_pk_bf16_f32 v{x+2}, v{C}, v{C+1}")], [I(f"v_cvt_pk_bf16_f32 v{x+3}, v{C+2}, v{C+3}")],
           [I(f"buffer_store_dwordx2 {vr(x+2, 2)}, v{vOUT}, {srd(SOUT)}, s{sRT+p} offen")]]
    return o, mm, fin
pst = {}
ev = []
for c in range(1, 9):
    o, pst[c - 1] = p2_epi(c - 1)
    for x in o: epi.add(x, nb=PAIR0[c] + 3, dl=PAIR0[c] + 40)
for c in range(2, 9):
    if c >= 4:
        p = c - 4
        ev.append((PAIR0[c] + 1, [[I(f"buffer_load_dwordx2 {vr(vFL, 2)}, v{vFR}, {srd(SWS)}, 0 offen sc1")]]))
        ev.append((PAIR0[c] + 14, [poll_check(f'r{p}', 2 + p, vFR)] + red_loads(p, p & 1)))
    if c >= 5:
        p = c - 5
        o, mm, fin = red_comp(p, p & 1)
        ev.append((PAIR0[c] + 4, o + mm)); ev.append((PAIR0[c] + 11, fin))
    ev.append((PAIR0[c] + 26, [publish(2 + c - 2, pst[c - 2])]))
for gp, items in sorted(ev, key=lambda x: x[0]):
    for it in items: side.add(it, nb=gp)

E(WAITVM(*chunks[0].dmas)); E("s_barrier")
for pos_ in sorted(k for k in reads_at if k < 0):
    for g in reads_at[pos_]:
        for x in emit_reads(g): E(x)
stats(8)
E(f"v_add_f32 v{vST}, v{vST}, v{vST+1}"); E(f"v_add_f32 v{vST+2}, v{vST+2}, v{vST+3}")
E(f"v_mov_b32 v{vST+1}, v{vST}"); E(f"v_mov_b32 v{vST+3}, v{vST+2}")
E(f"v_permlane32_swap_b32 v{vST}, v{vST+1}"); E(f"v_permlane32_swap_b32 v{vST+2}, v{vST+3}")
E(f"v_add_f32 v{vST}, v{vST}, v{vST+1}"); E(f"v_add_f32 v{vST+2}, v{vST+2}, v{vST+3}")
E(f"v_mul_f32 v{vST}, {f32(1/576)}, v{vST}")
E(f"v_mul_f32 v{vST+2}, {f32(1/576)}, v{vST+2}")
E(f"v_fma_f32 v{vST+2}, -v{vST}, v{vST}, v{vST+2}")
E(f"v_max_f32 v{vST+2}, 0, v{vST+2}")
E(f"v_add_f32 v{vST+2}, {f32(1e-5)}, v{vST+2}")
E(f"v_rsq_f32 v{vRS}, v{vST+2}")
E(f"v_mul_f32_e64 v{vNB}, -v{vST}, v{vRS}")
for x in norm_ops(0): E(x)
STAMP()

dq = deque()
for ch in chunks[2:]:
    if ch.n == 18: dq.append((max(ch.nb - 1, 180), None, [I(x) for x in p2_setup[:5]])); dq.append((0, None, [I(x) for x in p2_setup[5:]]))
    for it in ch.items: dq.append((ch.nb, ch, it))
last_dma = -99
marks = {GA_END: 1, GB_END: 1, P1_END: 1, ATT_END: 1}
nfr = 0
fr_list = [g for g in range(NG) if gaps[g].frag is not None]
for g, G in enumerate(gaps):
    if g in marks: STAMP()
    for s_ in (norm, epi, side):
        lastdl = max([k for k, (nb, dl, _) in enumerate(s_.q) if dl <= g] + [-1])
        for _ in range(lastdl + 1):
            nb, dl, ins = s_.q.popleft()
            assert nb <= g, (s_.name, nb, dl, g, ins)
            for x in ins: E(x)
    if g in bar_at:
        key = bar_at[g]
        if key == 'V': E(WAITLG(*vwr))
        else:
            assert not any(it[1] is key for it in dq), ("late DMA", key.n, g)
            E(WAITVM(*key.dmas))
        E("s_barrier")
    for x in G.pre: E(x)
    if G.frag is not None:
        k = fr_list.index(g)
        if k % 2 == 0 and k + 1 < len(fr_list) and hasattr(gaps[fr_list[k + 1]], 'rd') and fr_list[k + 1] - g <= 2:
            E(WAITLG(*gaps[fr_list[k + 1]].rd))
    E(G.m)
    cost = 0
    for gg in reads_at.get(g, []):
        for x in emit_reads(gg):
            E(x)
            if x.kind != 'dsr': cost += 1
    if not reads_at.get(g): cost -= 2
    for x in G.post: E(x); cost += x.cost
    while dq and dq[0][0] <= g:
        isd = dq[0][2][0].kind == 'dma'
        if isd and g - last_dma < OPT['pace'] and not (g >= GB_END and g < ATT_END): break
        if cost >= G.budget + (1 if isd else 0) and not (GB_END <= g < ATT_END): break
        _, chx, ins = dq.popleft()
        for x in ins: E(x); cost += x.cost
        if isd: last_dma = g; chx.lastg = g
        break
    for s_ in (norm, side, epi):
        while s_.q and s_.q[0][0] <= g and cost < G.budget:
            _, _, ins = s_.q.popleft()
            for x in ins: E(x); cost += x.cost
assert not dq and not norm.q and not epi.q, (len(dq), len(norm.q), len(epi.q))
while side.q:
    for x in side.q.popleft()[2]: E(x)
STAMP()
o, pst[8] = p2_epi(8)
for it in o:
    for x in it: E(x)
E(f"buffer_load_dwordx2 {vr(vFL, 2)}, v{vFR}, {srd(SWS)}, 0 offen sc1")
o4, mm4, fin4 = red_comp(4, 0)
for it in o4 + mm4 + fin4:
    for x in it: E(x)
for x in poll_check('r5', 7, vFR): E(x)
for it in red_loads(5, 1):
    for x in it: E(x)
for x in publish(10, pst[8]): E(x)
STAMP()
E(f"buffer_load_dwordx2 {vr(vFL, 2)}, v{vFR}, {srd(SWS)}, 0 offen sc1")
o5, mm5, fin5 = red_comp(5, 1)
for it in o5 + mm5 + fin5:
    for x in it: E(x)
for x in poll_check('r8', 10, vFR): E(x)
STAMP()
for p, k in ((6, 0), (7, 2), (8, 3)):
    for it in red_loads(p, k):
        for x in it: E(x)
fins = []
for p, k in ((6, 0), (7, 2), (8, 3)):
    o, mm, fin = red_comp(p, k)
    for it in o + mm:
        for x in it: E(x)
    fins += fin
for it in fins:
    for x in it: E(x)
if OPT['timing']:
    E("s_waitcnt vmcnt(0)"); STAMP()
    E(f"s_lshl_b32 s{sA}, s2, 10"); E(f"s_lshl_b32 s{sB}, s{sW}, 8"); E(f"s_add_u32 s{sA}, s{sA}, s{sB}"); E(f"s_add_u32 s{sA}, s{sA}, {DBGW}")
    E(f"v_lshlrev_b32 v{vT0}, 2, v{vL}")
    E(f"buffer_store_dword v11, v{vT0}, {srd(SWS)}, s{sA} offen")
    if OPT['dbgt']:
        E(RAW(f"""  s_memrealtime s[98:99]
  s_waitcnt lgkmcnt(0)
  v_writelane_b32 v11, s98, 14
  s_nop 4
  v_readlane_b32 s98, v11, 0
  v_readlane_b32 s99, v11, 13
  s_nop 4
  v_mov_b32 v3, s98
  v_mov_b32 v4, s99
  v_cmp_le_u32 vcc, 13, v1
  s_nop 1
  v_cndmask_b32 v3, v3, v4, vcc
  v_sub_u32 v11, v11, v3
  s_lshl_b32 s98, s{sW}, 8
  s_xor_b32 s99, s2, {OPT['dbgt']-1}
  s_or_b32 s98, s98, s99
  s_cmp_lg_u32 s98, 0
  s_cbranch_scc1 L_nodbg
  v_cmp_le_u32 vcc, 15, v1
  v_mov_b32 v4, 0x80000000
  v_cndmask_b32 v3, 0, v4, vcc
  v_add3_u32 v2, v2, v3, 4
  buffer_store_dword v11, v2, {srd(SDB)}, 0 offen
L_nodbg:"""))
E("L_end:")
E("s_endpgm")

seen = set()
for x in prog:
    if x.kind in ('pvm', 'plg'):
        for t in x.target: assert id(t) in seen, ("wait on unissued op", t)
    seen.add(id(x))
p1 = insert_waits(prog)
p2, nn = insert_nops(p1)
hdr = open('parallel_sum__sliding_block__dense_activation_relu__prompt.s.ref').read().split('\n')
hdr = [l for l in hdr if l.startswith(';') and '@launch' not in l]
txt = "\n".join(hdr) + f"\n; @launch grid=(256,1,1) block=(256,1,1) lds={LDS_TOTAL}\n"
txt += f""".amdgcn_target "amdgcn-amd-amdhsa--gfx950"
.text
.globl {KNAME}
.p2align 8
.type {KNAME},@function
{KNAME}:
"""
txt += render(p2) + "".join(slow_paths) + "L_code_end:\n  s_endpgm\n.fill 64, 4, 0xbf800000\n"
txt += f""".section .rodata,"a"
.p2align 6
.amdhsa_kernel {KNAME}
  .amdhsa_next_free_vgpr 512
  .amdhsa_next_free_sgpr 102
  .amdhsa_accum_offset 256
  .amdhsa_group_segment_fixed_size 0
  .amdhsa_kernarg_size 72
  .amdhsa_user_sgpr_count 2
  .amdhsa_user_sgpr_kernarg_segment_ptr 1
  .amdhsa_system_sgpr_workgroup_id_x 1
.end_amdhsa_kernel
"""
open(sys.argv[1], 'w').write(txt)
from collections import Counter
cn = Counter(x.kind for x in p2)
print("instrs", len(p2), "nop states", nn, dict(cn), file=sys.stderr)
print("chunks (n, nb, last dma gap, barrier gap)", [(c.n, getattr(c, 'nb', None), getattr(c, 'lastg', None), first_use[c] - PD) for c in chunks], file=sys.stderr)
```

```python
import sys, math, struct
from collections import deque, Counter
from asmlib import *

KNAME = "parallel_sum__sliding_block__dense_activation_relu__prompt_kernel"
OPT = dict(ts='', dbgt=0, timing=0, PD=6, budget=4, tcp=180, lc=2.2, kvpub=58, kvpoll=84, kvchk=104, abud=6, a2bud=2, dmarg=45, c1pro=1, pf=0, kvl=12, attp=4,
           ack=40, vis=40, lat=40, nslot=3, wsoff=0, pf0=30, pf1=190, pfd=45, avm=3)
for a in sys.argv[2:]:
    k, v = a.split('=')
    OPT[k] = (v if k in ('ts',) else float(v) if k == 'lc' else int(v))

def f32(x): return "0x%08x" % struct.unpack('<I', struct.pack('<f', x))[0]

FBASE, EBASE, KVBASE, HXBASE, PBASE = 0, 0x20000, 0x40000, 0x600000, 0x1C00000
HXB = 21504
PU = 131072
KVB = 5120
WS_USED = 0x3000000
DBGW = 0x3000000
WS_REC = 0x4000000 if OPT['timing'] else WS_USED
OOB = 0x80000000
THI = 0x5bd1e995
LDS_TOTAL = 163840
XS = 81920
GA_KS, GA_CH = 8576, 34304
GB_KS, GB_CH = 5312, 21248
IMG = 4288
KVL = 102400
P2A, P2B = 20480, 21504
SX, SQ, S1, S2, SO, SOUT, SWS, SDB, SCODE = 4, 8, 12, 16, 20, 24, 28, 32, 36
def srd(b): return f"s[{b}:{b+3}]"
sI, sJ, sW, sROT = 58, 59, 60, 61
sRT = 62
sKV = 71
sM0K = 74
sXB, sQB, sHA, sHB, sSG = 80, 81, 82, 83, 84
sUC, sSC = 62, 66
sW2A, sW2B, sWO5, sWO6, sSA, sSS, sSE = [67, 68], [69, 70], [80, 81], [82, 83], [84, 85], [86, 87], [88, 94]
sHXW, sHXR, sCA = 56, 57, 79
sKVW, sFW, sPB = 89, 90, 91
sT, sTH = 92, 93
sM0X = 94
sLO = 96
sA, sB, sC, sD = 75, 76, 77, 78
sDM = 44
sM0A, sM0B, sM0C, sM0D, sM0E = 46, 47, 48, 49, 50
sCK = 52
sRS = 54
sTS = 98
vL, vT0, vT1, vT2, vT3_ = 1, 2, 3, 4, 5
vA, vT3, vS, vP0, vP1 = 6, 7, 8, 9, 10
vDQ = 12
vDH = 16
vDS = 20
vL16, vVS, vVSC = 21, 22, 23
vRS, vNB = 24, 25
vFL = 26
vH1 = 28
vQ = 60
vR = 76
vE = 96
XN = 112
vXD, vXR, vST = 28, 32, 36
vH2 = 112
vSB = 152
vM0, vM8 = 216, 232
vTT = 248
aT, aG, aF, aSEL = 0, 128, 208, 252
aK, aO, aRD, aSEL2 = 0, 72, 0, 248
def aPF(k): return 104 + 4*k

prog = []
stamp_names = []
def STAMP(name=''):
    if OPT['timing']:
        k = len(stamp_names); stamp_names.append(name)
        prog.append(I("s_waitcnt lgkmcnt(0)"))
        prog.append(RAW(f"  s_memtime s[{sTS}:{sTS+1}]\n  s_waitcnt lgkmcnt(0)\n  v_writelane_b32 v11, s{sTS}, {k}\n  s_nop 4"))
def TS(grp, name):
    if OPT['timing'] and grp in OPT['ts'].split(','):
        x = I('s_nop', kind='lazystamp'); x.note = name; x.R = set(); x.W = set(); x.cost = 0
        return [x]
    return []
def E(t):
    if isinstance(t, list):
        for x in t: E(x)
        return
    x = t if isinstance(t, I) else I(t)
    if x.kind == 'lazystamp':
        STAMP(x.note); return x
    prog.append(x); return x
def vr(b, n=4): return f"v[{b}:{b+n-1}]"
def ar(b, n=4): return f"a[{b}:{b+n-1}]"
LINES = {}
def VM(text, lines):
    x = I(text); LINES[id(x)] = lines; return x
slow_paths = []

class Chunk: pass
chunks = []
def add_chunk(kind, c, size):
    ch = Chunk(); ch.kind = kind; ch.c = c; ch.size = size; ch.n = len(chunks); ch.dmas = []; chunks.append(ch); return ch
for c in range(9): add_chunk('ga', c, GA_CH).base = (c % 4) * GA_CH
for c, b in enumerate([34304, 55552, 76800, 98048, 119296, 0, 21248, 42496, 63744]): add_chunk('gb', c, GB_CH).base = b
pos = 0
P2SEQ = [('a', 0, 0), ('b', 0, 0), ('a', 0, 1), ('c', 0, 1), ('a', 1, 0), ('b', 1, 0), ('a', 1, 1), ('c', 1, 1), ('e', 0, 1),
         ('a', 2, 0), ('b', 2, 0), ('a', 2, 1), ('b', 2, 1), ('a', 3, 0), ('b', 3, 0), ('a', 3, 1), ('b', 3, 1), ('s', 4, 0), ('s', 4, 1)]
P2C = {}
for k, (kd_, u, src) in enumerate(P2SEQ):
    sz = dict(a=P2A, b=P2B, c=16384, e=10240, s=21504)[kd_]
    ch = add_chunk('p2' + kd_, u, sz); ch.src = src; P2C[(kd_, u, src)] = ch
    if pos + sz > (KVL if k < 5 else LDS_TOTAL): pos = 0
    ch.base = pos; pos += sz
KVC = add_chunk('kv', 0, 12*KVB); KVC.base = KVL; KVC.segstart = {}; chunks.pop()

def dma_items(ch):
    c, b = ch.c, ch.base
    it = []
    def grp(m0w, m0c, soff_ins, srdb, voffs, lines, fl=''):
        it.append([I(f"s_add_u32 m0, s{m0w}, {m0c}") if m0w else I(f"s_mov_b32 m0, {m0c}")] + [I(s) for s in soff_ins])
        for (v, imm) in voffs:
            d = VM(f"buffer_load_dwordx4 v{v}, {srd(srdb)}, s{sDM} offen offset:{imm}{fl} lds", lines)
            ch.dmas.append(d); it.append([d])
    four = lambda v, st: [(v + n, n * st) for n in range(4)]
    if ch.kind == 'ga':
        grp(sM0A, b, [f"s_mul_i32 s{sDM}, s{sRT+c}, 1728", f"s_add_u32 s{sDM}, s{sDM}, s{sQB}"], SQ, four(vDQ, 1088), 20)
        grp(sM0A, b + IMG, [f"s_mul_i32 s{sDM}, s{sRT+c}, 4608", f"s_add_u32 s{sDM}, s{sDM}, s{sHA}"], S1, four(vDH, 1088), 8)
    elif ch.kind == 'gb':
        grp(sM0B, b, [f"s_mul_i32 s{sDM+1}, s{sRT+c}, 4608", f"s_add_u32 s{sDM}, s{sDM+1}, s{sHB}"], S1, four(vDH, 1088), 8)
        grp(sM0B, b + IMG, [f"s_add_u32 s{sDM}, s{sDM+1}, s{sSG}"], S1, [(vDS, 0)], 16)
    elif ch.kind == 'p2a':
        grp(sM0C, b, [f"s_add_u32 s{sDM}, s{sW2A[ch.src]}, s{sUC+c}"], S2, four(vDQ, 1024), 8)
        grp(sM0C, b + 4096, [f"s_add_u32 s{sDM}, s{sDM}, {32*1152}"], S2, [(vDQ, 0)], 8)
    elif ch.kind == 'p2b':
        grp(None, b + 20480, [f"s_add_u32 s{sDM}, s{sWO6[ch.src]}, s{sUC+c}"], SO, [(vDQ, 0)], 8)
        grp(sM0D, b, [f"s_add_u32 s{sDM}, s{sW2B[ch.src]}, s{sUC+c}"], S2, four(vDQ, 1024), 8)
        grp(sM0E, b + 16384, [f"s_add_u32 s{sDM}, s{sWO5[ch.src]}, s{sUC+c}"], SO, [(vDQ, 0)], 8)
    elif ch.kind == 'p2c':
        grp(sM0D, b, [f"s_add_u32 s{sDM}, s{sW2B[ch.src]}, s{sUC+c}"], S2, four(vDQ, 1024), 8)
    elif ch.kind == 'p2e':
        for u in range(2):
            grp(None, b + 5120*u + 4096, [f"s_add_u32 s{sDM}, s{sWO6[1]}, s{sUC+u}"], SO, [(vDQ, 0)], 8)
            grp(sM0E, b + 5120*u, [f"s_add_u32 s{sDM}, s{sWO5[1]}, s{sUC+u}"], SO, [(vDQ, 0)], 8)
    elif ch.kind == 'p2s':
        grp(sM0D, b, [f"s_add_u32 s{sDM}, s{sSA[ch.src]}, s{sSC}"], S2, four(vDQ, 1024), 16)
        it.append([I(f"s_and_b32 s{sDM+1}, s{sM0E}, 1024")])
        grp(sDM+1, b + 16384, [f"s_add_u32 s{sDM}, s{sSS[ch.src]}, s{sSC}"], S2, [(vDQ, 0)], 16)
        it.append([I(f"s_min_u32 s{sDM+1}, s{sM0E}, 2048")])
        grp(sDM+1, b + 18432, [f"s_add_u32 s{sDM}, s{sSE[ch.src]}, s{sSC}"], SO, [(vDQ, 0)], 16)
    else:
        for m in (2, 0, 1):
            ch.segstart[m] = len(it)
            grp(sM0C, b + 4*KVB*m, [f"s_mov_b32 s{sDM}, s{sKV+m}"], SWS, [(vL16, 1024*n) for n in range(4)], OPT['kvl'], ' sc1')
            grp(sM0C, b + 4*KVB*m + 4096, [f"s_add_u32 s{sDM}, s{sDM}, 4096"], SWS, [(vL16, 0)], OPT['kvl'], ' sc1')
    return it
for ch in chunks + [KVC]: ch.items = dma_items(ch)

E(f"s_cmp_ge_u32 s2, 256")
E(f"s_cbranch_scc1 L_end")
E(f"s_load_dwordx16 s[40:55], s[0:1], 0")
E(f"s_load_dwordx2 s[56:57], s[0:1], 64")
if OPT['timing']:
    E("v_mov_b32 v11, 0"); STAMP("start")
    if OPT['dbgt']: E(RAW("  s_memrealtime s[98:99]\n  s_waitcnt lgkmcnt(0)\n  v_writelane_b32 v11, s98, 62\n  s_nop 4"))
E(f"v_lshrrev_b32 v{vT1}, 6, v0")
E(f"v_and_b32 v{vL}, 63, v0")
E(f"v_readfirstlane_b32 s{sW}, v{vT1}")
E(f"v_lshrrev_b32 v{vT0}, 3, v{vL}")
E(f"v_lshrrev_b32 v{vT1}, 4, v{vL}")
E(f"v_and_b32 v{vT2}, 7, v{vL}")
E(f"v_xor_b32 v{vT2}, v{vT2}, v{vT1}")
E(f"v_lshlrev_b32 v{vT2}, 4, v{vT2}")
E(f"v_mul_u32_u24 v{vT0}, 1152, v{vT0}")
E(f"v_add_u32 v{vXD}, v{vT0}, v{vT2}")
E(f"v_xor_b32 v{vXD+1}, 64, v{vXD}")
E(f"v_add_u32 v{vXD+2}, {2*8192}, v{vXD}")
E(f"v_add_u32 v{vXD+3}, {3*8192}, v{vXD+1}")
E(f"v_add_u32 v{vXD+1}, 8192, v{vXD+1}")
E(f"s_bfe_u32 s100, s2, 0x10002")
E(f"s_lshl_b32 s100, s100, 3")
E(f"s_lshr_b32 s{sROT}, s2, 5")
E(f"s_add_u32 s{sI}, s100, s{sROT}")
E(f"s_lshl_b32 s{sRT}, s{sROT}, 7")
E(f"s_lshl_b32 s100, s{sI}, 2")
E(f"s_add_u32 s100, s100, s{sW}")
E(f"s_mul_i32 s{sXB}, s100, {32*1152}")
E(f"s_mul_i32 s{sM0X}, s{sW}, 20480")
E(f"s_add_u32 s{sM0X}, s{sM0X}, {XS}")
E(f"s_mov_b32 s{SX+2}, {2048*1152}"); E(f"s_mov_b32 s{SX+3}, 0x00020000")
E("s_waitcnt lgkmcnt(0)")
E(f"s_mov_b32 s{SX}, s40"); E(f"s_mov_b32 s{SX+1}, s41")
E(TS('pro', 'karg'))

su = deque()
def U(t): su.append(t)
def drain(n):
    for _ in range(min(n, len(su))): E(su.popleft())
def mk_srd(b, p, n):
    U(f"s_mov_b32 s{b}, s{p}"); U(f"s_mov_b32 s{b+1}, s{p+1}"); U(f"s_mov_b32 s{b+2}, {n}"); U(f"s_mov_b32 s{b+3}, 0x00020000")
if OPT['wsoff']:
    U([I(f"s_add_u32 s{SWS}, s56, {OPT['wsoff'] << 20:#x}"), I(f"s_addc_u32 s{SWS+1}, s57, 0")]); U(f"s_mov_b32 s{SWS+2}, {WS_REC}"); U(f"s_mov_b32 s{SWS+3}, 0x00020000")
else: mk_srd(SWS, 56, WS_REC)
U(f"v_mov_b32 v{vFL}, {EBASE}")
U(RAW(f"""  s_or_b32 s101, s2, s{sW}
  s_cmp_lg_u32 s101, 0
  s_cbranch_scc1 L_noep1
  buffer_load_dword v{vFL+1}, v{vFL}, {srd(SWS)}, 0 offen sc1
L_noep1:"""))
U(RAW(f"  s_getpc_b64 s[{SCODE}:{SCODE+1}]\nL_pc:\n  s_mov_b32 s{SCODE+2}, L_code_end-L_pc\n  s_mov_b32 s{SCODE+3}, 0x00020000"))
U(f"s_lshr_b32 s101, s2, 3"); U(f"s_lshl_b32 s101, s101, 2"); U(f"s_add_u32 s101, s101, s{sW}"); U(f"s_lshl_b32 s101, s101, 9")
U(f"v_lshlrev_b32 v{vT0}, 7, v{vL}"); U(f"v_lshlrev_b32 v{vT1}, 29, v{vL}"); U(f"v_cmp_lt_u32 vcc, 3, v{vL}")
U(f"v_mov_b32 v{vT1}, {OOB:#x}"); U(f"v_cndmask_b32 v{vT0}, v{vT0}, v{vT1}, vcc")
U(f"buffer_load_dword v{vE}, v{vT0}, {srd(SCODE)}, s101 offen")
mk_srd(SQ, 42, 576*3456); mk_srd(SO, 44, 576*1152); mk_srd(S1, 48, 576*9216); mk_srd(S2, 50, 4608*1152)
mk_srd(SOUT, 52, 2048*1152); mk_srd(SDB, 54, 256)
U(f"s_and_b32 s{sA}, s2, 3"); U(f"s_lshl_b32 s{sA}, s{sA}, 2"); U(f"s_bfe_u32 s{sB}, s2, 0x20003"); U(f"s_add_u32 s{sJ}, s{sA}, s{sB}")
U(f"v_and_b32 v{vT0}, 31, v{vL}"); U(f"v_lshrrev_b32 v{vT1}, 5, v{vL}"); U(f"v_bfe_u32 v{vT2}, v{vL}, 1, 3")
U(f"v_xor_b32 v{vT2}, v{vT2}, v{vT1}"); U(f"v_lshlrev_b32 v{vT2}, 4, v{vT2}"); U(f"v_lshl_add_u32 v{vT2}, v{vT0}, 7, v{vT2}")
for s in range(4):
    U(f"v_xor_b32 v{vXR+s}, {32*s}, v{vT2}"); U(f"v_add_u32 v{vXR+s}, s{sM0X}, v{vXR+s}")
for k in range(4): U(f"v_mov_b32 v{vST+k}, 0")
U(f"v_lshlrev_b32 v{vL16}, 4, v{vL}")
U(f"s_mov_b32 s{sLO}, -1"); U(f"s_mov_b32 s{sLO+1}, 0")
U(f"v_lshlrev_b32 v{vT2}, 31, v{vT1}"); U(f"v_add_u32 v{vVSC}, 1024, v{vL16}"); U(f"v_add_u32 v{vVSC}, v{vVSC}, v{vT2}")
U(f"v_bfe_u32 v{vT0}, v{vL}, 2, 2"); U(f"v_bfe_u32 v{vT2}, v{vL}, 4, 1"); U(f"v_and_b32 v{vT3_}, 3, v{vL}")
U(f"v_lshl_add_u32 v{vT3_}, v{vT2}, 2, v{vT3_}")
U(f"v_mul_u32_u24 v{vA}, 1088, v{vT0}"); U(f"v_lshl_add_u32 v{vA}, v{vT1}, 9, v{vA}")
U(f"v_mul_u32_u24 v{vT3}, 40, v{vT3_}"); U(f"v_add3_u32 v{vT3}, v{vT3}, v{vA}, 36"); U(f"v_add_u32 v{vT3}, 36, v{vT3}")
U(f"v_lshl_add_u32 v{vA}, v{vT3_}, 3, v{vA}")
U(f"v_lshl_add_u32 v{vS}, v{vT1}, 3, v{vT0}"); U(f"v_lshlrev_b32 v{vS}, 6, v{vS}"); U(f"v_lshl_add_u32 v{vS}, v{vT3_}, 3, v{vS}")
U(f"v_lshl_add_u32 v{vP0}, v{vT1}, 2, v{vT0}"); U(f"v_lshlrev_b32 v{vP0}, 7, v{vP0}"); U(f"v_lshl_add_u32 v{vP0}, v{vT3_}, 3, v{vP0}")
U(f"v_lshrrev_b32 v{vT2}, 1, v{vT0}"); U(f"v_lshl_add_u32 v{vP0}, v{vT2}, 6, v{vP0}"); U(f"v_xor_b32 v{vP1}, 64, v{vP0}")
U(f"v_lshrrev_b32 v{vT0}, 4, v{vL}"); U(f"v_and_b32 v{vT1}, 15, v{vL}")
U(f"v_mul_u32_u24 v{vT2}, {4*9216}, v{vT0}"); U(f"v_lshl_add_u32 v{vDH}, v{vT1}, 4, v{vT2}")
for n in range(1, 4): U(f"v_add_u32 v{vDH+n}, {n*(9216-1088)}, v{vDH}")
U(f"v_min_u32 v{vT1}, 14, v{vT1}"); U(f"v_mul_u32_u24 v{vT2}, 13, v{vT1}"); U(f"v_lshrrev_b32 v{vT2}, 6, v{vT2}")
U(f"v_mul_u32_u24 v{vT3_}, 5, v{vT2}"); U(f"v_sub_u32 v{vT1}, v{vT1}, v{vT3_}"); U(f"v_lshlrev_b32 v{vT1}, 4, v{vT1}")
U(f"v_min_u32 v{vT1}, 56, v{vT1}"); U(f"v_mul_u32_u24 v{vT3_}, 1152, v{vT2}"); U(f"v_add_u32 v{vT1}, v{vT1}, v{vT3_}")
U(f"s_mul_i32 s{sA}, s{sJ}, 72"); U(f"s_xor_b32 s{sB}, s{sJ}, 1"); U(f"s_mul_i32 s{sC}, s{sB}, 72")
U(f"v_mov_b32 v{vT3_}, s{sC}"); U(f"v_mov_b32 v{vDS}, s{sA}"); U(f"v_cmp_eq_u32 vcc, 0, v{vT2}")
U(f"v_mul_u32_u24 v{vT2}, {4*3456}, v{vT0}"); U(f"v_add_u32 v{vT1}, v{vT1}, v{vT2}")
U(f"v_cndmask_b32 v{vT3_}, v{vT3_}, v{vDS}, vcc"); U(f"v_add_u32 v{vDQ}, v{vT1}, v{vT3_}")
for n in range(1, 4): U(f"v_add_u32 v{vDQ+n}, {n*(3456-1088)}, v{vDQ}")
U(f"v_lshrrev_b32 v{vT0}, 2, v{vL}"); U(f"v_mul_u32_u24 v{vT0}, 9216, v{vT0}"); U(f"v_and_b32 v{vT1}, 3, v{vL}")
U(f"v_lshl_add_u32 v{vDS}, v{vT1}, 4, v{vT0}")
U(f"s_mul_i32 s{sQB}, s{sW}, {16*3456}")
U(f"s_and_b32 s{sA}, s{sJ}, 1"); U(f"s_mul_i32 s{sC}, s{sJ}, 288"); U(f"s_lshl_b32 s{sD}, s{sA}, 5"); U(f"s_add_u32 s{sD}, s{sD}, s{sC}")
U(f"s_xor_b32 s{sA}, s{sA}, 1"); U(f"s_lshl_b32 s{sA}, s{sA}, 8"); U(f"s_add_u32 s{sC}, s{sC}, s{sA}")
U(f"s_mul_i32 s{sA}, s{sW}, {16*9216}"); U(f"s_lshl_b32 s{sHA}, s{sD}, 1"); U(f"s_add_u32 s{sHA}, s{sHA}, s{sA}")
U(f"s_add_u32 s{sHB}, s{sHA}, 256"); U(f"s_lshl_b32 s{sSG}, s{sC}, 1"); U(f"s_add_u32 s{sSG}, s{sSG}, s{sA}")
U(f"s_mul_i32 s{sM0A}, s{sW}, {GA_KS}"); U(f"s_mul_i32 s{sM0B}, s{sW}, {GB_KS}"); U(f"s_mul_i32 s{sM0C}, s{sW}, 5120")
U(f"s_lshl_b32 s{sM0D}, s{sW}, 12"); U(f"s_lshl_b32 s{sM0E}, s{sW}, 10")
for m in range(3):
    U(f"s_add_i32 s{sA}, s{sI}, {m-2}")
    U([I(f"s_cmp_lt_i32 s{sA}, 0"), I(f"s_cselect_b32 s{sA}, s{sI}, s{sA}")])
    U(f"s_lshl_b32 s{sB}, s{sJ}, 4"); U(f"s_add_u32 s{sA}, s{sA}, s{sB}"); U(f"s_lshl_b32 s{sA}, s{sA}, 2"); U(f"s_add_u32 s{sA}, s{sA}, s{sW}")
    U(f"s_mul_i32 s{sA}, s{sA}, {KVB}"); U(f"s_add_u32 s{sKV+m}, s{sA}, {KVBASE}")
U(f"s_xor_b32 s{sA}, s{sJ}, 1"); U(f"s_lshl_b32 s{sA}, s{sA}, 4"); U(f"s_add_u32 s{sA}, s{sA}, s{sI}"); U(f"s_lshl_b32 s{sA}, s{sA}, 2")
U(f"s_add_u32 s{sA}, s{sA}, s{sW}"); U(f"s_mul_i32 s{sA}, s{sA}, {KVB}"); U(f"s_add_u32 s{sKVW}, s{sA}, {KVBASE}")
U(f"s_lshl_b32 s{sA}, s{sI}, 2"); U(f"s_add_u32 s{sA}, s{sA}, s{sW}"); U(f"s_lshl_b32 s{sA}, s{sA}, 4"); U(f"s_add_u32 s{sA}, s{sA}, s{sJ}")
U(f"s_lshl_b32 s{sFW}, s{sA}, 3")
U(f"s_and_b32 s{sB}, s{sJ}, 1"); U(f"s_lshl_b32 s{sC}, s{sI}, 1"); U(f"s_add_u32 s{sC}, s{sC}, s{sB}")
U(f"s_mul_i32 s{sPB}, s{sC}, {5*PU}"); U(f"s_add_u32 s{sPB}, s{sPB}, {PBASE}")
U(f"s_mul_i32 s{sHXW}, s{sA}, {HXB}"); U(f"s_add_u32 s{sHXW}, s{sHXW}, {HXBASE}")
U(f"s_xor_b32 s{sA}, s{sA}, 1"); U(f"s_mul_i32 s{sHXR}, s{sA}, {HXB}"); U(f"s_add_u32 s{sHXR}, s{sHXR}, {HXBASE}")
U(f"v_and_b32 v{vT0}, 15, v{vL}"); U(f"v_and_b32 v{vT1}, 1, v{vL}"); U(f"v_lshlrev_b32 v{vT1}, 4, v{vT1}")
U(f"v_mov_b32 v{vT2}, 0x3f80"); U(f"v_lshlrev_b32 v{vT2}, v{vT1}, v{vT2}"); U(f"v_lshrrev_b32 v{vT0}, 1, v{vT0}")
for d in range(4):
    U([I(f"v_cmp_eq_u32 vcc, {d}, v{vT0}"), I("s_nop 1"), I(f"v_cndmask_b32 v{vT1}, 0, v{vT2}, vcc")])
    U(f"v_accvgpr_write_b32 a{aSEL+d}, v{vT1}")
    U([I(f"v_cmp_eq_u32 vcc, {d+4}, v{vT0}"), I("s_nop 1"), I(f"v_cndmask_b32 v{vT1}, 0, v{vT2}, vcc")])
    U(f"v_accvgpr_write_b32 a{aSEL2+d}, v{vT1}")

vFW, vFK, vFR, vFL2 = 4, 5, 0, 24
vVA, vVBb = 2, 3
aST = 240
vY0, vY1, vY2 = vE + 4, vE + 5, vE + 6
for x_ in [f"v_bfe_u32 v{vY0}, v{vL}, 2, 3", f"v_lshlrev_b32 v{vY0}, 12, v{vY0}", f"v_and_b32 v{vY1}, 3, v{vL}", f"v_lshl_add_u32 v{vY0}, v{vY1}, 5, v{vY0}",
           f"v_lshrrev_b32 v{vY1}, 5, v{vL}", f"v_lshl_add_u32 v{vY0}, v{vY1}, 4, v{vY0}", f"s_lshl_b32 s{sA}, s{sW}, 15", f"s_lshr_b32 s{sC}, s{sJ}, 1",
           f"s_lshl_b32 s{sB}, s{sC}, 9", f"s_add_u32 s{sA}, s{sA}, s{sB}", f"v_add_u32 v{vY0}, s{sA}, v{vY0}", f"v_accvgpr_write_b32 a{aST}, v{vY0}",
           f"v_lshrrev_b32 v{vY0}, 4, v{vL}", f"v_lshlrev_b32 v{vY0}, 9, v{vY0}", f"v_and_b32 v{vY1}, 15, v{vL}", f"v_lshl_add_u32 v{vY0}, v{vY1}, 4, v{vY0}",
           f"s_lshl_b32 s{sA}, s{sC}, 14", f"s_lshl_b32 s{sB}, s{sW}, 12", f"s_add_u32 s{sA}, s{sA}, s{sB}", f"v_add_u32 v{vY0}, s{sA}, v{vY0}",
           f"v_accvgpr_write_b32 a{aST+1}, v{vY0}",
           f"s_lshl_b32 s{sA}, s{sI}, 7", f"s_lshl_b32 s{sD}, s{sC}, 4", f"s_add_u32 s{sA}, s{sA}, s{sD}",
           f"s_lshl_b32 s{sB}, s{sW}, 2", f"s_add_u32 s{sA}, s{sA}, s{sB}", f"s_mul_i32 s{sA}, s{sA}, 1152",
           f"v_bfe_u32 v{vY0}, v{vL}, 1, 2", f"v_mul_u32_u24 v{vY0}, 1152, v{vY0}", f"v_bfe_u32 v{vY1}, v{vL}, 3, 1",
           f"v_lshl_add_u32 v{vY0}, v{vY1}, 5, v{vY0}", f"v_bfe_u32 v{vY1}, v{vL}, 4, 1", f"v_lshl_add_u32 v{vY0}, v{vY1}, 4, v{vY0}", f"v_and_b32 v{vY1}, 1, v{vL}",
           f"v_lshl_add_u32 v{vY0}, v{vY1}, 3, v{vY0}", f"v_lshrrev_b32 v{vY1}, 5, v{vL}", f"v_lshl_add_u32 v{vY0}, v{vY1}, 6, v{vY0}",
           f"v_add_u32 v{vY0}, s{sA}, v{vY0}", f"v_accvgpr_write_b32 a{aST+2}, v{vY0}",
           f"v_lshrrev_b32 v{vY0}, 3, v{vL}", f"v_bfe_u32 v{vY1}, v{vL}, 4, 1", f"v_lshlrev_b32 v{vY1}, 2, v{vY1}",
           f"v_and_b32 v{vY2}, 7, v{vL}", f"v_xor_b32 v{vY2}, v{vY2}, v{vY1}", f"v_mul_u32_u24 v{vY0}, 1152, v{vY0}",
           f"v_lshl_add_u32 v{vY0}, v{vY2}, 4, v{vY0}", f"v_accvgpr_write_b32 a{aST+3}, v{vY0}",
           f"v_lshrrev_b32 v{vY0}, 2, v{vL}", f"v_mul_u32_u24 v{vY0}, 1152, v{vY0}", f"v_and_b32 v{vY1}, 3, v{vL}",
           f"v_lshl_add_u32 v{vY0}, v{vY1}, 4, v{vY0}", f"v_accvgpr_write_b32 a{aST+4}, v{vY0}",
           f"v_lshrrev_b32 v{vY0}, 5, v{vL}", f"v_lshlrev_b32 v{vY0}, 8, v{vY0}", f"v_sub_u32 v{vY0}, v{vS}, v{vY0}", f"v_accvgpr_write_b32 a{aST+5}, v{vY0}"]: U(x_)
for x_ in [f"v_bfe_u32 v{vT0}, v{vL}, 2, 2", f"v_min_u32 v{vT0}, 2, v{vT0}", f"s_sub_u32 s{sA}, s{sI}, 2", f"v_add_u32 v{vT0}, s{sA}, v{vT0}"]: U(x_)
for x_ in [f"v_mov_b32 v{vT1}, s{sI}", f"v_cmp_gt_i32 vcc, 0, v{vT0}", f"s_xor_b32 s{sA}, s{sJ}, 1", f"s_lshl_b32 s{sA}, s{sA}, 3",
          f"v_cndmask_b32 v{vT0}, v{vT0}, v{vT1}, vcc"]: U(x_)
for x_ in [f"v_lshlrev_b32 v{vT0}, 9, v{vT0}", f"v_and_b32 v{vT1}, 3, v{vL}", f"v_lshl_add_u32 v{vT0}, v{vT1}, 7, v{vT0}",
          f"v_add_u32 v{vFK}, s{sA}, v{vT0}"]: U(x_)
for x_ in [f"v_cmp_eq_u32 vcc, 0, v{vL}", f"v_mov_b32 v{vFW}, {OOB:#x}", f"s_nop 0", f"v_cndmask_b32_e64 v{vFW}, v{vFW}, 0, vcc"]: U(x_)
for x_ in [f"s_lshl_b32 s{sA}, s{sI}, 9", f"s_lshr_b32 s{sD}, s{sJ}, 2", f"s_lshl_b32 s{sD}, s{sD}, 7", f"s_add_u32 s{sA}, s{sA}, s{sD}",
           f"s_and_b32 s{sD}, s{sJ}, 1", f"s_lshl_b32 s{sD}, s{sD}, 3", f"s_add_u32 s{sA}, s{sA}, s{sD}",
           f"v_and_b32 v{vT1}, 7, v{vL}", f"v_lshlrev_b32 v{vT1}, 4, v{vT1}", f"v_add_u32 v{vFR}, s{sA}, v{vT1}"]: U(x_)
tabA = bytes([0, 64, 1, 65, 128, 128, 255, 255]); tabB = bytes([192, 129, 193, 254, 128, 128, 255, 255])
lo = lambda b: "0x%08x" % int.from_bytes(b[:4], 'little')
hi = lambda b: "0x%08x" % int.from_bytes(b[4:], 'little')
vX0, vX1 = vR, vR + 1
for x_ in [f"v_bfe_u32 v{vX0}, v{vL}, 4, 1", f"v_and_b32 v{vX1}, 3, v{vL}", f"v_lshl_add_u32 v{vX0}, v{vX0}, 2, v{vX1}",
          f"v_or_b32 v{vX0}, 0x0c0c0c00, v{vX0}"]: U(x_)
for x_ in [f"s_mov_b32 s{sA}, {hi(tabA)}", f"v_mov_b32 v{vX1}, {lo(tabA)}", f"v_perm_b32 v{vVA}, s{sA}, v{vX1}, v{vX0}"]: U(x_)
for x_ in [f"v_mov_b32 v{vX1}, {lo(tabB)}", f"v_perm_b32 v{vVBb}, s{sA}, v{vX1}, v{vX0}", f"v_bfe_u32 v{vX0}, v{vL}, 2, 2", f"v_lshrrev_b32 v{vX1}, 5, v{vL}"]: U(x_)
for x_ in [f"v_lshl_add_u32 v{vX0}, v{vX1}, 2, v{vX0}", f"v_lshlrev_b32 v{vX0}, 4, v{vX0}", f"s_add_u32 s{sM0K}, s{sM0C}, {KVL}",
          f"v_add_u32 v{vX0}, s{sM0K}, v{vX0}"]: U(x_)
for x_ in [f"v_add_u32 v{vX0}, 2560, v{vX0}", f"v_add_u32 v{vX1}, 2, v{vVA}", f"v_cmp_lt_u32 vcc, 0xfd, v{vVA}", f"v_add_u32 v{vR+2}, 2, v{vVBb}"]: U(x_)
for x_ in [f"v_cndmask_b32 v{vVA}, v{vVA}, v{vX1}, vcc", f"v_cmp_lt_u32 vcc, 0xfd, v{vVBb}", f"v_lshl_add_u32 v{vVA}, v{vVA}, 3, v{vX0}",
          f"v_mov_b32 v{vR+18}, 0", f"v_cndmask_b32 v{vVBb}, v{vVBb}, v{vR+2}, vcc"]: U(x_)
for x_ in [f"v_lshl_add_u32 v{vVBb}, v{vVBb}, 3, v{vX0}", f"v_mov_b32 v{vR+19}, 0"]: U(x_)


def rt_next(c): return [I(f"s_add_u32 s{sRT+c}, s{sRT+c-1}, 128"), I(f"s_cmp_eq_u32 s{sRT+c}, 1152"), I(f"s_cselect_b32 s{sRT+c}, 0, s{sRT+c}")]
xh = {}
def x_items(cb):
    it = [(rt_next(cb) if cb else []) + [I(f"s_add_u32 m0, s{sM0X}, {(cb % 5)*4096}"), I(f"s_add_u32 s100, s{sXB}, s{sRT+cb}")]]
    xh[cb] = []
    for g in range(4):
        d = I(f"buffer_load_dwordx4 v{vXD+g}, {srd(SX)}, s100 offen offset:{g*1024} lds"); xh[cb].append(d); it.append([d])
    return it
per = (len(su) + 17) // 18
nx = 0
for cb in range(5):
    for it in x_items(cb):
        E(it)
        if it[0].kind == 'dma':
            nx += 1
            if nx >= 2: drain(per)
drain(999)
E(TS('pro', 'xiss'))
def stats(cb):
    o = []
    for d in range(16):
        x = XN + 16*cb + d
        o += [I(f"v_dot2c_f32_bf16 v{vST + (d & 1)}, 0x3f803f80, v{x}"), I(f"v_dot2c_f32_bf16 v{vST + 2 + (d & 1)}, v{x}, v{x}")]
    return o
pend = deque()
def stats_mix(cb, every):
    o = stats(cb)
    for k in range(0, 32, every):
        E(o[k:k+every])
        if pend:
            E(pend.popleft())
            if pend and prog[-1].kind != 'dma': E(pend.popleft())
for cb in range(9):
    E(TS('pro', f'w{cb}<')); E(WAITVM(*xh[cb])); E(TS('pro', f'w{cb}>'))
    rds = [E(f"ds_read_b128 {vr(XN + 16*cb + 4*s)}, v{vXR+s} offset:{(cb % 5)*4096}") for s in range(4)]
    if cb >= 1: stats_mix(cb - 1, 8)
    while pend and cb <= 4: E(pend.popleft())
    if cb + 5 <= 8:
        E(WAITLG(*rds))
        pend.extend(x_items(cb + 5))
    if cb == 1:
        E(RAW(f"""  s_or_b32 s101, s2, s{sW}
  s_cmp_lg_u32 s101, 0
  s_cbranch_scc1 L_noep2
  v_and_b32 v{vFL+1}, -16, v{vFL+1}
  v_add_u32 v{vFL+1}, 16, v{vFL+1}
  buffer_store_dword v{vFL+1}, v{vFL}, {srd(SWS)}, 0 offen sc1
  v_mov_b32 v{vE+2}, 0
  v_or_b32 v{vE+3}, 1, v{vFL+1}
  buffer_store_dword v{vE+3}, v{vE+2}, {srd(SDB)}, 0 offen sc1
  s_nop 1
L_noep2:"""))
    if cb == 4:
        pend.extend(chunks[0].items)
        if OPT['c1pro']: pend.extend(chunks[1].items); chunks[1].items = []
    last_rd = rds
E(WAITLG(*last_rd))
STAMP("xdone")

class Gap:
    def __init__(s): s.pre = []; s.post = []; s.frag = None; s.chunk = None; s.budget = OPT['budget']; s.rd = None
gaps = []
basecur = {vA: 0, vT3: 0, vS: 0, vP0: 0, vP1: 0}
def add_mfma(text, frag=None, chunk=None):
    g = Gap(); g.text = text; g.frag = frag; g.chunk = chunk; gaps.append(g); return len(gaps) - 1
def mf(D, A, B, C): return f"v_mfma_f32_32x32x16_bf16 {D}, {A}, {B}, {C}"
for c in range(9):
    ch = chunks[c]
    for s in range(4):
        ks = 4*c + s
        for T in range(8):
            off = ch.base + s*GA_KS
            if T < 3: fr = (vA, off + 80*T, 256)
            elif T == 3: fr = (vT3, off, 256)
            else: fr = (vA, off + IMG + 64*(T-4), 256)
            D = ar(aT + 16*T, 16)
            add_mfma(lambda A, D=D, ks=ks: mf(D, A, vr(XN + 4*ks), D if ks else "0"), fr, ch)
GA_END = len(gaps)
for c in range(9):
    ch = chunks[9 + c]
    for s in range(4):
        ks = 4*c + s
        for T in range(5):
            off = ch.base + s*GB_KS
            fr = (vA, off + 64*T, 256) if T < 4 else (vS, off + IMG, 256)
            D = ar(aG + 16*T, 16)
            add_mfma(lambda A, D=D, ks=ks: mf(D, A, vr(XN + 4*ks), D if ks else "0"), fr, ch)
GB_END = len(gaps)
TORD = [1, 2, 3, 4, 5, 6, 7, 0, 8]
steps = [(h, t) for h in range(2) for t in TORD]
def Kf(h, t): return ar(aK + 36*h + 4*t)
def Q1(h): return vr(vQ + 4*h)
def Q2(h): return vr(vQ + 8 + 4*h)
P1 = []
for u, (h, t) in enumerate(steps):
    S = vr(vSB + 16*(u % 3), 16)
    C = vr(vM0, 16) if t == 0 else (vr(vM8, 16) if t == 8 else "0")
    P1.append((add_mfma(mf(S, Kf(h, t), Q1(h), C)), add_mfma(mf(S, vr(vR + 2*t), Q2(h), S))))
P1_END = len(gaps)
vCM = vE
basecur[vVA] = 0; basecur[vVBb] = 0
P2s = []
NS = len(steps)
for u in range(NS + 2):
    ent = {}
    if u < NS:
        h, t = steps[u]
        S = vr(vSB + 16*(u % 4), 16)
        ent['qa'] = add_mfma(mf(S, Kf(h, t), Q1(h), S if t in (0, 8) else vr(vCM, 16)))
        ent['qb'] = add_mfma(mf(S, vr(vR + 2*t), Q2(h), S))
    if u >= 2:
        h, t = steps[u - 2]
        Pb = vSB + 16*((u - 2) % 4)
        O = ar(aO + 16*h, 16)
        first = (TORD.index(t) == 0)
        for s in range(2):
            fr = (vVA if h == 0 else vVBb, KVB*t + 256*s, 128)
            ent['pv%d' % s] = add_mfma(lambda A, O=O, Pb=Pb, s=s, first=first: mf(O, A, vr(Pb + 4*s), "0" if (first and s == 0) else O), fr, KVC)
    P2s.append(ent)
ATT_END = len(gaps)
vOX = vQ
vPK = 76
vS2 = vT3
def hfrag(ks, src):
    if src: return ar(aPF(ks))
    if ks < 8: return vr(vH1 + 4*ks)
    if ks < 18: return vr(vH2 + 4*(ks - 8))
    return vr(vOX + 4*(ks - 18))
UACC = [152, 184, 216, 152, 184]
UEND = {}
POS = {}
def unit_steps(u, src, k0, k1):
    for ks in range(k0, k1):
        POS[(u, src, ks)] = len(gaps)
        first = (src == 0 and ks == 0)
        if u == 4:
            ch = P2C[('s', 4, src)]; D = vr(UACC[u], 16)
            add_mfma(lambda A, D=D, ks=ks, first=first: mf(D, A, hfrag(ks, src), "0" if first else D), ('s2', ch.base + 1024*ks, 512 if ks < 20 else None), ch)
            continue
        if ks < 10: ch = P2C[('a', u, src)]; off = ch.base + 2048*ks
        elif (('b', u, src) in P2C): ch = P2C[('b', u, src)]; off = ch.base + 2048*(ks - 10)
        elif ks < 18: ch = P2C[('c', u, src)]; off = ch.base + 2048*(ks - 10)
        else: ch = P2C[('e', 0, 1)]; off = ch.base + 5120*u + 2048*(ks - 18)
        for T in range(2):
            D = vr(UACC[u] + 16*T, 16)
            add_mfma(lambda A, D=D, ks=ks, first=first: mf(D, A, hfrag(ks, src), "0" if first else D), (vP0 + T, off, 1024 if ks < 20 else None), ch)
    UEND[u] = len(gaps)
for u in range(2): unit_steps(u, 0, 0, 21); unit_steps(u, 1, 0, 18)
for u in range(2): unit_steps(u, 1, 18, 21)
for u in range(2, 5): unit_steps(u, 0, 0, 21); unit_steps(u, 1, 0, 21)
basecur['s2'] = 0
NG = len(gaps)

PD = OPT['PD']
first_use, last_use = {}, {}
for g, G in enumerate(gaps):
    if G.chunk is not None:
        first_use.setdefault(G.chunk, g); last_use[G.chunk] = g
bar_at = {}
for ch in chunks[1:]: bar_at[first_use[ch] - PD] = ch
BKV = GB_END - 6
assert BKV not in bar_at
bar_at[BKV] = KVC
REL = Chunk(); REL.kind = 'rel'; REL.n = 99; REL.dmas = []
bar_at[P1_END - 8] = REL
bars = sorted(bar_at)
def release_gap(key): return min(b for b in bars if b > last_use[key])
for ch in chunks[2:] + [KVC]:
    nb = 0
    for o in (chunks[:ch.n] if ch is not KVC else chunks[:18]):
        if o.base < ch.base + ch.size and ch.base < o.base + o.size: nb = max(nb, release_gap(o))
    if ch.base + ch.size > KVL and ch.kind.startswith('p2'): nb = max(nb, release_gap(KVC))
    ch.nb = nb

fragno = 0
reads_at = {}
for g, G in enumerate(gaps):
    if G.frag is None:
        G.m = I(G.text); continue
    G.fb = aF + 4*(fragno % 8); fragno += 1
    G.m = I(G.text(ar(G.fb)))
    reads_at.setdefault(g - PD, []).append(g)
def emit_reads(g):
    G = gaps[g]; bk, off, d = G.frag
    bv = vS2 if bk == 's2' else bk
    outl = []
    if off < basecur[bk] or off + (d or 0) - basecur[bk] > 65535 - 8:
        nbase = off & ~0x7ff
        outl.append(I(f"v_add_u32 v{bv}, {(nbase - basecur[bk]) & 0xffffffff:#x}, v{bv}"))
        basecur[bk] = nbase
    G.rd = [I(f"ds_read_b64_tr_b16 {ar(G.fb, 2)}, v{bv} offset:{off - basecur[bk]}")]
    if d is not None: G.rd.append(I(f"ds_read_b64_tr_b16 {ar(G.fb + 2, 2)}, v{bv} offset:{off + d - basecur[bk]}"))
    return outl + G.rd

class Stream:
    def __init__(s, name): s.q = deque(); s.name = name
    def add(s, ins, nb=0, dl=10**9):
        ins = [x if isinstance(x, I) else I(x) for x in (ins if isinstance(ins, list) else [ins])]
        s.q.append((nb, dl, ins)); return ins[-1]
norm, epi, side, dmaq = Stream('norm'), Stream('epi'), Stream('side'), Stream('dma')

def norm_ops(ks):
    o = []
    T = lambda d: vE + 2*d
    for d in range(4): o += [f"v_lshlrev_b32 v{T(d)}, 16, v{XN+4*ks+d}", f"v_and_b32 v{T(d)+1}, 0xffff0000, v{XN+4*ks+d}"]
    for d in range(4): o += [f"v_fma_f32 v{T(d)}, v{T(d)}, v{vRS}, v{vNB}", f"v_fma_f32 v{T(d)+1}, v{T(d)+1}, v{vRS}, v{vNB}"]
    for d in range(4): o += [f"v_cvt_pk_bf16_f32 v{XN+4*ks+d}, v{T(d)}, v{T(d)+1}"]
    return o
for ks in range(1, 36):
    for x in norm_ops(ks): norm.add(x, nb=max(0, 8*ks - 24), dl=8*ks - 1)

def chk_ops(need, fl):
    return [f"s_add_u32 s{sA}, s{sT}, {need}", f"v_subrev_u32 v{fl}, s{sA}, v{fl}", f"v_cmp_eq_u32 s[{sCK}:{sCK+1}], s{sTH}, v{fl+1}",
            f"v_cmp_ge_u32 vcc, {15 - need}, v{fl}", f"s_and_b64 vcc, vcc, s[{sCK}:{sCK+1}]", f"s_cmp_eq_u64 vcc, -1"]
def poll_load(vaddr, lines=1): return VM(f"buffer_load_dwordx2 {vr(vFL, 2)}, v{vaddr}, {srd(SWS)}, 0 offen sc1", lines)
def poll_check(name, need, vaddr):
    chk = chk_ops(need, vFL)
    slow_paths.append(f"""L_slow_{name}:
  s_mov_b32 s{sD}, 0
L_spin_{name}:
  buffer_load_dwordx2 v[{vFL}:{vFL+1}], v{vaddr}, {srd(SWS)}, 0 offen sc1
  s_waitcnt vmcnt(0)
  """ + "\n  s_nop 1\n  ".join(chk) + f"""
  s_cbranch_scc1 L_back_{name}
  s_add_u32 s{sD}, s{sD}, 1
  s_cmp_lt_u32 s{sD}, 0x40000
  s_cbranch_scc1 L_spin_{name}
  s_branch L_back_{name}
""")
    g_ = 'gb' if name == 'kv' else 'poll'
    return TS(g_, f'poll{name}<') + [I(x) for x in chk] + [I(f"s_cbranch_scc0 L_slow_{name}"), I(f"L_back_{name}:")] + TS(g_, f'poll{name}>')
side.add([VM(f"buffer_load_dword v{vFL}, v{vFW}, {srd(SDB)}, 0 offen sc1", 1)], nb=100)
slow_paths.append(f"""L_slow_tag:
  s_mov_b32 s{sD}, 0
L_spin_tag:
  s_sleep 2
  buffer_load_dword v{vFL}, v{vFW}, {srd(SDB)}, 0 offen sc1
  s_waitcnt vmcnt(0)
  v_readfirstlane_b32 s{sT}, v{vFL}
  s_nop 1
  s_cmp_lg_u32 s{sT}, 0
  s_cbranch_scc1 L_back_tag
  s_add_u32 s{sD}, s{sD}, 1
  s_cmp_lt_u32 s{sD}, 0x40000
  s_cbranch_scc1 L_spin_tag
  s_branch L_back_tag
""")
side.add([f"v_readfirstlane_b32 s{sT}, v{vFL}", f"s_cmp_lg_u32 s{sT}, 0", "s_cbranch_scc0 L_slow_tag", "L_back_tag:",
          f"s_and_b32 s{sT}, s{sT}, -16", f"s_xor_b32 s{sTH}, s{sT}, {THI:#x}"], nb=160)
vFW, vFK, vFR, vFL2 = 4, 5, 0, 24
p2_setup = [f"v_accvgpr_read_b32 v{vDQ}, a{aST+3}"] + [f"v_add_u32 v{vDQ+n}, {n*8192}, v{vDQ}" for n in range(1, 4)]
s_setup = [f"v_accvgpr_read_b32 v{vDQ}, a{aST+4}"] + [f"v_add_u32 v{vDQ+n}, {n*(16*1152-1024)}, v{vDQ}" for n in range(1, 4)]
def p2_scalars():
    t0, t1, t2, t3 = sDM, sDM + 1, 100, 101
    o = [[f"s_and_b32 s{t0}, s{sJ}, 1", f"s_mul_i32 s{sCA}, s{t0}, 640", f"s_lshl_b32 s{t1}, s{t0}, 6", f"s_add_u32 s{sSC}, s{t1}, 512"]]
    for u in range(4):
        o.append([f"s_add_u32 s{t1}, s{sI}, {u}", f"s_and_b32 s{t1}, s{t1}, 3", f"s_lshl_b32 s{t1}, s{t1}, 7", f"s_add_u32 s{sUC+u}, s{t1}, s{sCA}"])
    for src in range(2):
        o.append([f"s_xor_b32 s{t0}, s{sJ}, {src}", f"s_and_b32 s{t1}, s{t0}, 1", f"s_mul_i32 s{t2}, s{t0}, 288", f"s_lshl_b32 s{t3}, s{t1}, 5"])
        o.append([f"s_add_u32 s{t3}, s{t3}, s{t2}", f"s_xor_b32 s{t1}, s{t1}, 1", f"s_lshl_b32 s{t1}, s{t1}, 8", f"s_add_u32 s{t2}, s{t2}, s{t1}"])
        o.append([f"s_mul_i32 s{t1}, s{sW}, 40", f"s_add_u32 s{t1}, s{t1}, s{t3}", f"s_mul_i32 s{sW2A[src]}, s{t1}, 1152", f"s_lshl_b32 s{t1}, s{sW}, 6"])
        o.append([f"s_add_u32 s{t1}, s{t1}, s{t3}", f"s_mul_i32 s{sSA[src]}, s{t1}, 1152", f"s_lshl_b32 s{t1}, s{sW}, 5", f"s_add_u32 s{t1}, s{t1}, s{t3}"])
        o.append([f"s_add_u32 s{t1}, s{t1}, 160", f"s_cmp_eq_u32 s{sW}, 3", f"s_cselect_b32 s{t1}, s{t2}, s{t1}", f"s_mul_i32 s{sW2B[src]}, s{t1}, 1152"])
        o.append([f"s_and_b32 s{t1}, s{sW}, 1", f"s_lshl_b32 s{t1}, s{t1}, 4", f"s_add_u32 s{t1}, s{t1}, s{t2}", f"s_mul_i32 s{sSS[src]}, s{t1}, 1152"])
        o.append([f"s_mul_i32 s{t0}, s{t0}, 36", f"s_lshl_b32 s{t1}, s{sW}, 3", f"s_lshr_b32 s{t2}, s{sW}, 1", f"s_lshl_b32 s{t2}, s{t2}, 2"])
        o.append([f"s_add_u32 s{t1}, s{t1}, s{t2}", f"s_add_u32 s{t1}, s{t1}, s{t0}", f"s_mul_i32 s{sWO5[src]}, s{t1}, 1152", f"s_add_u32 s{t1}, s{t0}, 16"])
        o.append([f"s_mul_i32 s{sWO6[src]}, s{t1}, 1152", f"s_cmp_eq_u32 s{sW}, 1", f"s_cselect_b32 s{t1}, 20, 16", f"s_cmp_eq_u32 s{sW}, 0",
                  f"s_cselect_b32 s{t1}, 0, s{t1}"])
        o.append([f"s_add_u32 s{t1}, s{t1}, s{t0}", f"s_mul_i32 s{sSE[src]}, s{t1}, 1152"])
    return o

e0 = GA_END + 2
CSC = math.log2(math.e) / math.sqrt(18.0)
def rd_cvt(acc, n, dst, scale=None, relu=False, nb=e0, tb=vE, dl=10**9):
    for k0 in range(0, n, 8):
        m = min(8, n - k0)
        for k in range(m): epi.add(f"v_accvgpr_read_b32 v{tb+k}, a{acc+k0+k}", nb=nb, dl=dl)
        if scale:
            for k in range(m): epi.add(f"v_mul_f32 v{tb+k}, {scale}, v{tb+k}", nb=nb, dl=dl)
        for k in range(0, m, 2): epi.add(f"v_cvt_pk_bf16_f32 v{dst+(k0+k)//2}, v{tb+k}, v{tb+k+1}", nb=nb, dl=dl)
        if relu:
            for k in range(0, m, 2): epi.add(f"v_pk_max_i16 v{dst+(k0+k)//2}, v{dst+(k0+k)//2}, 0", nb=nb, dl=dl)
LO = f"s[{sLO}:{sLO+1}]"
kP, x8, vP_ = vH1, vH1 + 8, vH1 + 16
st = []
URGENT = set()
def KVST(text, lines):
    x = VM(text, lines); epi.add(x, nb=e0); st.append(x); URGENT.add(id(x))
rd_cvt(aT + 16, 16, kP)
KVST(f"buffer_store_dwordx4 {vr(kP)}, v{vL16}, {srd(SWS)}, s{sKVW} offen sc1", 8)
rd_cvt(aT + 48 + 4, 8, x8)
epi.add(f"v_cndmask_b32_e64 v{x8+6}, 0, v{kP+4}, {LO}", nb=e0); epi.add(f"v_cndmask_b32_e64 v{x8+7}, 0, v{x8+1}, {LO}", nb=e0)
epi.add(f"v_cndmask_b32_e64 v{kP+4}, v{kP+4}, v{x8}, {LO}", nb=e0)
epi.add(f"v_lshrrev_b32 v{vE+8}, 1, v{vL16}", nb=e0)
KVST(f"buffer_store_dwordx4 {vr(kP+4)}, v{vL16}, {srd(SWS)}, s{sKVW} offen offset:1024 sc1", 8)
epi.add(f"v_mov_b32 v{x8+4}, 0x3f803f80", nb=e0); epi.add(f"v_mov_b32 v{x8+5}, 0x3f803f80", nb=e0)
rd_cvt(aT + 32, 8, vP_)
KVST(f"buffer_store_dwordx2 {vr(x8+6, 2)}, v{vE+8}, {srd(SWS)}, s{sKVW} offen offset:2048 sc1", 4)
rd_cvt(aT + 40, 8, vP_ + 4)
KVST(f"buffer_store_dwordx4 {vr(vP_)}, v{vL16}, {srd(SWS)}, s{sKVW} offen offset:2560 sc1", 8)
rd_cvt(aT, 8, vQ, scale=f32(CSC))
KVST(f"buffer_store_dwordx4 {vr(vP_+4)}, v{vL16}, {srd(SWS)}, s{sKVW} offen offset:3584 sc1", 8)
rd_cvt(aT + 8, 8, vQ + 4, scale=f32(CSC))
KVST(f"buffer_store_dwordx4 {vr(x8+2)}, v{vVSC}, {srd(SWS)}, s{sKVW} offen offset:3584 sc1", 4)
rd_cvt(aT + 48, 4, vQ + 14, scale=f32(CSC))
epi.add(f"v_mov_b32 v{vQ+13}, 0x3f80", nb=e0)
epi.add(f"v_cndmask_b32_e64 v{vQ+8}, v{vQ+13}, v{vQ+4}, {LO}", nb=e0)
epi.add(f"v_cndmask_b32_e64 v{vQ+4}, v{vQ+4}, v{vQ+14}, {LO}", nb=e0)
epi.add(f"v_cndmask_b32_e64 v{vQ+13}, v{vQ+13}, v{vQ+15}, {LO}", nb=e0)
for k in (9, 10, 11, 12, 14, 15): epi.add(f"v_mov_b32 v{vQ+k}, 0", nb=e0)
hst = {}
sHT = 51
def hx_store(k, reg, q):
    if k % 4 == 0 or k == 8 or k == 18: q([I(f"s_add_u32 s{sHT}, s{sHXW}, {1024*(k & ~3)}")])
    hst[k] = VM(f"buffer_store_dwordx4 {vr(reg)}, v{vL16}, {srd(SWS)}, s{sHT} offen offset:{1024*(k & 3)} sc1", 8)
    q([hst[k]])
for T in range(4):
    rd_cvt(aT + 64 + 16*T, 16, vH1 + 8*T, relu=True, dl=BKV - 1)
    for k in (2*T, 2*T + 1): hx_store(k, vH1 + 4*k, lambda x: epi.add(x, nb=e0, dl=BKV - 1))

def publish(count, waits):
    g_ = 'gb' if count == 1 else 'pub'
    return TS(g_, f'pub{count}<') + [WAITVM(*waits)] + TS(g_, f'pub{count}>') + [I(f"s_add_u32 s{sB}, s{sT}, {count}"), I(f"v_mov_b32 v{vFL2}, s{sB}"),
            VM(f"buffer_store_dwordx2 {vr(vFL2, 2)}, v{vFW}, {srd(SWS)}, s{sFW} offen sc1", 1)]
side.add(f"v_mov_b32 v{vFL2+1}, s{sTH}", nb=GA_END + 1)
side.add(publish(1, st), nb=GA_END + OPT['kvpub'])
side.add(poll_load(vFK, 12), nb=GA_END + OPT['kvpoll'])
kvchk = side.add(poll_check('kv', 1, vFK), nb=GA_END + OPT['kvchk'], dl=GA_END + OPT['kvchk'])
KVC.nb = max(KVC.nb, GA_END + OPT['kvchk'])
vKL, vKXL = vVS, vVSC
side.add([f"v_add_u32 v{vKL}, s{sM0K}, v{vL16}", f"v_lshrrev_b32 v{vKXL}, 1, v{vL16}", f"v_add_u32 v{vKXL}, s{sM0K}, v{vKXL}"], nb=GA_END + OPT['kvchk'], dl=BKV)
rld = []
def kread(h, t): return I(f"ds_read_b128 {Kf(h, t)}, v{vKL} offset:{KVB*t + 1024*h}")
for k, t in enumerate(TORD):
    x = I(f"ds_read_b64 {vr(vR + 2*t, 2)}, v{vKXL} offset:{KVB*t + 2048}"); rld.append(x)
    gaps[BKV + k // 2].post += [x]
for k, (h, t) in enumerate(steps):
    gaps[min(BKV + 2 + k, P1[k][0] - 3) if k >= 4 else BKV + k].post += [kread(h, t)]
blk = [f"  s_cmp_ge_u32 s{sI}, 2", "  s_cbranch_scc1 L_nobias", f"  s_lshl_b32 s{sA}, s{sI}, 2", f"  s_add_u32 s{sA}, s{sA}, s{sW}",
       "  s_mov_b32 exec_lo, 0"]
for t in range(8):
    blk += [f"  s_cmp_ge_u32 s{sA}, {8 - t}", f"  s_cbranch_scc1 L_bias_done", f"  v_mov_b32 v{vR+2*t}, 0xf149", f"  v_mov_b32 v{vR+2*t+1}, 0xf149"]
blk += ["L_bias_done:", "  s_mov_b32 exec_lo, -1", "  s_nop 1", "L_nobias:"]
gaps[P1[0][1]].pre += [WAITLG(*rld), RAW("\n".join(blk))]

epi.add([f"v_and_b32 v{vTT}, 31, v{vL}", f"v_lshrrev_b32 v{vTT+1}, 5, v{vL}", f"v_lshlrev_b32 v{vTT+1}, 2, v{vTT+1}",
         f"v_sub_u32 v{vTT}, v{vTT}, v{vTT+1}"], nb=GB_END)
epi.add([f"v_cvt_f32_i32 v{vTT}, v{vTT}", f"v_add_f32 v{vTT}, 0.5, v{vTT}", f"v_mul_f32 v{vTT+1}, {f32(1e30)}, v{vTT}"], nb=GB_END)
for k in range(16):
    cc = 8*(k >> 2) + (k & 3)
    epi.add(f"v_sub_f32 v{vM8+k}, {f32(cc*1e30)}, v{vTT+1}", nb=GB_END, dl=P1[7][0] - 1)
    epi.add(f"v_min_f32 v{vM0+k}, 0, v{vM8+k}", nb=GB_END, dl=P1[7][0] - 1)
    epi.add(f"v_min_f32_e64 v{vM8+k}, 0, -v{vM8+k}", nb=GB_END, dl=P1[7][0] - 1)
H2DL = P2s[7]['qa']
for T in range(5):
    rd_cvt(aG + 16*T, 16, vH2 + 8*T, relu=True, nb=GB_END + 2, tb=vTT, dl=(H2DL if T else P2s[2]['qa']))
    for k in (8 + 2*T, 9 + 2*T): hx_store(k, vH2 + 4*(k - 8), lambda x: epi.add(x, nb=GB_END + 2, dl=H2DL))

vMX = 16
def max_ops(u, half):
    h, t = steps[u]; S = vSB + 16*(u % 3) + 8*half
    o = []
    for k in range(4):
        acc = vMX + 2*h + (k & 1)
        if TORD.index(t) == 0 and half == 0 and k < 2: o.append(I(f"v_max_f32 v{acc}, v{S+2*k}, v{S+2*k+1}"))
        else: o.append(I(f"v_max3_f32 v{acc}, v{acc}, v{S+2*k}, v{S+2*k+1}"))
    return o
def fin_max(h):
    m = vMX + 2*h
    return [I(f"v_max_f32 v{m}, v{m}, v{m+1}"), I(f"v_mov_b32 v{m+1}, v{m}"), I(f"v_permlane32_swap_b32 v{m}, v{m+1}"),
            I(f"v_max_f32 v{m}, v{m}, v{m+1}"), I(f"v_sub_f32 v{m}, 0, v{m}")]
def cm_ops(h): return [I(f"v_mov_b32 v{vCM+k}, v{vMX+2*h}") for k in range(16)]
for u in range(2, NS):
    gaps[P1[u][0]].post += max_ops(u - 2, 0); gaps[P1[u][1]].post += max_ops(u - 2, 1)
gaps[P1[11][0]].post += fin_max(0)
for k in range(4): gaps[P1[12 + k][0]].post += cm_ops(0)[4*k:4*k+4]
for u in range(2):
    gaps[P2s[u]['qa']].post += max_ops(NS - 2 + u, 0); gaps[P2s[u]['qb']].post += max_ops(NS - 2 + u, 1)
gaps[P2s[2]['pv1']].post += fin_max(1)
for u in range(1, NS + 1):
    S = vSB + 16*((u - 1) % 4)
    ex = [I(f"v_exp_f32 v{S+k}, v{S+k}") for k in range(16)]
    cv = [I(f"v_cvt_pk_bf16_f32 v{S+k}, v{S+2*k}, v{S+2*k+1}") for k in range(8)]
    e = P2s[u]
    if u == 1:
        gaps[e['qa']].post += ex[:8]; gaps[e['qb']].post += ex[8:] + cv
    elif u < NS:
        gaps[e['qa']].post += ex[:5]; gaps[e['qb']].post += ex[5:10]
        gaps[e['pv0']].post += ex[10:14] + cv[:2]; gaps[e['pv1']].post += ex[14:] + cv[2:]
    else:
        gaps[e['pv0']].post += ex[:10]; gaps[e['pv1']].post += ex[10:] + cv
    if u + 1 < NS and steps[u + 1][1] in (0, 8):
        h, t = steps[u + 1]; Sn = vSB + 16*((u + 1) % 4); M = vM0 if t == 0 else vM8
        gaps[e['pv1']].post += [I(f"v_add_f32 v{Sn+k}, v{M+k}, v{vMX+2*h}") for k in range(16)]
gaps[P2s[7]['pv0']].post += cm_ops(1)
for g in range(GB_END, ATT_END): gaps[g].budget = OPT['abud'] if g < P1_END else OPT['a2bud']
onq = Stream('onorm')
def onorm(h, nb, dl, tb):
    O = aO + 16*h; rc = 22
    A = lambda t: onq.add(t, nb=nb, dl=dl)
    A(f"v_accvgpr_read_b32 v{rc}, a{O+12}")
    for k in range(8): A(f"v_accvgpr_read_b32 v{tb+k}, a{O+k}")
    A(f"v_rcp_f32 v{rc}, v{rc}")
    A(f"v_accvgpr_read_b32 v{rc+1}, a{O+8+2*h}")
    for k in range(8): A(f"v_mul_f32 v{tb+k}, v{rc}, v{tb+k}")
    for k in range(4): A(f"v_cvt_pk_bf16_f32 v{vOX+4*h+k}, v{tb+2*k}, v{tb+2*k+1}")
    A(f"v_accvgpr_read_b32 v{tb}, a{O+9+2*h}")
    A(f"v_mul_f32 v{rc+1}, v{rc}, v{rc+1}"); A(f"v_mul_f32 v{tb}, v{rc}, v{tb}")
    A(f"v_cvt_pk_bf16_f32 v{tb}, v{rc+1}, v{tb}")
    A(f"v_cndmask_b32_e64 v{vOX+8+h}, 0, v{tb}, {LO}")
P0 = ATT_END
onorm(0, P2s[11]['pv0'], P0, vTT)
hx_store(18, vOX, lambda x: onq.add(x, nb=P2s[11]['pv0'], dl=P0 + 30))
onorm(1, P0 + 2, P0 + 20, vTT)
for k in (19, 20): hx_store(k, vOX + 4*(k - 18), lambda x: onq.add(x, nb=P0 + 2, dl=P0 + 30))

def pload(k):
    o = []
    if k % 4 == 0 or k == 18: o.append([I(f"s_add_u32 s{sRS+1}, s{sHXR}, {1024*(k & ~3)}")])
    return o + [[VM(f"buffer_load_dwordx4 {ar(aPF(k))}, v{vL16}, {srd(SWS)}, s{sRS+1} offen offset:{1024*(k & 3)} sc1", 8)]]
ev = []
ev.append((GB_END - 4, [[I(f"s_xor_b32 s{sA}, s{sFW}, 8"), I(f"v_mov_b32 v{vFK}, s{sA}")], publish(2, [hst[k] for k in range(8)])]))
ev.append((P1_END - 6, [[poll_load(vFK)]]))
ev.append((P2s[3]['qa'], [poll_check('h1', 2, vFK)] + sum([pload(k) for k in range(8)], [])))
ev.append((P2s[12]['qa'], [publish(3, [hst[k] for k in range(8, 18)])]))
ev.append((P2s[17]['qa'], [[poll_load(vFK)]]))
ev.append((P0 + 6, [poll_check('h2', 3, vFK)] + sum([pload(k) for k in range(8, 18)], [])))
ev.append((P0 + 30 + OPT['ack'], [publish(4, [hst[k] for k in (18, 19, 20)])]))
ev.append((P0 + 30 + OPT['ack'] + 30, [[poll_load(vFK)]]))
ev.append((P0 + 30 + OPT['ack'] + 55, [poll_check('o', 4, vFK)] + sum([pload(k) for k in (18, 19, 20)], [])))

vPW, vPR, vOUT, vOUTS = 16, 17, 18, 19
RXT = [96, 104, 248, 208, 216, 200]
sMK = [36, 37, 38, 39, 3]
sOS = [40, 41, 42, 43, 95]
sNOFF, sNEED, sNR = 46, 47, 71
vTA, vTC = 20, 23
ev.append((P0 + 40, [[I(f"v_accvgpr_read_b32 v{vPW}, a{aST}"), I(f"v_accvgpr_read_b32 v{vPR}, a{aST+1}"), I(f"v_accvgpr_read_b32 v{vOUT}, a{aST+2}"),
                      I(f"v_accvgpr_read_b32 v{vS2}, a{aST+5}")],
                     [I(f"v_lshlrev_b32 v{vOUTS}, 26, v{vL}"), I(f"v_and_b32 v{vOUTS}, {OOB:#x}, v{vOUTS}"), I(f"v_or_b32 v{vOUTS}, v{vOUTS}, v{vOUT}")],
                     [I(f"s_mov_b32 s{sMK[k_]}, {OOB:#x}") for k_ in range(3)], [I(f"s_mov_b32 s{sOS[k_]}, 0") for k_ in range(3)],
                     [I(f"s_mov_b32 s{sNOFF}, s{sPB}"), I(f"s_add_u32 s{sNEED}, s{sT}, 5"), I(f"s_sub_u32 s{sNR}, s{sUC}, s{sCA}")]]))
def p2_epi(u):
    A = UACC[u]
    o = [[I(f"s_add_u32 s{sRS}, s{sPB}, {u*PU}")]]
    sts = []
    for q4 in range(4 if u < 4 else 2):
        for k in range(4): o.append([I(f"v_cvt_pk_bf16_f32 v{vPK+4*q4+k}, v{A+8*q4+2*k}, v{A+8*q4+2*k+1}")])
        x = VM(f"buffer_store_dwordx4 {vr(vPK+4*q4)}, v{vPW}, {srd(SWS)}, s{sRS} offen offset:{128*q4} sc1", 8)
        o.append([x]); sts.append(x)
    return o, sts
def adv_ops():
    return [f"s_add_u32 s{sNOFF}, s{sNOFF}, {PU}", f"s_add_u32 s{sNEED}, s{sNEED}, 1", f"s_add_u32 s{sNR}, s{sNR}, 128", f"s_and_b32 s{sNR}, s{sNR}, 511"]
def set_loads(k):
    a = aRD + 16*k
    if k == 5:
        o = [[I(f"s_add_u32 s{sRS+1}, s{sPB}, {4*PU}")]]
        o += [[VM(f"buffer_load_dwordx4 {ar(a+4*n)}, v{vPR}, {srd(SWS)}, s{sRS+1} offen offset:{2048*n} sc1", 8)] for n in range(2)]
        return o + [[VM(f"buffer_load_dwordx2 {vr(RXT[k], 2)}, v{vOUTS}, {srd(SX)}, s{sSC} offen", 4)]]
    o = [[I(f"v_or_b32 v{vTA}, s{sMK[k]}, v{vPR}")]]
    for n in range(4):
        o.append([VM(f"buffer_load_dwordx4 {ar(a+4*n)}, v{vTA}, {srd(SWS)}, s{sRS+1} offen offset:{2048*(n&1) + 256*(n>>1)} sc1", 8)])
    o.append([VM(f"buffer_load_dwordx2 {vr(RXT[k], 2)}, v{vOUT}, {srd(SX)}, s{sOS[k]} offen", 4)])
    return o
nslot = [0]
def slot(k):
    n = nslot[0]; nslot[0] += 1
    c1 = [I(f"v_subrev_u32 v{vFL}, s{sNEED}, v{vFL}"), I(f"v_cmp_eq_u32 s[{sCK}:{sCK+1}], s{sTH}, v{vFL+1}"),
          I(f"v_cmp_gt_u32 vcc, 16, v{vFL}"), I(f"s_add_u32 s{sOS[k]}, s{sNR}, s{sCA}")]
    c2 = [I(f"s_mov_b32 s{sRS+1}, s{sNOFF}"), I(f"s_and_b64 vcc, vcc, s[{sCK}:{sCK+1}]"), I(f"s_cmp_eq_u64 vcc, -1"),
          I(f"s_cselect_b32 s{sMK[k]}, 0, {OOB:#x}"), I(f"s_cbranch_scc0 L_noadv{n}")] + [I(x) for x in adv_ops()] + [I(f"L_noadv{n}:")]
    return [TS('poll', f'slot{n}<') + c1 + TS('poll', f'slot{n}>'), c2] + set_loads(k)
def red_comp(k):
    a = aRD + 16*k; x = RXT[k]; C = x + 4
    o = [[I(f"v_lshlrev_b32 v{C}, 16, v{x}")], [I(f"v_and_b32 v{C+1}, 0xffff0000, v{x}")],
         [I(f"v_lshlrev_b32 v{C+2}, 16, v{x+1}")], [I(f"v_and_b32 v{C+3}, 0xffff0000, v{x+1}")]]
    mm = [[I(f"v_mfma_f32_16x16x32_bf16 {vr(C)}, {ar(aSEL if n < 2 else aSEL2)}, {ar(a+4*n)}, {vr(C)}")] for n in range(4 if k < 5 else 2)]
    fin = [[I(f"v_cvt_pk_bf16_f32 v{x+2}, v{C}, v{C+1}")], [I(f"v_cvt_pk_bf16_f32 v{x+3}, v{C+2}, v{C+3}")]]
    if k < 5: fin = [[I(f"v_or_b32 v{vTC}, s{sMK[k]}, v{vOUT}")]] + fin + [[VM(f"buffer_store_dwordx2 {vr(x+2, 2)}, v{vTC}, {srd(SOUT)}, s{sOS[k]} offen", 4)]]
    else: fin += [[VM(f"buffer_store_dwordx2 {vr(x+2, 2)}, v{vOUTS}, {srd(SOUT)}, s{sSC} offen", 4)]]
    return o, mm, fin
pst = {}
red = Stream('red')
estart = {0: UEND[0] + 3, 1: UEND[1] + 3, 2: UEND[2] + 3, 3: UEND[3] + 3}
for u in range(4):
    o, pst[u] = p2_epi(u)
    for x in o: epi.add(x, nb=estart[u], dl=min(estart[u] + (50 if u == 1 else 30), NG - 1))
pub01 = UEND[1] + 40 + OPT['ack']; pub2 = UEND[2] + 22 + OPT['ack']
ev.append((pub01, [publish(6, pst[0] + pst[1])]))
ev.append((pub2, [publish(7, pst[2])]))
slots = [pub01 + OPT['vis'] + OPT['lat'], pub01 + OPT['vis'] + OPT['lat'] + 34, pub2 + OPT['vis'] + 25][:OPT['nslot']]
for n, g_ in enumerate(slots):
    g_ = min(g_, NG - 14)
    if n != 1: ev.append((g_ - (OPT['lat'] if n == 0 else 25), [[poll_load(vFR)]]))
    else: ev.append((slots[0] + 3, [[poll_load(vFR)]]))
    ev.append((g_, slot(n)))
comps_done = set()
for n, g_ in enumerate(slots):
    if g_ + 60 < NG - 12:
        o, mm, fin = red_comp(n); comps_done.add(n)
        for it in o + mm: red.add(it, nb=g_ + 60)
        for it in fin: red.add(it, nb=g_ + 68)
ev.append((NG - 12, [[poll_load(vFR)]]))
for gp, items in sorted(ev, key=lambda x: x[0]):
    for it in items: side.add(it, nb=gp)
pf = Stream('pf')
def touch(k, g_, vmul, srdb, soff):
    pf.add([I(f"s_cmp_eq_u32 s{sW}, {k % 4}"), I(f"s_cselect_b32 s3, 0, {OOB:#x}"), I(f"v_mul_u32_u24 v{vE+14}, {vmul}, v{vL}"), I(f"v_or_b32 v{vE+14}, s3, v{vE+14}")], nb=g_)
    pf.add([I(x) for x in soff] + [VM(f"buffer_load_dword v{vE+15}, v{vE+14}, {srd(srdb)}, s3 offen", 16)], nb=g_)
if OPT['pf']:
    w16 = f"s_mul_i32 s95, s{sW}, {16*9216}"
    for k, (base, extra) in enumerate([(sHB, 0), (sHB, 128), (sSG, 0)]):
        touch(k, OPT['pf0'] + OPT['pfd']*k, 9216, S1, [f"s_mul_i32 s3, s{sRT}, 4608", w16, f"s_sub_u32 s95, s{base}, s95", f"s_add_u32 s3, s3, s95", f"s_add_u32 s3, s3, {extra}"])
    for k in range(5):
        touch(3 + k, OPT['pf1'] + OPT['pfd']*k, 128, S2, [f"s_and_b32 s3, s2, 3", f"s_mul_i32 s3, s3, {1152*1152}", f"s_lshr_b32 s95, s2, 3",
                                             f"s_mul_i32 s95, s95, {324*128}", f"s_add_u32 s3, s3, s95", f"s_add_u32 s3, s3, {k*8192}"])
    touch(8, OPT['pf1'] + OPT['pfd']*5, 128, SO, [f"s_and_b32 s3, s2, 3", f"s_mul_i32 s3, s3, {144*1152}", f"s_lshr_b32 s95, s2, 3",
                                         f"s_mul_i32 s95, s95, {40*128}", f"s_add_u32 s3, s3, s95"])

s8 = stats(8)
c0n = len(chunks[0].items)
def c0_left(): return any(any(x is d for d in chunks[0].dmas for x in it) for it in pend)
k8 = 0
while c0_left():
    E(pend.popleft()); E(s8[k8:k8+4]); k8 += 4
E(s8[k8:])
E(f"v_add_f32 v{vST}, v{vST}, v{vST+1}"); E(f"v_add_f32 v{vST+2}, v{vST+2}, v{vST+3}")
E(f"v_mov_b32 v{vST+1}, v{vST}"); E(f"v_mov_b32 v{vST+3}, v{vST+2}")
if pend: E(pend.popleft())
E(f"v_permlane32_swap_b32 v{vST}, v{vST+1}"); E(f"v_permlane32_swap_b32 v{vST+2}, v{vST+3}")
E(f"v_add_f32 v{vST}, v{vST}, v{vST+1}"); E(f"v_add_f32 v{vST+2}, v{vST+2}, v{vST+3}")
E(f"v_mul_f32 v{vST}, {f32(1/576)}, v{vST}")
E(f"v_mul_f32 v{vST+2}, {f32(1/576)}, v{vST+2}")
E(f"v_fma_f32 v{vST+2}, -v{vST}, v{vST}, v{vST+2}")
E(f"v_max_f32 v{vST+2}, 0, v{vST+2}")
E(f"v_add_f32 v{vST+2}, {f32(1e-5)}, v{vST+2}")
E(f"v_rsq_f32 v{vRS}, v{vST+2}")
if pend: E(pend.popleft())
E(f"v_mul_f32_e64 v{vNB}, -v{vST}, v{vRS}")
n0 = norm_ops(0)
E(n0[:8])
E(TS('pro', 'c0<')); E(WAITVM(*chunks[0].dmas)); E(TS('pro', 'c0w')); E("s_barrier"); E(TS('pro', 'b0'))
for pos_ in sorted(k for k in reads_at if k < 0):
    for g in reads_at[pos_]: E(emit_reads(g))
E(n0[8:])
STAMP("ga0")

for it in pend: dmaq.add(it, nb=0)
chunks[1].nb = 0
order = chunks[1:18] + [KVC] + chunks[18:]
for ch in order:
    if ch.n == 18 and ch is not KVC:
        for x_ in p2_scalars(): dmaq.add(x_, nb=0)
        dmaq.add(p2_setup, nb=0)
    if ch.kind == 'p2s' and ch.src == 0: dmaq.add(s_setup, nb=0)
    if ch.n >= 18 and ch is not KVC: ch.nb = max(ch.nb, GB_END)
    for k_, it in enumerate(ch.items): dmaq.add(it, nb=(ch.nb if not (ch is KVC and k_ < ch.segstart[0]) else GA_END + OPT['kvchk']), dl=(BKV if ch is KVC else first_use[ch] - PD))
marks = {GA_END: 'gb0', GB_END: 'att0', P1_END: 'att2', ATT_END: 'p2_0'}
if 'p2' in OPT['ts'].split(','):
    for k_ in range(1, 9): marks[ATT_END + 42*k_] = f'q{k_}'
fr_list = [g for g in range(NG) if gaps[g].frag is not None]
fr_idx = {g: k for k, g in enumerate(fr_list)}
backlog = 200.0
last_dma = [-99]; last_vm = [-99]
issued = {id(x) for x in prog}
lastg = {}
def emit_items(ins, g):
    global backlog
    c = 0
    for x in ins:
        E(x); c += x.cost; issued.add(id(x))
        if id(x) in LINES:
            backlog += LINES[id(x)] * 4 * OPT['lc']; lastg[id(x)] = g
    return c
for g, G in enumerate(gaps):
    if g in marks: STAMP(marks[g])
    for s_ in (norm, side, epi, onq, red, pf):
        lastdl = max([k for k, (nb, dl, _) in enumerate(s_.q) if dl <= g] + [-1])
        for _ in range(lastdl + 1):
            nb, dl, ins = s_.q.popleft()
            assert nb <= g, (s_.name, nb, dl, g, ins)
            emit_items(ins, g)
    if g in bar_at:
        key = bar_at[g]
        grp_ = 'b' + key.kind[:2]; nm_ = 'KV' if key is KVC else str(key.n)
        while not all(id(d) in issued for d in key.dmas):
            print("late DMA", nm_, g, file=sys.stderr)
            nb, dl, ins = dmaq.q.popleft(); assert nb <= g; emit_items(ins, g)
        E(TS(grp_, f'B{nm_}<')); E(WAITVM(*key.dmas)); E(TS(grp_, f'B{nm_}|')); E("s_barrier")
        if grp_ != 'bp2': E(TS(grp_, f'B{nm_}>'))
    E(G.pre)
    if G.frag is not None:
        k = fr_idx[g]
        if k % 2 == 0 and k + 1 < len(fr_list) and gaps[fr_list[k + 1]].rd and fr_list[k + 1] - g <= 2:
            E(WAITLG(*gaps[fr_list[k + 1]].rd))
    E(G.m)
    cost = 0
    for gg in reads_at.get(g, []):
        for x in emit_reads(gg):
            E(x)
            if x.kind != 'dsr': cost += 1
    if not reads_at.get(g): cost -= 2
    for x in G.post: E(x); cost += x.cost
    fixed = cost
    vm_done = False
    urgent_dma = dmaq.q and dmaq.q[0][1] - g < OPT['dmarg']
    for s_ in ((dmaq, norm, pf, side, red, onq, epi) if (urgent_dma or g < ATT_END) else (side, red, onq, epi, dmaq)):
        n_ = 0
        while s_.q and s_.q[0][0] <= g:
            ins = s_.q[0][2]
            isvm = any(id(x) in LINES for x in ins)
            if isvm and s_ is dmaq and GB_END <= g < ATT_END and g - last_dma[0] < OPT['attp']: break
            if isvm and GB_END <= g < ATT_END and g - last_vm[0] < OPT['avm']: break
            if isvm and (vm_done or backlog > OPT['tcp']) and not any(id(x) in URGENT for x in ins): break
            lim = max(G.budget, fixed + 1) if s_ is dmaq else G.budget
            if P1_END <= g < ATT_END: lim = fixed + (OPT['a2bud'] if s_ is not side else 6)
            if cost >= lim: break
            s_.q.popleft(); cost += emit_items(ins, g); n_ += 1
            if isvm: vm_done = True; last_vm[0] = g
            if isvm and s_ is dmaq: last_dma[0] = g
            if s_ is dmaq: break
    backlog = max(0.0, backlog - max(33.0, 8 + 4.4 * (cost + 2.5)))
assert not dmaq.q and not norm.q and not epi.q and not onq.q, (len(dmaq.q), len(norm.q), len(epi.q))
for _, _, ins in side.q: E(ins)
STAMP('tail0')
assert not pf.q
for _, _, ins in red.q: E(ins)
def comp(k):
    o, mm, fin = red_comp(k); E(o + mm + fin)
o, pst[4] = p2_epi(4)
E(o)
E(publish(8, pst[3]))
E(slot(3))
E(publish(9, pst[4]))
STAMP('pub9')
E(poll_load(vFR))
for n in range(len(slots)):
    if n not in comps_done: comp(n)
comp(3)
E(poll_check('r9', 9, vFR))
STAMP('got9')
E(set_loads(5))
E("L_fin:")
for k in (3, 4):
    E(f"s_sub_u32 s{sA}, s{sNEED}, s{sT}"); E(f"s_cmp_le_u32 s{sA}, 8"); E(f"s_cselect_b32 s{sMK[k]}, 0, {OOB:#x}")
    E(f"s_add_u32 s{sOS[k]}, s{sNR}, s{sCA}"); E(f"s_min_u32 s{sRS+1}, s{sNOFF}, {WS_USED - PU}")
    E(set_loads(k)); E(adv_ops())
comp(5)
for k in (3, 4): comp(k)
E(f"s_sub_u32 s{sA}, s{sNEED}, s{sT}"); E(f"s_cmp_le_u32 s{sA}, 8")
E("s_cbranch_scc0 L_fin_done")
E("s_waitcnt vmcnt(0)"); E("s_nop 7"); E("s_nop 7")
E("s_branch L_fin")
E("L_fin_done:")
if OPT['timing']:
    E("s_waitcnt vmcnt(0)"); STAMP("end")
    E(f"s_lshl_b32 s{sA}, s2, 10"); E(f"s_lshl_b32 s{sB}, s{sW}, 8"); E(f"s_add_u32 s{sA}, s{sA}, s{sB}"); E(f"s_add_u32 s{sA}, s{sA}, {DBGW}")
    E(RAW("  s_memrealtime s[98:99]\n  s_waitcnt lgkmcnt(0)\n  v_writelane_b32 v11, s98, 63\n  s_nop 4"))
    E(f"v_lshlrev_b32 v{vT0}, 2, v{vL}")
    E(f"buffer_store_dword v11, v{vT0}, {srd(SWS)}, s{sA} offen")
E("L_end:")
E("s_endpgm")

seen = set()
for x in prog:
    if x.kind in ('pvm', 'plg'):
        for t in x.target: assert id(t) in seen, ("wait on unissued op", t)
    seen.add(id(x))
p1 = insert_waits(prog)
p2, nn = insert_nops(p1)
hdr = open('parallel_sum__sliding_block__dense_activation_relu__prompt.s.ref').read().split('\n')
hdr = [l for l in hdr if l.startswith(';') and '@launch' not in l]
txt = "\n".join(hdr) + f"\n; @launch grid=(256,1,1) block=(256,1,1) lds={LDS_TOTAL}\n"
txt += f""".amdgcn_target "amdgcn-amd-amdhsa--gfx950"
.text
.globl {KNAME}
.p2align 8
.type {KNAME},@function
{KNAME}:
"""
txt += render(p2) + "".join(slow_paths) + "L_code_end:\n  s_endpgm\n.fill 64, 4, 0xbf800000\n"
txt += f""".section .rodata,"a"
.p2align 6
.amdhsa_kernel {KNAME}
  .amdhsa_next_free_vgpr 512
  .amdhsa_next_free_sgpr 102
  .amdhsa_accum_offset 256
  .amdhsa_group_segment_fixed_size 0
  .amdhsa_kernarg_size 72
  .amdhsa_user_sgpr_count 2
  .amdhsa_user_sgpr_kernarg_segment_ptr 1
  .amdhsa_system_sgpr_workgroup_id_x 1
.end_amdhsa_kernel
"""
if OPT['timing']: txt += "; stamps: " + " ".join(stamp_names) + "\n"
assert len(stamp_names) <= 62
open(sys.argv[1], 'w').write(txt)
print("instrs", len(p2), "nop states", nn, dict(Counter(x.kind for x in p2)), file=sys.stderr)
print("chunks (n, base, nb, last dma gap, barrier gap)", [(c.n, c.base, getattr(c, 'nb', None), lastg.get(id(c.dmas[-1])), (first_use[c] - PD) if c is not KVC else BKV) for c in chunks + [KVC]], file=sys.stderr)
print("kv stores at", [lastg[id(x)] - GA_END for x in st], file=sys.stderr)
```

```python
import sys, math, struct
from collections import deque, Counter
from asmlib import *

KNAME = "parallel_sum__sliding_block__dense_activation_relu__prompt_kernel"
OPT = dict(ts='', dbgt=0, timing=0, PD=6, budget=4, tcp=180, lc=2.2, kvpub=58, kvpoll=84, kvchk=104, abud=5, a2bud=1, pubat=16, pollat=40, chkat=30, dmarg=45, slot0=3, c1pro=1, pf=0, xco=1, dsp=3, stb=35, pre=2, inl=0, osc=0, kvl=12, attp=5)
for a in sys.argv[2:]:
    k, v = a.split('=')
    OPT[k] = (v if k in ('ts',) else float(v) if k == 'lc' else int(v))

def f32(x): return "0x%08x" % struct.unpack('<I', struct.pack('<f', x))[0]

FBASE, EBASE, KVBASE, PBASE = 0, 0x20000, 0x40000, 0x800000
KVB = 5120
WS_USED = 0x2C00000
DBGW = 0x3000000
WS_REC = 0x4000000 if OPT['timing'] else WS_USED
OOB = 0x80000000
THI = 0x5bd1e995
LDS_TOTAL = 163840
XS = 81920
GA_KS, GA_CH = 8576, 34304
GB_KS, GB_CH = 5312, 21248
IMG = 4288
KVL = 102400
P2A, P2B = 20480, 21504
SX, SQ, S1, S2, SO, SOUT, SWS, SDB, SCODE = 4, 8, 12, 16, 20, 24, 28, 32, 36
def srd(b): return f"s[{b}:{b+3}]"
sI, sJ, sW, sROT = 58, 59, 60, 61
sRT = 62
sKV = 71
sM0K = 74
sXB, sQB, sHA, sHB, sSG = 80, 81, 82, 83, 84
sW2A, sW2B, sWO5, sWO6 = 85, 86, 87, 88
sKVW, sFW, sPB = 89, 90, 91
sT, sTH = 92, 93
sM0X = 94
sLO = 96
sA, sB, sC, sD = 75, 76, 77, 78
sDM = 44
sM0A, sM0B, sM0C, sM0D, sM0E = 46, 47, 48, 49, 50
sCK = 52
sRS = 54
sTS = 98
vL, vT0, vT1, vT2, vT3_ = 1, 2, 3, 4, 5
vA, vT3, vS, vP0, vP1 = 6, 7, 8, 9, 10
vDQ = 12
vDH = 16
vDS = 20
vL16, vVS, vVSC = 21, 22, 23
vRS, vNB = 24, 25
vFL = 26
vH1 = 28
vQ = 60
vR = 76
vE = 96
XN = 112
vXD, vXR, vST = 28, 32, 36
vH2 = 112
vSB = 152
vM0, vM8 = 216, 232
vTT = 248
aT, aG, aF, aSEL = 0, 128, 208, 252
aK, aO, aRD = 0, 72, 104

prog = []
stamp_names = []
def STAMP(name=''):
    if OPT['timing']:
        k = len(stamp_names); stamp_names.append(name)
        prog.append(I("s_waitcnt lgkmcnt(0)"))
        prog.append(RAW(f"  s_memtime s[{sTS}:{sTS+1}]\n  s_waitcnt lgkmcnt(0)\n  v_writelane_b32 v11, s{sTS}, {k}\n  s_nop 4"))
def TS(grp, name):
    if OPT['timing'] and grp in OPT['ts'].split(','):
        x = I('s_nop', kind='lazystamp'); x.note = name; x.R = set(); x.W = set(); x.cost = 0
        return [x]
    return []
def E(t):
    if isinstance(t, list):
        for x in t: E(x)
        return
    x = t if isinstance(t, I) else I(t)
    if x.kind == 'lazystamp':
        STAMP(x.note); return x
    prog.append(x); return x
def vr(b, n=4): return f"v[{b}:{b+n-1}]"
def ar(b, n=4): return f"a[{b}:{b+n-1}]"
LINES = {}
def VM(text, lines):
    x = I(text); LINES[id(x)] = lines; return x
slow_paths = []

class Chunk: pass
chunks = []
def add_chunk(kind, c, size):
    ch = Chunk(); ch.kind = kind; ch.c = c; ch.size = size; ch.n = len(chunks); ch.dmas = []; chunks.append(ch); return ch
for c in range(9): add_chunk('ga', c, GA_CH).base = (c % 4) * GA_CH
for c, b in enumerate([34304, 55552, 76800, 98048, 119296, 0, 21248, 42496, 63744]): add_chunk('gb', c, GB_CH).base = b
pos = 0
for c in range(9):
    for half, sz in (('a', P2A), ('b', P2B)):
        ch = add_chunk('p2' + half, c, sz)
        lim = KVL if (2*c + (half == 'b')) < 4 else LDS_TOTAL
        if pos + sz > lim: pos = 0
        ch.base = pos; pos += sz
KVC = add_chunk('kv', 0, 12*KVB); KVC.base = KVL; KVC.segstart = {}; chunks.pop()

def dma_items(ch):
    c, b = ch.c, ch.base
    it = []
    def grp(m0w, m0c, soff_ins, srdb, voffs, lines, fl=''):
        it.append([I(f"s_add_u32 m0, s{m0w}, {m0c}") if m0w else I(f"s_mov_b32 m0, {m0c}")] + [I(s) for s in soff_ins])
        for (v, imm) in voffs:
            d = VM(f"buffer_load_dwordx4 v{v}, {srd(srdb)}, s{sDM} offen offset:{imm}{fl} lds", lines)
            ch.dmas.append(d); it.append([d])
    four = lambda v, st: [(v + n, n * st) for n in range(4)]
    if ch.kind == 'ga':
        grp(sM0A, b, [f"s_mul_i32 s{sDM}, s{sRT+c}, 1728", f"s_add_u32 s{sDM}, s{sDM}, s{sQB}"], SQ, four(vDQ, 1088), 20)
        grp(sM0A, b + IMG, [f"s_mul_i32 s{sDM}, s{sRT+c}, 4608", f"s_add_u32 s{sDM}, s{sDM}, s{sHA}"], S1, four(vDH, 1088), 8)
    elif ch.kind == 'gb':
        grp(sM0B, b, [f"s_mul_i32 s{sDM+1}, s{sRT+c}, 4608", f"s_add_u32 s{sDM}, s{sDM+1}, s{sHB}"], S1, four(vDH, 1088), 8)
        grp(sM0B, b + IMG, [f"s_add_u32 s{sDM}, s{sDM+1}, s{sSG}"], S1, [(vDS, 0)], 16)
    elif ch.kind == 'p2a':
        grp(sM0C, b, [f"s_add_u32 s{sDM}, s{sW2A}, s{sRT+c}"], S2, four(vDQ, 1024), 8)
        grp(sM0C, b + 4096, [f"s_add_u32 s{sDM}, s{sDM}, {32*1152}"], S2, [(vDQ, 0)], 8)
    elif ch.kind == 'p2b':
        grp(None, b + 20480, [f"s_add_u32 s{sDM}, s{sWO6}, s{sRT+c}"], SO, [(vDQ, 0)], 8)
        grp(sM0D, b, [f"s_add_u32 s{sDM}, s{sW2B}, s{sRT+c}"], S2, four(vDQ, 1024), 8)
        grp(sM0E, b + 16384, [f"s_add_u32 s{sDM}, s{sWO5}, s{sRT+c}"], SO, [(vDQ, 0)], 8)
    else:
        for m in (2, 0, 1):
            ch.segstart[m] = len(it)
            grp(sM0C, b + 4*KVB*m, [f"s_mov_b32 s{sDM}, s{sKV+m}"], SWS, [(vL16, 1024*n) for n in range(4)], OPT['kvl'], ' sc1')
            grp(sM0C, b + 4*KVB*m + 4096, [f"s_add_u32 s{sDM}, s{sDM}, 4096"], SWS, [(vL16, 0)], OPT['kvl'], ' sc1')
    return it
for ch in chunks + [KVC]: ch.items = dma_items(ch)

E(f"s_cmp_ge_u32 s2, 256")
E(f"s_cbranch_scc1 L_end")
E(f"s_load_dwordx16 s[40:55], s[0:1], 0")
E(f"s_load_dwordx2 s[56:57], s[0:1], 64")
if OPT['timing']:
    E("v_mov_b32 v11, 0"); STAMP("start")
    if OPT['dbgt']: E(RAW("  s_memrealtime s[98:99]\n  s_waitcnt lgkmcnt(0)\n  v_writelane_b32 v11, s98, 62\n  s_nop 4"))
E(f"v_lshrrev_b32 v{vT1}, 6, v0")
E(f"v_and_b32 v{vL}, 63, v0")
E(f"v_readfirstlane_b32 s{sW}, v{vT1}")
E(f"v_lshrrev_b32 v{vT0}, 3, v{vL}")
E(f"v_lshrrev_b32 v{vT1}, 4, v{vL}")
E(f"v_and_b32 v{vT2}, 7, v{vL}")
E(f"v_xor_b32 v{vT2}, v{vT2}, v{vT1}")
E(f"v_lshlrev_b32 v{vT2}, 4, v{vT2}")
E(f"v_mul_u32_u24 v{vT0}, 1152, v{vT0}")
E(f"v_add_u32 v{vXD}, v{vT0}, v{vT2}")
E(f"v_xor_b32 v{vXD+1}, 64, v{vXD}")
E(f"v_add_u32 v{vXD+2}, {2*8192}, v{vXD}")
E(f"v_add_u32 v{vXD+3}, {3*8192}, v{vXD+1}")
E(f"v_add_u32 v{vXD+1}, 8192, v{vXD+1}")
E(f"s_bfe_u32 s100, s2, 0x10002")
E(f"s_lshl_b32 s100, s100, 3")
E(f"s_lshr_b32 s{sROT}, s2, 5")
E(f"s_add_u32 s{sI}, s100, s{sROT}")
E(f"s_bfe_u32 s101, s2, 0x20003"); E(f"s_lshl_b32 s101, s101, 1"); E(f"s_add_u32 s101, s101, s{sROT}")
E(f"s_sub_u32 s100, s101, 9"); E(f"s_cmp_ge_u32 s101, 9"); E(f"s_cselect_b32 s101, s100, s101"); E(f"s_lshl_b32 s{sRT}, s101, 7")
E(f"s_lshl_b32 s100, s{sI}, 2")
E(f"s_add_u32 s100, s100, s{sW}")
E(f"s_mul_i32 s{sXB}, s100, {32*1152}")
E(f"s_mul_i32 s{sM0X}, s{sW}, 20480")
E(f"s_add_u32 s{sM0X}, s{sM0X}, {XS}")
E(f"s_mov_b32 s{SX+2}, {2048*1152}"); E(f"s_mov_b32 s{SX+3}, 0x00020000")
E("s_waitcnt lgkmcnt(0)")
E(f"s_mov_b32 s{SX}, s40"); E(f"s_mov_b32 s{SX+1}, s41")
E(TS('pro', 'karg'))

su = deque()
def U(t): su.append(t)
def drain(n):
    for _ in range(min(n, len(su))): E(su.popleft())
def mk_srd(b, p, n):
    U(f"s_mov_b32 s{b}, s{p}"); U(f"s_mov_b32 s{b+1}, s{p+1}"); U(f"s_mov_b32 s{b+2}, {n}"); U(f"s_mov_b32 s{b+3}, 0x00020000")
mk_srd(SWS, 56, WS_REC)
U(f"v_mov_b32 v{vFL}, {EBASE}")
U(RAW(f"""  s_or_b32 s101, s2, s{sW}
  s_cmp_lg_u32 s101, 0
  s_cbranch_scc1 L_noep1
  buffer_load_dword v{vFL+1}, v{vFL}, {srd(SWS)}, 0 offen sc1
L_noep1:"""))
U(RAW(f"  s_getpc_b64 s[{SCODE}:{SCODE+1}]\nL_pc:\n  s_mov_b32 s{SCODE+2}, L_code_end-L_pc\n  s_mov_b32 s{SCODE+3}, 0x00020000"))
U(f"s_lshr_b32 s101, s2, 3"); U(f"s_lshl_b32 s101, s101, 2"); U(f"s_add_u32 s101, s101, s{sW}"); U(f"s_lshl_b32 s101, s101, 9")
U(f"v_lshlrev_b32 v{vT0}, 7, v{vL}"); U(f"v_lshlrev_b32 v{vT1}, 29, v{vL}"); U(f"v_cmp_lt_u32 vcc, 3, v{vL}")
U(f"v_mov_b32 v{vT1}, {OOB:#x}"); U(f"v_cndmask_b32 v{vT0}, v{vT0}, v{vT1}, vcc")
U(f"buffer_load_dword v{vE}, v{vT0}, {srd(SCODE)}, s101 offen")
mk_srd(SQ, 42, 576*3456); mk_srd(SO, 44, 576*1152); mk_srd(S1, 48, 576*9216); mk_srd(S2, 50, 4608*1152)
mk_srd(SOUT, 52, 2048*1152); mk_srd(SDB, 54, 256)
U(f"s_and_b32 s{sA}, s2, 3"); U(f"s_lshl_b32 s{sA}, s{sA}, 2"); U(f"s_bfe_u32 s{sB}, s2, 0x20003"); U(f"s_add_u32 s{sJ}, s{sA}, s{sB}")
U(f"v_and_b32 v{vT0}, 31, v{vL}"); U(f"v_lshrrev_b32 v{vT1}, 5, v{vL}"); U(f"v_bfe_u32 v{vT2}, v{vL}, 1, 3")
U(f"v_xor_b32 v{vT2}, v{vT2}, v{vT1}"); U(f"v_lshlrev_b32 v{vT2}, 4, v{vT2}"); U(f"v_lshl_add_u32 v{vT2}, v{vT0}, 7, v{vT2}")
for s in range(4):
    U(f"v_xor_b32 v{vXR+s}, {32*s}, v{vT2}"); U(f"v_add_u32 v{vXR+s}, s{sM0X}, v{vXR+s}")
for k in range(4): U(f"v_mov_b32 v{vST+k}, 0")
U(f"v_lshlrev_b32 v{vL16}, 4, v{vL}")
U(f"s_mov_b32 s{sLO}, -1"); U(f"s_mov_b32 s{sLO+1}, 0")
U(f"v_lshlrev_b32 v{vT2}, 31, v{vT1}"); U(f"v_add_u32 v{vVSC}, 1024, v{vL16}"); U(f"v_add_u32 v{vVSC}, v{vVSC}, v{vT2}")
U(f"v_bfe_u32 v{vT0}, v{vL}, 2, 2"); U(f"v_bfe_u32 v{vT2}, v{vL}, 4, 1"); U(f"v_and_b32 v{vT3_}, 3, v{vL}")
U(f"v_lshl_add_u32 v{vT3_}, v{vT2}, 2, v{vT3_}")
U(f"v_mul_u32_u24 v{vA}, 1088, v{vT0}"); U(f"v_lshl_add_u32 v{vA}, v{vT1}, 9, v{vA}")
U(f"v_mul_u32_u24 v{vT3}, 40, v{vT3_}"); U(f"v_add3_u32 v{vT3}, v{vT3}, v{vA}, 36"); U(f"v_add_u32 v{vT3}, 36, v{vT3}")
U(f"v_lshl_add_u32 v{vA}, v{vT3_}, 3, v{vA}")
U(f"v_lshl_add_u32 v{vS}, v{vT1}, 3, v{vT0}"); U(f"v_lshlrev_b32 v{vS}, 6, v{vS}"); U(f"v_lshl_add_u32 v{vS}, v{vT3_}, 3, v{vS}")
U(f"v_lshl_add_u32 v{vP0}, v{vT1}, 2, v{vT0}"); U(f"v_lshlrev_b32 v{vP0}, 7, v{vP0}"); U(f"v_lshl_add_u32 v{vP0}, v{vT3_}, 3, v{vP0}")
U(f"v_lshrrev_b32 v{vT2}, 1, v{vT0}"); U(f"v_lshl_add_u32 v{vP0}, v{vT2}, 6, v{vP0}"); U(f"v_xor_b32 v{vP1}, 64, v{vP0}")
U(f"v_lshrrev_b32 v{vT0}, 4, v{vL}"); U(f"v_and_b32 v{vT1}, 15, v{vL}")
U(f"v_mul_u32_u24 v{vT2}, {4*9216}, v{vT0}"); U(f"v_lshl_add_u32 v{vDH}, v{vT1}, 4, v{vT2}")
for n in range(1, 4): U(f"v_add_u32 v{vDH+n}, {n*(9216-1088)}, v{vDH}")
U(f"v_min_u32 v{vT1}, 14, v{vT1}"); U(f"v_mul_u32_u24 v{vT2}, 13, v{vT1}"); U(f"v_lshrrev_b32 v{vT2}, 6, v{vT2}")
U(f"v_mul_u32_u24 v{vT3_}, 5, v{vT2}"); U(f"v_sub_u32 v{vT1}, v{vT1}, v{vT3_}"); U(f"v_lshlrev_b32 v{vT1}, 4, v{vT1}")
U(f"v_min_u32 v{vT1}, 56, v{vT1}"); U(f"v_mul_u32_u24 v{vT3_}, 1152, v{vT2}"); U(f"v_add_u32 v{vT1}, v{vT1}, v{vT3_}")
U(f"s_mul_i32 s{sA}, s{sJ}, 72"); U(f"s_xor_b32 s{sB}, s{sJ}, 1"); U(f"s_mul_i32 s{sC}, s{sB}, 72")
U(f"v_mov_b32 v{vT3_}, s{sC}"); U(f"v_mov_b32 v{vDS}, s{sA}"); U(f"v_cmp_eq_u32 vcc, 0, v{vT2}")
U(f"v_mul_u32_u24 v{vT2}, {4*3456}, v{vT0}"); U(f"v_add_u32 v{vT1}, v{vT1}, v{vT2}")
U(f"v_cndmask_b32 v{vT3_}, v{vT3_}, v{vDS}, vcc"); U(f"v_add_u32 v{vDQ}, v{vT1}, v{vT3_}")
for n in range(1, 4): U(f"v_add_u32 v{vDQ+n}, {n*(3456-1088)}, v{vDQ}")
U(f"v_lshrrev_b32 v{vT0}, 2, v{vL}"); U(f"v_mul_u32_u24 v{vT0}, 9216, v{vT0}"); U(f"v_and_b32 v{vT1}, 3, v{vL}")
U(f"v_lshl_add_u32 v{vDS}, v{vT1}, 4, v{vT0}")
U(f"s_mul_i32 s{sQB}, s{sW}, {16*3456}")
U(f"s_and_b32 s{sA}, s{sJ}, 1"); U(f"s_mul_i32 s{sC}, s{sJ}, 288"); U(f"s_lshl_b32 s{sD}, s{sA}, 5"); U(f"s_add_u32 s{sD}, s{sD}, s{sC}")
U(f"s_xor_b32 s{sA}, s{sA}, 1"); U(f"s_lshl_b32 s{sA}, s{sA}, 8"); U(f"s_add_u32 s{sC}, s{sC}, s{sA}")
U(f"s_mul_i32 s{sA}, s{sW}, {16*9216}"); U(f"s_lshl_b32 s{sHA}, s{sD}, 1"); U(f"s_add_u32 s{sHA}, s{sHA}, s{sA}")
U(f"s_add_u32 s{sHB}, s{sHA}, 256"); U(f"s_lshl_b32 s{sSG}, s{sC}, 1"); U(f"s_add_u32 s{sSG}, s{sSG}, s{sA}")
U(f"s_mul_i32 s{sM0A}, s{sW}, {GA_KS}"); U(f"s_mul_i32 s{sM0B}, s{sW}, {GB_KS}"); U(f"s_mul_i32 s{sM0C}, s{sW}, 5120")
U(f"s_lshl_b32 s{sM0D}, s{sW}, 12"); U(f"s_lshl_b32 s{sM0E}, s{sW}, 10")
U(f"s_mul_i32 s{sA}, s{sW}, 40"); U(f"s_add_u32 s{sA}, s{sA}, s{sD}"); U(f"s_mul_i32 s{sW2A}, s{sA}, 1152")
U(f"s_lshl_b32 s{sA}, s{sW}, 5"); U(f"s_add_u32 s{sA}, s{sA}, s{sD}"); U(f"s_add_u32 s{sA}, s{sA}, 160")
U([I(f"s_cmp_eq_u32 s{sW}, 3"), I(f"s_cselect_b32 s{sA}, s{sC}, s{sA}")]); U(f"s_mul_i32 s{sW2B}, s{sA}, 1152")
U(f"s_mul_i32 s{sC}, s{sJ}, 36"); U(f"s_lshl_b32 s{sA}, s{sW}, 3"); U(f"s_lshr_b32 s{sD}, s{sW}, 1"); U(f"s_lshl_b32 s{sD}, s{sD}, 2")
U(f"s_add_u32 s{sA}, s{sA}, s{sD}"); U(f"s_add_u32 s{sA}, s{sA}, s{sC}"); U(f"s_mul_i32 s{sWO5}, s{sA}, 1152")
U(f"s_add_u32 s{sC}, s{sC}, 16"); U(f"s_mul_i32 s{sWO6}, s{sC}, 1152")
for m in range(3):
    U(f"s_add_i32 s{sA}, s{sI}, {m-2}")
    U([I(f"s_cmp_lt_i32 s{sA}, 0"), I(f"s_cselect_b32 s{sA}, s{sI}, s{sA}")])
    U(f"s_lshl_b32 s{sB}, s{sJ}, 4"); U(f"s_add_u32 s{sA}, s{sA}, s{sB}"); U(f"s_lshl_b32 s{sA}, s{sA}, 2"); U(f"s_add_u32 s{sA}, s{sA}, s{sW}")
    U(f"s_mul_i32 s{sA}, s{sA}, {KVB}"); U(f"s_add_u32 s{sKV+m}, s{sA}, {KVBASE}")
U(f"s_xor_b32 s{sA}, s{sJ}, 1"); U(f"s_lshl_b32 s{sA}, s{sA}, 4"); U(f"s_add_u32 s{sA}, s{sA}, s{sI}"); U(f"s_lshl_b32 s{sA}, s{sA}, 2")
U(f"s_add_u32 s{sA}, s{sA}, s{sW}"); U(f"s_mul_i32 s{sA}, s{sA}, {KVB}"); U(f"s_add_u32 s{sKVW}, s{sA}, {KVBASE}")
U(f"s_lshl_b32 s{sA}, s{sI}, 2"); U(f"s_add_u32 s{sA}, s{sA}, s{sW}"); U(f"s_lshl_b32 s{sA}, s{sA}, 4"); U(f"s_add_u32 s{sA}, s{sA}, s{sJ}")
U(f"s_lshl_b32 s{sFW}, s{sA}, 3")
U(f"s_mul_i32 s{sPB}, s{sI}, {9*262144}"); U(f"s_add_u32 s{sPB}, s{sPB}, {PBASE}")
U(f"v_and_b32 v{vT0}, 15, v{vL}"); U(f"v_and_b32 v{vT1}, 1, v{vL}"); U(f"v_lshlrev_b32 v{vT1}, 4, v{vT1}")
U(f"v_mov_b32 v{vT2}, 0x3f80"); U(f"v_lshlrev_b32 v{vT2}, v{vT1}, v{vT2}"); U(f"v_lshrrev_b32 v{vT0}, 1, v{vT0}")
for d in range(4):
    U([I(f"v_cmp_eq_u32 vcc, {d}, v{vT0}"), I("s_nop 1"), I(f"v_cndmask_b32 v{vT1}, 0, v{vT2}, vcc")])
    U(f"v_accvgpr_write_b32 a{aSEL+d}, v{vT1}")

vFW, vFK, vFR, vFL2 = 4, 5, 0, 24
vVA, vVBb = 2, 3
aST = 240
vY0, vY1, vY2 = vE + 4, vE + 5, vE + 6
for x_ in [f"v_bfe_u32 v{vY0}, v{vL}, 2, 3", f"v_lshlrev_b32 v{vY0}, 13, v{vY0}", f"v_and_b32 v{vY1}, 3, v{vL}", f"v_lshl_add_u32 v{vY0}, v{vY1}, 5, v{vY0}",
           f"v_lshrrev_b32 v{vY1}, 5, v{vL}", f"v_lshl_add_u32 v{vY0}, v{vY1}, 4, v{vY0}", f"s_lshl_b32 s{sA}, s{sW}, 16", f"s_lshl_b32 s{sB}, s{sJ}, 9",
           f"s_add_u32 s{sA}, s{sA}, s{sB}", f"v_add_u32 v{vY0}, s{sA}, v{vY0}", f"v_accvgpr_write_b32 a{aST}, v{vY0}",
           f"v_lshrrev_b32 v{vY0}, 4, v{vL}", f"v_lshlrev_b32 v{vY0}, 9, v{vY0}", f"v_and_b32 v{vY1}, 15, v{vL}", f"v_lshl_add_u32 v{vY0}, v{vY1}, 4, v{vY0}",
           f"s_lshl_b32 s{sA}, s{sJ}, 14", f"s_and_b32 s{sB}, s{sW}, 1", f"s_lshl_b32 s{sC}, s{sB}, 13", f"s_add_u32 s{sA}, s{sA}, s{sC}",
           f"s_lshr_b32 s{sC}, s{sW}, 1", f"s_lshl_b32 s{sD}, s{sC}, 8", f"s_add_u32 s{sA}, s{sA}, s{sD}", f"v_add_u32 v{vY0}, s{sA}, v{vY0}",
           f"v_accvgpr_write_b32 a{aST+1}, v{vY0}",
           f"s_lshl_b32 s{sA}, s{sI}, 7", f"s_lshl_b32 s{sD}, s{sJ}, 3", f"s_add_u32 s{sA}, s{sA}, s{sD}",
           f"s_lshl_b32 s{sB}, s{sB}, 2", f"s_add_u32 s{sA}, s{sA}, s{sB}", f"s_mul_i32 s{sA}, s{sA}, 1152", f"s_lshl_b32 s{sC}, s{sC}, 6",
           f"s_add_u32 s{sA}, s{sA}, s{sC}", f"v_bfe_u32 v{vY0}, v{vL}, 1, 2", f"v_mul_u32_u24 v{vY0}, 1152, v{vY0}", f"v_bfe_u32 v{vY1}, v{vL}, 3, 1",
           f"v_lshl_add_u32 v{vY0}, v{vY1}, 5, v{vY0}", f"v_bfe_u32 v{vY1}, v{vL}, 4, 1", f"v_lshl_add_u32 v{vY0}, v{vY1}, 4, v{vY0}", f"v_and_b32 v{vY1}, 1, v{vL}",
           f"v_lshl_add_u32 v{vY0}, v{vY1}, 3, v{vY0}", f"v_lshlrev_b32 v{vY1}, 26, v{vL}", f"v_and_b32 v{vY1}, {OOB:#x}, v{vY1}",
           f"v_add3_u32 v{vY0}, v{vY0}, v{vY1}, s{sA}", f"v_accvgpr_write_b32 a{aST+2}, v{vY0}",
           f"v_lshrrev_b32 v{vY0}, 3, v{vL}", f"v_bfe_u32 v{vY1}, v{vL}, 4, 1", f"v_lshlrev_b32 v{vY1}, 2, v{vY1}",
           f"v_and_b32 v{vY2}, 7, v{vL}", f"v_xor_b32 v{vY2}, v{vY2}, v{vY1}", f"v_mul_u32_u24 v{vY0}, 1152, v{vY0}",
           f"v_lshl_add_u32 v{vY0}, v{vY2}, 4, v{vY0}", f"v_accvgpr_write_b32 a{aST+3}, v{vY0}"]: U(x_)
for x_ in [f"v_bfe_u32 v{vT0}, v{vL}, 2, 2", f"v_min_u32 v{vT0}, 2, v{vT0}", f"s_sub_u32 s{sA}, s{sI}, 2", f"v_add_u32 v{vT0}, s{sA}, v{vT0}"]: U(x_)
for x_ in [f"v_mov_b32 v{vT1}, s{sI}", f"v_cmp_gt_i32 vcc, 0, v{vT0}", f"s_xor_b32 s{sA}, s{sJ}, 1", f"s_lshl_b32 s{sA}, s{sA}, 3",
          f"v_cndmask_b32 v{vT0}, v{vT0}, v{vT1}, vcc"]: U(x_)
for x_ in [f"v_lshlrev_b32 v{vT0}, 9, v{vT0}", f"v_and_b32 v{vT1}, 3, v{vL}", f"v_lshl_add_u32 v{vT0}, v{vT1}, 7, v{vT0}",
          f"v_add_u32 v{vFK}, s{sA}, v{vT0}"]: U(x_)
for x_ in [f"v_cmp_eq_u32 vcc, 0, v{vL}", f"v_mov_b32 v{vFW}, {OOB:#x}", f"s_nop 0", f"v_cndmask_b32_e64 v{vFW}, v{vFW}, 0, vcc"]: U(x_)
for x_ in [f"s_lshl_b32 s{sA}, s{sI}, 9", f"s_lshr_b32 s{sD}, s{sJ}, 2", f"s_lshl_b32 s{sD}, s{sD}, 7", f"s_add_u32 s{sA}, s{sA}, s{sD}"]: U(x_)
for x_ in [f"v_and_b32 v{vT1}, 15, v{vL}", f"v_lshlrev_b32 v{vT1}, 3, v{vT1}", f"v_add_u32 v{vFR}, s{sA}, v{vT1}"]: U(x_)
tabA = bytes([0, 64, 1, 65, 128, 128, 255, 255]); tabB = bytes([192, 129, 193, 254, 128, 128, 255, 255])
lo = lambda b: "0x%08x" % int.from_bytes(b[:4], 'little')
hi = lambda b: "0x%08x" % int.from_bytes(b[4:], 'little')
vX0, vX1 = vR, vR + 1
for x_ in [f"v_bfe_u32 v{vX0}, v{vL}, 4, 1", f"v_and_b32 v{vX1}, 3, v{vL}", f"v_lshl_add_u32 v{vX0}, v{vX0}, 2, v{vX1}",
          f"v_or_b32 v{vX0}, 0x0c0c0c00, v{vX0}"]: U(x_)
for x_ in [f"s_mov_b32 s{sA}, {hi(tabA)}", f"v_mov_b32 v{vX1}, {lo(tabA)}", f"v_perm_b32 v{vVA}, s{sA}, v{vX1}, v{vX0}"]: U(x_)
for x_ in [f"v_mov_b32 v{vX1}, {lo(tabB)}", f"v_perm_b32 v{vVBb}, s{sA}, v{vX1}, v{vX0}", f"v_bfe_u32 v{vX0}, v{vL}, 2, 2", f"v_lshrrev_b32 v{vX1}, 5, v{vL}"]: U(x_)
for x_ in [f"v_lshl_add_u32 v{vX0}, v{vX1}, 2, v{vX0}", f"v_lshlrev_b32 v{vX0}, 4, v{vX0}", f"s_add_u32 s{sM0K}, s{sM0C}, {KVL}",
          f"v_add_u32 v{vX0}, s{sM0K}, v{vX0}"]: U(x_)
for x_ in [f"v_add_u32 v{vX0}, 2560, v{vX0}", f"v_add_u32 v{vX1}, 2, v{vVA}", f"v_cmp_lt_u32 vcc, 0xfd, v{vVA}", f"v_add_u32 v{vR+2}, 2, v{vVBb}"]: U(x_)
for x_ in [f"v_cndmask_b32 v{vVA}, v{vVA}, v{vX1}, vcc", f"v_cmp_lt_u32 vcc, 0xfd, v{vVBb}", f"v_lshl_add_u32 v{vVA}, v{vVA}, 3, v{vX0}",
          f"v_mov_b32 v{vR+18}, 0", f"v_cndmask_b32 v{vVBb}, v{vVBb}, v{vR+2}, vcc"]: U(x_)
for x_ in [f"v_lshl_add_u32 v{vVBb}, v{vVBb}, 3, v{vX0}", f"v_mov_b32 v{vR+19}, 0"]: U(x_)


def rt_next(c): return [I(f"s_add_u32 s{sRT+c}, s{sRT+c-1}, 128"), I(f"s_cmp_eq_u32 s{sRT+c}, 1152"), I(f"s_cselect_b32 s{sRT+c}, 0, s{sRT+c}")]
xh = {}
def x_items(cb):
    it = [(rt_next(cb) if cb else []) + [I(f"s_add_u32 m0, s{sM0X}, {(cb % 5)*4096}"), I(f"s_add_u32 s100, s{sXB}, s{sRT+cb}")]]
    xh[cb] = []
    for g in range(4):
        d = I(f"buffer_load_dwordx4 v{vXD+g}, {srd(SX)}, s100 offen offset:{g*1024} lds"); xh[cb].append(d); it.append([d])
    return it
per = (len(su) + 17) // 18
nx = 0
for cb in range(5):
    for it in x_items(cb):
        E(it)
        if it[0].kind == 'dma':
            nx += 1
            if nx >= 2: drain(per)
drain(999)
E(TS('pro', 'xiss'))
def stats(cb):
    o = []
    for d in range(16):
        x = XN + 16*cb + d
        o += [I(f"v_dot2c_f32_bf16 v{vST + (d & 1)}, 0x3f803f80, v{x}"), I(f"v_dot2c_f32_bf16 v{vST + 2 + (d & 1)}, v{x}, v{x}")]
    return o
pend = deque()
def stats_mix(cb, every):
    o = stats(cb)
    for k in range(0, 32, every):
        E(o[k:k+every])
        if pend:
            E(pend.popleft())
            if pend and prog[-1].kind != 'dma': E(pend.popleft())
for cb in range(9):
    E(TS('pro', f'w{cb}<')); E(WAITVM(*xh[cb])); E(TS('pro', f'w{cb}>'))
    rds = [E(f"ds_read_b128 {vr(XN + 16*cb + 4*s)}, v{vXR+s} offset:{(cb % 5)*4096}") for s in range(4)]
    if cb >= 1: stats_mix(cb - 1, 8)
    while pend and cb <= 4: E(pend.popleft())
    if cb + 5 <= 8:
        E(WAITLG(*rds))
        pend.extend(x_items(cb + 5))
    if cb == 1:
        E(RAW(f"""  s_or_b32 s101, s2, s{sW}
  s_cmp_lg_u32 s101, 0
  s_cbranch_scc1 L_noep2
  v_and_b32 v{vFL+1}, -16, v{vFL+1}
  v_add_u32 v{vFL+1}, 16, v{vFL+1}
  buffer_store_dword v{vFL+1}, v{vFL}, {srd(SWS)}, 0 offen sc1
  v_mov_b32 v{vE+2}, 0
  v_or_b32 v{vE+3}, 1, v{vFL+1}
  buffer_store_dword v{vE+3}, v{vE+2}, {srd(SDB)}, 0 offen sc1
  s_nop 1
L_noep2:"""))
    if cb == 4:
        pend.extend(chunks[0].items)
        if OPT['c1pro']: pend.extend(chunks[1].items); chunks[1].items = []
    last_rd = rds
E(WAITLG(*last_rd))
STAMP("xdone")

class Gap:
    def __init__(s): s.pre = []; s.post = []; s.frag = None; s.chunk = None; s.budget = OPT['budget']; s.rd = None
gaps = []
basecur = {vA: 0, vT3: 0, vS: 0, vP0: 0, vP1: 0}
def add_mfma(text, frag=None, chunk=None):
    g = Gap(); g.text = text; g.frag = frag; g.chunk = chunk; gaps.append(g); return len(gaps) - 1
def mf(D, A, B, C): return f"v_mfma_f32_32x32x16_bf16 {D}, {A}, {B}, {C}"
for c in range(9):
    ch = chunks[c]
    for s in range(4):
        ks = 4*c + s
        for T in range(8):
            off = ch.base + s*GA_KS
            if T < 3: fr = (vA, off + 80*T, 256)
            elif T == 3: fr = (vT3, off, 256)
            else: fr = (vA, off + IMG + 64*(T-4), 256)
            D = ar(aT + 16*T, 16)
            add_mfma(lambda A, D=D, ks=ks: mf(D, A, vr(XN + 4*ks), D if ks else "0"), fr, ch)
GA_END = len(gaps)
for c in range(9):
    ch = chunks[9 + c]
    for s in range(4):
        ks = 4*c + s
        for T in range(5):
            off = ch.base + s*GB_KS
            fr = (vA, off + 64*T, 256) if T < 4 else (vS, off + IMG, 256)
            D = ar(aG + 16*T, 16)
            add_mfma(lambda A, D=D, ks=ks: mf(D, A, vr(XN + 4*ks), D if ks else "0"), fr, ch)
GB_END = len(gaps)
TORD = [1, 2, 3, 4, 5, 6, 7, 0, 8]
steps = [(h, t) for h in range(2) for t in TORD]
def Kf(h, t): return ar(aK + 36*h + 4*t)
def Q1(h): return vr(vQ + 4*h)
def Q2(h): return vr(vQ + 8 + 4*h)
P1 = []
for u, (h, t) in enumerate(steps):
    S = vr(vSB + 16*(u % 3), 16)
    C = vr(vM0, 16) if t == 0 else (vr(vM8, 16) if t == 8 else "0")
    P1.append((add_mfma(mf(S, Kf(h, t), Q1(h), C)), add_mfma(mf(S, vr(vR + 2*t), Q2(h), S))))
P1_END = len(gaps)
vCM = vE
basecur[vVA] = 0; basecur[vVBb] = 0
P2s = []
NS = len(steps)
for u in range(NS + 2):
    ent = {}
    if u < NS:
        h, t = steps[u]
        S = vr(vSB + 16*(u % 4), 16)
        ent['qa'] = add_mfma(mf(S, Kf(h, t), Q1(h), S if t in (0, 8) else vr(vCM, 16)))
        ent['qb'] = add_mfma(mf(S, vr(vR + 2*t), Q2(h), S))
    if u >= 2:
        h, t = steps[u - 2]
        Pb = vSB + 16*((u - 2) % 4)
        O = ar(aO + 16*h, 16)
        first = (TORD.index(t) == 0)
        for s in range(2):
            fr = (vVA if h == 0 else vVBb, KVB*t + 256*s, 128)
            ent['pv%d' % s] = add_mfma(lambda A, O=O, Pb=Pb, s=s, first=first: mf(O, A, vr(Pb + 4*s), "0" if (first and s == 0) else O), fr, KVC)
    P2s.append(ent)
ATT_END = len(gaps)
vOX = vQ
vPK = 232
def hfrag(ks):
    if ks < 8: return vr(vH1 + 4*ks)
    if ks < 18: return vr(vH2 + 4*(ks - 8))
    return vr(vOX + 4*(ks - 18))
PAIR0 = []
for c in range(9):
    PAIR0.append(len(gaps))
    for ks in range(21):
        ch = chunks[18 + 2*c + (ks >= 10)]
        off = ch.base + (ks if ks < 10 else ks - 10) * 2048
        for T in range(2):
            D = vr(vSB + 32*(c & 1) + 16*T, 16)
            add_mfma(lambda A, D=D, ks=ks: mf(D, A, hfrag(ks), D if ks else "0"), (vP0 + T, off, 1024 if ks < 20 else None), ch)
NG = len(gaps)

PD = OPT['PD']
first_use, last_use = {}, {}
for g, G in enumerate(gaps):
    if G.chunk is not None:
        first_use.setdefault(G.chunk, g); last_use[G.chunk] = g
bar_at = {}
for ch in chunks[1:]: bar_at[first_use[ch] - PD] = ch
BKV = GB_END - 6
assert BKV not in bar_at
bar_at[BKV] = KVC
REL = Chunk(); REL.kind = 'rel'; REL.n = 99; REL.dmas = []
bar_at[P1_END - 8] = REL
bars = sorted(bar_at)
def release_gap(key): return min(b for b in bars if b > last_use[key])
for ch in chunks[2:] + [KVC]:
    nb = 0
    for o in (chunks[:ch.n] if ch is not KVC else chunks[:18]):
        if o.base < ch.base + ch.size and ch.base < o.base + o.size: nb = max(nb, release_gap(o))
    if ch.base + ch.size > KVL and ch.kind.startswith('p2'): nb = max(nb, release_gap(KVC))
    ch.nb = nb

fragno = 0
reads_at = {}
for g, G in enumerate(gaps):
    if G.frag is None:
        G.m = I(G.text); continue
    G.fb = aF + 4*(fragno % 8); fragno += 1
    G.m = I(G.text(ar(G.fb)))
    reads_at.setdefault(g - PD, []).append(g)
def emit_reads(g):
    G = gaps[g]; bv, off, d = G.frag
    outl = []
    if off < basecur[bv] or off + (d or 0) - basecur[bv] > 65535 - 8:
        nbase = off & ~0x7ff
        outl.append(I(f"v_add_u32 v{bv}, {(nbase - basecur[bv]) & 0xffffffff:#x}, v{bv}"))
        basecur[bv] = nbase
    G.rd = [I(f"ds_read_b64_tr_b16 {ar(G.fb, 2)}, v{bv} offset:{off - basecur[bv]}")]
    if d is not None: G.rd.append(I(f"ds_read_b64_tr_b16 {ar(G.fb + 2, 2)}, v{bv} offset:{off + d - basecur[bv]}"))
    return outl + G.rd

class Stream:
    def __init__(s, name): s.q = deque(); s.name = name
    def add(s, ins, nb=0, dl=10**9):
        ins = [x if isinstance(x, I) else I(x) for x in (ins if isinstance(ins, list) else [ins])]
        s.q.append((nb, dl, ins)); return ins[-1]
norm, epi, side, dmaq = Stream('norm'), Stream('epi'), Stream('side'), Stream('dma')

def norm_ops(ks):
    o = []
    T = lambda d: vE + 2*d
    for d in range(4): o += [f"v_lshlrev_b32 v{T(d)}, 16, v{XN+4*ks+d}", f"v_and_b32 v{T(d)+1}, 0xffff0000, v{XN+4*ks+d}"]
    for d in range(4): o += [f"v_fma_f32 v{T(d)}, v{T(d)}, v{vRS}, v{vNB}", f"v_fma_f32 v{T(d)+1}, v{T(d)+1}, v{vRS}, v{vNB}"]
    for d in range(4): o += [f"v_cvt_pk_bf16_f32 v{XN+4*ks+d}, v{T(d)}, v{T(d)+1}"]
    return o
for ks in range(1, 36):
    for x in norm_ops(ks): norm.add(x, nb=max(0, 8*ks - 24), dl=8*ks - 1)

def chk_ops(need, fl):
    return [f"s_add_u32 s{sA}, s{sT}, {need}", f"v_subrev_u32 v{fl}, s{sA}, v{fl}", f"v_cmp_eq_u32 s[{sCK}:{sCK+1}], s{sTH}, v{fl+1}",
            f"v_cmp_ge_u32 vcc, {15 - need}, v{fl}", f"s_and_b64 vcc, vcc, s[{sCK}:{sCK+1}]", f"s_cmp_eq_u64 vcc, -1"]
def poll_load(vaddr, lines=1): return VM(f"buffer_load_dwordx2 {vr(vFL, 2)}, v{vaddr}, {srd(SWS)}, 0 offen sc1", lines)
def poll_check(name, need, vaddr):
    chk = chk_ops(need, vFL)
    slow_paths.append(f"""L_slow_{name}:
  s_mov_b32 s{sD}, 0
L_spin_{name}:
  buffer_load_dwordx2 v[{vFL}:{vFL+1}], v{vaddr}, {srd(SWS)}, 0 offen sc1
  s_waitcnt vmcnt(0)
  """ + "\n  s_nop 1\n  ".join(chk) + f"""
  s_cbranch_scc1 L_back_{name}
  s_add_u32 s{sD}, s{sD}, 1
  s_cmp_lt_u32 s{sD}, 0x40000
  s_cbranch_scc1 L_spin_{name}
  s_branch L_back_{name}
""")
    g_ = 'gb' if name == 'kv' else 'poll'
    return TS(g_, f'poll{name}<') + [I(x) for x in chk] + [I(f"s_cbranch_scc0 L_slow_{name}"), I(f"L_back_{name}:")] + TS(g_, f'poll{name}>')
side.add([VM(f"buffer_load_dword v{vFL}, v{vFW}, {srd(SDB)}, 0 offen sc1", 1)], nb=100)
slow_paths.append(f"""L_slow_tag:
  s_mov_b32 s{sD}, 0
L_spin_tag:
  s_sleep 2
  buffer_load_dword v{vFL}, v{vFW}, {srd(SDB)}, 0 offen sc1
  s_waitcnt vmcnt(0)
  v_readfirstlane_b32 s{sT}, v{vFL}
  s_nop 1
  s_cmp_lg_u32 s{sT}, 0
  s_cbranch_scc1 L_back_tag
  s_add_u32 s{sD}, s{sD}, 1
  s_cmp_lt_u32 s{sD}, 0x40000
  s_cbranch_scc1 L_spin_tag
  s_branch L_back_tag
""")
side.add([f"v_readfirstlane_b32 s{sT}, v{vFL}", f"s_cmp_lg_u32 s{sT}, 0", "s_cbranch_scc0 L_slow_tag", "L_back_tag:",
          f"s_and_b32 s{sT}, s{sT}, -16", f"s_xor_b32 s{sTH}, s{sT}, {THI:#x}"], nb=160)
vFW, vFK, vFR, vFL2 = 4, 5, 0, 24
p2_setup = [f"v_accvgpr_read_b32 v{vDQ}, a{aST+3}"] + [f"v_add_u32 v{vDQ+n}, {n*8192}, v{vDQ}" for n in range(1, 4)]

e0 = GA_END + 2
CSC = math.log2(math.e) / math.sqrt(18.0)
def rd_cvt(acc, n, dst, scale=None, relu=False, nb=e0, tb=vE, dl=10**9):
    for k0 in range(0, n, 8):
        m = min(8, n - k0)
        for k in range(m): epi.add(f"v_accvgpr_read_b32 v{tb+k}, a{acc+k0+k}", nb=nb, dl=dl)
        if scale:
            for k in range(m): epi.add(f"v_mul_f32 v{tb+k}, {scale}, v{tb+k}", nb=nb, dl=dl)
        for k in range(0, m, 2): epi.add(f"v_cvt_pk_bf16_f32 v{dst+(k0+k)//2}, v{tb+k}, v{tb+k+1}", nb=nb, dl=dl)
        if relu:
            for k in range(0, m, 2): epi.add(f"v_pk_max_i16 v{dst+(k0+k)//2}, v{dst+(k0+k)//2}, 0", nb=nb, dl=dl)
LO = f"s[{sLO}:{sLO+1}]"
kP, x8, vP_ = vH1, vH1 + 8, vH1 + 16
st = []
URGENT = set()
def KVST(text, lines):
    x = VM(text, lines); epi.add(x, nb=e0); st.append(x); URGENT.add(id(x))
rd_cvt(aT + 16, 16, kP)
KVST(f"buffer_store_dwordx4 {vr(kP)}, v{vL16}, {srd(SWS)}, s{sKVW} offen sc1", 8)
rd_cvt(aT + 48 + 4, 8, x8)
epi.add(f"v_cndmask_b32_e64 v{x8+6}, 0, v{kP+4}, {LO}", nb=e0); epi.add(f"v_cndmask_b32_e64 v{x8+7}, 0, v{x8+1}, {LO}", nb=e0)
epi.add(f"v_cndmask_b32_e64 v{kP+4}, v{kP+4}, v{x8}, {LO}", nb=e0)
epi.add(f"v_lshrrev_b32 v{vE+8}, 1, v{vL16}", nb=e0)
KVST(f"buffer_store_dwordx4 {vr(kP+4)}, v{vL16}, {srd(SWS)}, s{sKVW} offen offset:1024 sc1", 8)
epi.add(f"v_mov_b32 v{x8+4}, 0x3f803f80", nb=e0); epi.add(f"v_mov_b32 v{x8+5}, 0x3f803f80", nb=e0)
rd_cvt(aT + 32, 8, vP_)
KVST(f"buffer_store_dwordx2 {vr(x8+6, 2)}, v{vE+8}, {srd(SWS)}, s{sKVW} offen offset:2048 sc1", 4)
rd_cvt(aT + 40, 8, vP_ + 4)
KVST(f"buffer_store_dwordx4 {vr(vP_)}, v{vL16}, {srd(SWS)}, s{sKVW} offen offset:2560 sc1", 8)
rd_cvt(aT, 8, vQ, scale=f32(CSC))
KVST(f"buffer_store_dwordx4 {vr(vP_+4)}, v{vL16}, {srd(SWS)}, s{sKVW} offen offset:3584 sc1", 8)
rd_cvt(aT + 8, 8, vQ + 4, scale=f32(CSC))
KVST(f"buffer_store_dwordx4 {vr(x8+2)}, v{vVSC}, {srd(SWS)}, s{sKVW} offen offset:3584 sc1", 4)
rd_cvt(aT + 48, 4, vQ + 14, scale=f32(CSC))
epi.add(f"v_mov_b32 v{vQ+13}, 0x3f80", nb=e0)
epi.add(f"v_cndmask_b32_e64 v{vQ+8}, v{vQ+13}, v{vQ+4}, {LO}", nb=e0)
epi.add(f"v_cndmask_b32_e64 v{vQ+4}, v{vQ+4}, v{vQ+14}, {LO}", nb=e0)
epi.add(f"v_cndmask_b32_e64 v{vQ+13}, v{vQ+13}, v{vQ+15}, {LO}", nb=e0)
for k in (9, 10, 11, 12, 14, 15): epi.add(f"v_mov_b32 v{vQ+k}, 0", nb=e0)
for T in range(4): rd_cvt(aT + 64 + 16*T, 16, vH1 + 8*T, relu=True, dl=BKV - 1)

def publish(count, waits):
    g_ = 'gb' if count == 1 else 'pub'
    return TS(g_, f'pub{count}<') + [WAITVM(*waits)] + TS(g_, f'pub{count}>') + [I(f"s_add_u32 s{sB}, s{sT}, {count}"), I(f"v_mov_b32 v{vFL2}, s{sB}"),
            VM(f"buffer_store_dwordx2 {vr(vFL2, 2)}, v{vFW}, {srd(SWS)}, s{sFW} offen sc1", 1)]
side.add(f"v_mov_b32 v{vFL2+1}, s{sTH}", nb=GA_END + 1)
side.add(publish(1, st), nb=GA_END + OPT['kvpub'])
side.add(poll_load(vFK, 12), nb=GA_END + OPT['kvpoll'])
kvchk = side.add(poll_check('kv', 1, vFK), nb=GA_END + OPT['kvchk'], dl=GA_END + OPT['kvchk'])
KVC.nb = max(KVC.nb, GA_END + OPT['kvchk'])
vKL, vKXL = vVS, vVSC
side.add([f"v_add_u32 v{vKL}, s{sM0K}, v{vL16}", f"v_lshrrev_b32 v{vKXL}, 1, v{vL16}", f"v_add_u32 v{vKXL}, s{sM0K}, v{vKXL}"], nb=GA_END + OPT['kvchk'], dl=BKV)
rld = []
def kread(h, t): return I(f"ds_read_b128 {Kf(h, t)}, v{vKL} offset:{KVB*t + 1024*h}")
for k, t in enumerate(TORD):
    x = I(f"ds_read_b64 {vr(vR + 2*t, 2)}, v{vKXL} offset:{KVB*t + 2048}"); rld.append(x)
    gaps[BKV + k // 2].post += [x]
for k, (h, t) in enumerate(steps):
    gaps[min(BKV + 2 + k, P1[k][0] - 3) if k >= 4 else BKV + k].post += [kread(h, t)]
blk = [f"  s_cmp_ge_u32 s{sI}, 2", "  s_cbranch_scc1 L_nobias", f"  s_lshl_b32 s{sA}, s{sI}, 2", f"  s_add_u32 s{sA}, s{sA}, s{sW}",
       "  s_mov_b32 exec_lo, 0"]
for t in range(8):
    blk += [f"  s_cmp_ge_u32 s{sA}, {8 - t}", f"  s_cbranch_scc1 L_bias_done", f"  v_mov_b32 v{vR+2*t}, 0xf149", f"  v_mov_b32 v{vR+2*t+1}, 0xf149"]
blk += ["L_bias_done:", "  s_mov_b32 exec_lo, -1", "  s_nop 1", "L_nobias:"]
gaps[P1[0][1]].pre += [WAITLG(*rld), RAW("\n".join(blk))]

epi.add([f"v_and_b32 v{vTT}, 31, v{vL}", f"v_lshrrev_b32 v{vTT+1}, 5, v{vL}", f"v_lshlrev_b32 v{vTT+1}, 2, v{vTT+1}",
         f"v_sub_u32 v{vTT}, v{vTT}, v{vTT+1}"], nb=GB_END)
epi.add([f"v_cvt_f32_i32 v{vTT}, v{vTT}", f"v_add_f32 v{vTT}, 0.5, v{vTT}", f"v_mul_f32 v{vTT+1}, {f32(1e30)}, v{vTT}"], nb=GB_END)
for k in range(16):
    cc = 8*(k >> 2) + (k & 3)
    epi.add(f"v_sub_f32 v{vM8+k}, {f32(cc*1e30)}, v{vTT+1}", nb=GB_END, dl=P1[7][0] - 1)
    epi.add(f"v_min_f32 v{vM0+k}, 0, v{vM8+k}", nb=GB_END, dl=P1[7][0] - 1)
    epi.add(f"v_min_f32_e64 v{vM8+k}, 0, -v{vM8+k}", nb=GB_END, dl=P1[7][0] - 1)
for T in range(5): rd_cvt(aG + 16*T, 16, vH2 + 8*T, relu=True, nb=GB_END + 2, tb=vTT, dl=PAIR0[0] + 14 + 4*T)

vMX = 16
def max_ops(u, half):
    h, t = steps[u]; S = vSB + 16*(u % 3) + 8*half
    o = []
    for k in range(4):
        acc = vMX + 2*h + (k & 1)
        if TORD.index(t) == 0 and half == 0 and k < 2: o.append(I(f"v_max_f32 v{acc}, v{S+2*k}, v{S+2*k+1}"))
        else: o.append(I(f"v_max3_f32 v{acc}, v{acc}, v{S+2*k}, v{S+2*k+1}"))
    return o
def fin_max(h):
    m = vMX + 2*h
    return [I(f"v_max_f32 v{m}, v{m}, v{m+1}"), I(f"v_mov_b32 v{m+1}, v{m}"), I(f"v_permlane32_swap_b32 v{m}, v{m+1}"),
            I(f"v_max_f32 v{m}, v{m}, v{m+1}"), I(f"v_sub_f32 v{m}, 0, v{m}")]
def cm_ops(h): return [I(f"v_mov_b32 v{vCM+k}, v{vMX+2*h}") for k in range(16)]
for u in range(2, NS):
    gaps[P1[u][0]].post += max_ops(u - 2, 0); gaps[P1[u][1]].post += max_ops(u - 2, 1)
gaps[P1[11][0]].post += fin_max(0)
for k in range(4): gaps[P1[12 + k][0]].post += cm_ops(0)[4*k:4*k+4]
for u in range(2):
    gaps[P2s[u]['qa']].post += max_ops(NS - 2 + u, 0); gaps[P2s[u]['qb']].post += max_ops(NS - 2 + u, 1)
gaps[P2s[2]['pv1']].post += fin_max(1)
for u in range(1, NS + 1):
    S = vSB + 16*((u - 1) % 4)
    ex = [I(f"v_exp_f32 v{S+k}, v{S+k}") for k in range(16)]
    cv = [I(f"v_cvt_pk_bf16_f32 v{S+k}, v{S+2*k}, v{S+2*k+1}") for k in range(8)]
    e = P2s[u]
    if u == 1:
        gaps[e['qa']].post += ex[:8]; gaps[e['qb']].post += ex[8:] + cv
    elif u < NS:
        gaps[e['qa']].post += ex[:5]; gaps[e['qb']].post += ex[5:10]
        gaps[e['pv0']].post += ex[10:14] + cv[:2]; gaps[e['pv1']].post += ex[14:] + cv[2:]
    else:
        gaps[e['pv0']].post += ex[:10]; gaps[e['pv1']].post += ex[10:] + cv
    if u + 1 < NS and steps[u + 1][1] in (0, 8):
        h, t = steps[u + 1]; Sn = vSB + 16*((u + 1) % 4); M = vM0 if t == 0 else vM8
        gaps[e['pv1']].post += [I(f"v_add_f32 v{Sn+k}, v{M+k}, v{vMX+2*h}") for k in range(16)]
gaps[P2s[7]['pv0']].post += cm_ops(1)
for g in range(GB_END, ATT_END): gaps[g].budget = OPT['abud'] if g < P1_END else OPT['a2bud']
onq = Stream('onorm')
def onorm(h, nb, dl, tb):
    O = aO + 16*h; rc = vFL
    A = lambda t: onq.add(t, nb=nb, dl=dl)
    A(f"v_accvgpr_read_b32 v{rc}, a{O+12}")
    for k in range(8): A(f"v_accvgpr_read_b32 v{tb+k}, a{O+k}")
    A(f"v_rcp_f32 v{rc}, v{rc}")
    A(f"v_accvgpr_read_b32 v{rc+1}, a{O+8+2*h}")
    for k in range(8): A(f"v_mul_f32 v{tb+k}, v{rc}, v{tb+k}")
    for k in range(4): A(f"v_cvt_pk_bf16_f32 v{vOX+4*h+k}, v{tb+2*k}, v{tb+2*k+1}")
    A(f"v_accvgpr_read_b32 v{tb}, a{O+9+2*h}")
    A(f"v_mul_f32 v{rc+1}, v{rc}, v{rc+1}"); A(f"v_mul_f32 v{tb}, v{rc}, v{tb}")
    A(f"v_cvt_pk_bf16_f32 v{tb}, v{rc+1}, v{tb}")
    A(f"v_cndmask_b32_e64 v{vOX+8+h}, 0, v{tb}, {LO}")
onorm(0, PAIR0[0], PAIR0[0] + 33, vE)
onorm(1, PAIR0[0] + 2, PAIR0[0] + 35, vE)

vPW, vPR, vPR2, vOUT = 16, 17, 18, 19
p0 = PAIR0[0] + 36
side.add([f"v_accvgpr_read_b32 v{vPW}, a{aST}", f"v_accvgpr_read_b32 v{vPR}, a{aST+1}", f"v_accvgpr_read_b32 v{vOUT}, a{aST+2}",
          f"v_add_u32 v{vPR2}, 4096, v{vPR}"], nb=p0, dl=PAIR0[1])

def p2_epi(p):
    A = vSB + 32*(p & 1)
    o = [[I(f"s_add_u32 s{sRS}, s{sPB}, {p*262144}")]]
    sts = []
    for q4 in range(4):
        for k in range(4): o.append([I(f"v_cvt_pk_bf16_f32 v{vPK+4*q4+k}, v{A+8*q4+2*k}, v{A+8*q4+2*k+1}")])
        x = VM(f"buffer_store_dwordx4 {vr(vPK+4*q4)}, v{vPW}, {srd(SWS)}, s{sRS} offen offset:{128*q4} sc1", 8)
        o.append([x]); sts.append(x)
    return o, sts
RXT = [216, 224, 248, 76, 84, 96, 104, 28, 36]
aRD = 0
def red_loads(p):
    a = aRD + 16*p
    o = [[I(f"s_add_u32 s{sRS+1}, s{sPB}, {p*262144}")]]
    for n in range(4):
        o.append([VM(f"buffer_load_dwordx4 {ar(a+4*n)}, v{vPR if n < 2 else vPR2}, {srd(SWS)}, s{sRS+1} offen offset:{2048*(n&1)} sc1", 8)])
    return o
def x_load(p): return [VM(f"buffer_load_dwordx2 {vr(RXT[p], 2)}, v{vOUT}, {srd(SX)}, s{sRT+p} offen", 4)]
def red_comp(p):
    a = aRD + 16*p; x = RXT[p]; C = x + 4
    o = [[I(f"v_lshlrev_b32 v{C}, 16, v{x}")], [I(f"v_and_b32 v{C+1}, 0xffff0000, v{x}")],
         [I(f"v_lshlrev_b32 v{C+2}, 16, v{x+1}")], [I(f"v_and_b32 v{C+3}, 0xffff0000, v{x+1}")]]
    mm = [[I(f"v_mfma_f32_16x16x32_bf16 {vr(C)}, {ar(aSEL)}, {ar(a+4*n)}, {vr(C)}")] for n in range(4)]
    fin = [[I(f"v_cvt_pk_bf16_f32 v{x+2}, v{C}, v{C+1}")], [I(f"v_cvt_pk_bf16_f32 v{x+3}, v{C+2}, v{C+3}")],
           [VM(f"buffer_store_dwordx2 {vr(x+2, 2)}, v{vOUT}, {srd(SOUT)}, s{sRT+p} offen" + (" sc1" if OPT['osc'] else ""), 4)]]
    return o, mm, fin
pst = {}
ev = []
red = Stream('red')
for c in range(1, 9):
    o, pst[c - 1] = p2_epi(c - 1)
    for x in o: epi.add(x, nb=PAIR0[c] + 3, dl=PAIR0[c] + 40)
for c in range(2, 9):
    if c in (5, 7, 8): ev.append((PAIR0[c] + OPT['pubat'], [publish(c, sum([pst[k] for k in range(c - 1)], []))]))
for p in range(7): ev.append((PAIR0[2] + 30 + 20*p, [x_load(p)]))
INL = OPT['inl']
if INL:
    ev.append((PAIR0[6] + 20, [[poll_load(vFR)]]))
    ev.append((PAIR0[7] + 2, [poll_check('ra', 5, vFR)]))
    for p in range(INL):
        for k_, it in enumerate(red_loads(p)): ev.append((PAIR0[7] + 4 + (80 // (4*INL)) * (4*p + max(0, k_ - 1)), [it]))
ev.append((PAIR0[8] + 22, [[poll_load(vFR)]]))
for gp, items in sorted(ev, key=lambda x: x[0]):
    for it in items: side.add(it, nb=gp)
pf = Stream('pf')

s8 = stats(8)
c0n = len(chunks[0].items)
def c0_left(): return any(any(x is d for d in chunks[0].dmas for x in it) for it in pend)
k8 = 0
while c0_left():
    E(pend.popleft()); E(s8[k8:k8+4]); k8 += 4
E(s8[k8:])
E(f"v_add_f32 v{vST}, v{vST}, v{vST+1}"); E(f"v_add_f32 v{vST+2}, v{vST+2}, v{vST+3}")
E(f"v_mov_b32 v{vST+1}, v{vST}"); E(f"v_mov_b32 v{vST+3}, v{vST+2}")
if pend: E(pend.popleft())
E(f"v_permlane32_swap_b32 v{vST}, v{vST+1}"); E(f"v_permlane32_swap_b32 v{vST+2}, v{vST+3}")
E(f"v_add_f32 v{vST}, v{vST}, v{vST+1}"); E(f"v_add_f32 v{vST+2}, v{vST+2}, v{vST+3}")
E(f"v_mul_f32 v{vST}, {f32(1/576)}, v{vST}")
E(f"v_mul_f32 v{vST+2}, {f32(1/576)}, v{vST+2}")
E(f"v_fma_f32 v{vST+2}, -v{vST}, v{vST}, v{vST+2}")
E(f"v_max_f32 v{vST+2}, 0, v{vST+2}")
E(f"v_add_f32 v{vST+2}, {f32(1e-5)}, v{vST+2}")
E(f"v_rsq_f32 v{vRS}, v{vST+2}")
if pend: E(pend.popleft())
E(f"v_mul_f32_e64 v{vNB}, -v{vST}, v{vRS}")
n0 = norm_ops(0)
E(n0[:8])
E(TS('pro', 'c0<')); E(WAITVM(*chunks[0].dmas)); E(TS('pro', 'c0w')); E("s_barrier"); E(TS('pro', 'b0'))
for pos_ in sorted(k for k in reads_at if k < 0):
    for g in reads_at[pos_]: E(emit_reads(g))
E(n0[8:])
STAMP("ga0")

for it in pend: dmaq.add(it, nb=0)
chunks[1].nb = 0
order = chunks[1:18] + [KVC] + chunks[18:]
for ch in order:
    if ch.n == 18 and ch is not KVC:
        dmaq.add([f"s_lshl_b32 s{sRT}, s{sROT}, 7"], nb=0)
        for c_ in range(1, 9): dmaq.add(rt_next(c_), nb=0)
        dmaq.add(p2_setup, nb=0)
    if ch.n >= 18 and ch is not KVC: ch.nb = max(ch.nb, GB_END)
    for k_, it in enumerate(ch.items): dmaq.add(it, nb=(ch.nb if not (ch is KVC and k_ < ch.segstart[0]) else GA_END + OPT['kvchk']), dl=(BKV if ch is KVC else first_use[ch] - PD))
marks = {GA_END: 'gb0', GB_END: 'att0', P1_END: 'att2', ATT_END: 'p2_0'}
if 'p2' in OPT['ts'].split(','):
    for c in range(1, 9): marks[PAIR0[c]] = f'pair{c}'
fr_list = [g for g in range(NG) if gaps[g].frag is not None]
fr_idx = {g: k for k, g in enumerate(fr_list)}
backlog = 200.0
last_dma = [-99]
issued = {id(x) for x in prog}
lastg = {}
def emit_items(ins, g):
    global backlog
    c = 0
    for x in ins:
        E(x); c += x.cost; issued.add(id(x))
        if id(x) in LINES:
            backlog += LINES[id(x)] * 4 * OPT['lc']; lastg[id(x)] = g
    return c
for g, G in enumerate(gaps):
    if g in marks: STAMP(marks[g])
    for s_ in (norm, side, epi, onq, red, pf):
        lastdl = max([k for k, (nb, dl, _) in enumerate(s_.q) if dl <= g] + [-1])
        for _ in range(lastdl + 1):
            nb, dl, ins = s_.q.popleft()
            assert nb <= g, (s_.name, nb, dl, g, ins)
            emit_items(ins, g)
    if g in bar_at:
        key = bar_at[g]
        grp_ = 'b' + key.kind[:2]; nm_ = 'KV' if key is KVC else str(key.n)
        while not all(id(d) in issued for d in key.dmas):
            print("late DMA", nm_, g, file=sys.stderr)
            nb, dl, ins = dmaq.q.popleft(); assert nb <= g; emit_items(ins, g)
        E(TS(grp_, f'B{nm_}<')); E(WAITVM(*key.dmas)); E(TS(grp_, f'B{nm_}|')); E("s_barrier")
        if grp_ != 'bp2': E(TS(grp_, f'B{nm_}>'))
    E(G.pre)
    if G.frag is not None:
        k = fr_idx[g]
        if k % 2 == 0 and k + 1 < len(fr_list) and gaps[fr_list[k + 1]].rd and fr_list[k + 1] - g <= 2:
            E(WAITLG(*gaps[fr_list[k + 1]].rd))
    E(G.m)
    cost = 0
    for gg in reads_at.get(g, []):
        for x in emit_reads(gg):
            E(x)
            if x.kind != 'dsr': cost += 1
    if not reads_at.get(g): cost -= 2
    for x in G.post: E(x); cost += x.cost
    fixed = cost
    vm_done = False
    urgent_dma = dmaq.q and dmaq.q[0][1] - g < OPT['dmarg']
    for s_ in ((dmaq, norm, pf, side, red, onq, epi) if (urgent_dma or g < ATT_END) else (side, red, onq, epi, dmaq)):
        n_ = 0
        while s_.q and s_.q[0][0] <= g:
            ins = s_.q[0][2]
            isvm = any(id(x) in LINES for x in ins)
            if isvm and s_ is dmaq and g >= GA_END - 40 and g - last_dma[0] < (OPT['attp'] if GB_END <= g < ATT_END else OPT['dsp']) and s_.q[0][1] - g > OPT['dmarg']: break
            if isvm and any(x.kind == 'vst' and LINES[id(x)] >= 4 and id(x) not in URGENT for x in ins) and backlog > OPT['stb']: break
            if isvm and (vm_done or backlog > OPT['tcp']) and not any(id(x) in URGENT for x in ins): break
            lim = max(G.budget, fixed + 1) if s_ is dmaq else G.budget
            if cost >= lim: break
            s_.q.popleft(); cost += emit_items(ins, g); n_ += 1
            if isvm: vm_done = True
            if isvm and s_ is dmaq: last_dma[0] = g
            if s_ is dmaq: break
    backlog = max(0.0, backlog - max(33.0, 8 + 4.4 * (cost + 2.5)))
assert not dmaq.q and not norm.q and not epi.q and not onq.q, (len(dmaq.q), len(norm.q), len(epi.q))
for _, _, ins in side.q: E(ins)
STAMP('tail0')
def comp(p):
    o, mm, fin = red_comp(p); E(o + mm + fin)
o, pst[8] = p2_epi(8)
E(o)
E(poll_check('rb', 7, vFR))
nxt = INL
for p in range(nxt, nxt + OPT['pre']): E(red_loads(p))
nxt += OPT['pre']
E(publish(10, pst[8]))
STAMP('pub10')
E(x_load(7)); E(x_load(8))
for p in range(nxt, 6): E(red_loads(p))
E(poll_load(vFR))
for p in range(6): comp(p)
E(poll_check('r8', 10, vFR))
STAMP('got10')
for p in range(6, 9): E(red_loads(p))
for p in range(6, 9): comp(p)
if OPT['timing']:
    E("s_waitcnt vmcnt(0)"); STAMP("end")
    E(f"s_lshl_b32 s{sA}, s2, 10"); E(f"s_lshl_b32 s{sB}, s{sW}, 8"); E(f"s_add_u32 s{sA}, s{sA}, s{sB}"); E(f"s_add_u32 s{sA}, s{sA}, {DBGW}")
    E(RAW("  s_memrealtime s[98:99]\n  s_waitcnt lgkmcnt(0)\n  v_writelane_b32 v11, s98, 63\n  s_nop 4"))
    E(f"v_lshlrev_b32 v{vT0}, 2, v{vL}")
    E(f"buffer_store_dword v11, v{vT0}, {srd(SWS)}, s{sA} offen")
E("L_end:")
E("s_endpgm")

seen = set()
for x in prog:
    if x.kind in ('pvm', 'plg'):
        for t in x.target: assert id(t) in seen, ("wait on unissued op", t)
    seen.add(id(x))
p1 = insert_waits(prog)
p2, nn = insert_nops(p1)
hdr = open('parallel_sum__sliding_block__dense_activation_relu__prompt.s.ref').read().split('\n')
hdr = [l for l in hdr if l.startswith(';') and '@launch' not in l]
txt = "\n".join(hdr) + f"\n; @launch grid=(256,1,1) block=(256,1,1) lds={LDS_TOTAL}\n"
txt += f""".amdgcn_target "amdgcn-amd-amdhsa--gfx950"
.text
.globl {KNAME}
.p2align 8
.type {KNAME},@function
{KNAME}:
"""
txt += render(p2) + "".join(slow_paths) + "L_code_end:\n  s_endpgm\n.fill 64, 4, 0xbf800000\n"
txt += f""".section .rodata,"a"
.p2align 6
.amdhsa_kernel {KNAME}
  .amdhsa_next_free_vgpr 512
  .amdhsa_next_free_sgpr 102
  .amdhsa_accum_offset 256
  .amdhsa_group_segment_fixed_size 0
  .amdhsa_kernarg_size 72
  .amdhsa_user_sgpr_count 2
  .amdhsa_user_sgpr_kernarg_segment_ptr 1
  .amdhsa_system_sgpr_workgroup_id_x 1
.end_amdhsa_kernel
"""
if OPT['timing']: txt += "; stamps: " + " ".join(stamp_names) + "\n"
assert len(stamp_names) <= 62
open(sys.argv[1], 'w').write(txt)
print("instrs", len(p2), "nop states", nn, dict(Counter(x.kind for x in p2)), file=sys.stderr)
print("chunks (n, base, nb, last dma gap, barrier gap)", [(c.n, c.base, getattr(c, 'nb', None), lastg.get(id(c.dmas[-1])), (first_use[c] - PD) if c is not KVC else BKV) for c in chunks + [KVC]], file=sys.stderr)
print("kv stores at", [lastg[id(x)] - GA_END for x in st], file=sys.stderr)
```

```python
import sys, math, struct
from collections import deque, Counter
from asmlib import *

KNAME = "parallel_sum__sliding_block__dense_activation_relu__prompt_kernel"
OPT = dict(ts='', dbgt=0, timing=0, PD=7, budget=3, tcp=180, lc=2.2, kvpub=52, kvpoll=88, kvchk=110, kvbud=6, abud=5, a2bud=1, pubat=16, pollat=40, chkat=30, dmarg=45, slot0=3, c1pro=1, pf=0, xco=1, dsp=3, stb=35, pre=2, inl=0, osc=0, rt=0, tail=1, wq=4, lates=0, hf=1, qpro=1, kvl=12, attp=5)
for a in sys.argv[2:]:
    k, v = a.split('=')
    OPT[k] = (v if k in ('ts',) else float(v) if k == 'lc' else int(v))

def f32(x): return "0x%08x" % struct.unpack('<I', struct.pack('<f', x))[0]

FBASE, EBASE, KVBASE, PBASE = 0, 0x20000, 0x40000, 0x800000
KVB = 5120
WS_USED = 0x2C00000
DBGW = 0x3000000
WS_REC = 0x4000000 if OPT['timing'] else WS_USED
OOB = 0x80000000
THI = 0x5bd1e995
LDS_TOTAL = 163840
XS = 81920
GA_KS, GA_CH = 8576, 34304
GB_KS, GB_CH = 5312, 21248
IMG = 4288
KVL = 102400
P2A, P2B = 20480, 21504
SX, SQ, S1, S2, SO, SOUT, SWS, SDB, SCODE = 4, 8, 12, 16, 20, 24, 28, 32, 36
def srd(b): return f"s[{b}:{b+3}]"
sI, sJ, sW, sROT = 58, 59, 60, 61
sRT = 62
sKV = 71
sM0K = 74
sXB, sQB, sHA, sHB, sSG = 80, 81, 82, 83, 84
sW2A, sW2B, sWO5, sWO6 = 85, 86, 87, 88
sKVW, sFW, sPB = 89, 90, 91
sT, sTH = 92, 93
sM0X = 94
sLO = 96
sA, sB, sC, sD = 75, 76, 77, 78
sDM = 44
sM0A, sM0B, sM0C, sM0D, sM0E = 46, 47, 48, 49, 50
sCK = 52
sRS = 54
sTS = 98
vL, vT0, vT1, vT2, vT3_ = 1, 2, 3, 4, 5
vA, vT3, vS, vP0, vP1 = 6, 7, 8, 9, 10
vDQ = 12
vDH = 16
vDS = 20
vL16, vVS, vVSC = 21, 22, 23
vRS, vNB = 24, 25
vFL = 26
vH1 = 28
vQ = 60
vR = 76
vE = 96
XN = 112
vXD, vXR, vST = 28, 32, 36
vH2 = 112
vSB = 152
vM0, vM8 = 216, 232
vTT = 248
aT, aG, aF, aSEL = 0, 128, 208, 252
aK, aO, aRD = 0, 72, 104

prog = []
stamp_names = []
def STAMP(name=''):
    if OPT['timing']:
        k = len(stamp_names); stamp_names.append(name)
        prog.append(I("s_waitcnt lgkmcnt(0)"))
        prog.append(RAW(f"  s_memtime s[{sTS}:{sTS+1}]\n  s_waitcnt lgkmcnt(0)\n  v_writelane_b32 v11, s{sTS}, {k}\n  s_nop 4"))
        if OPT.get('rt'): prog.append(RAW(f"  s_memrealtime s[{sTS}:{sTS+1}]\n  s_waitcnt lgkmcnt(0)\n  v_writelane_b32 v11, s{sTS}, {32+k}\n  s_nop 4"))
def TS(grp, name):
    if OPT['timing'] and grp in OPT['ts'].split(','):
        x = I('s_nop', kind='lazystamp'); x.note = name; x.R = set(); x.W = set(); x.cost = 0
        return [x]
    return []
def E(t):
    if isinstance(t, list):
        for x in t: E(x)
        return
    x = t if isinstance(t, I) else I(t)
    if x.kind == 'lazystamp':
        STAMP(x.note); return x
    prog.append(x); return x
def vr(b, n=4): return f"v[{b}:{b+n-1}]"
def ar(b, n=4): return f"a[{b}:{b+n-1}]"
LINES = {}
def VM(text, lines):
    x = I(text); LINES[id(x)] = lines; return x
slow_paths = []

class Chunk: pass
chunks = []
def add_chunk(kind, c, size):
    ch = Chunk(); ch.kind = kind; ch.c = c; ch.size = size; ch.n = len(chunks); ch.dmas = []; chunks.append(ch); return ch
for c in range(9): add_chunk('ga', c, GA_CH).base = (c % 4) * GA_CH
for c, b in enumerate([34304, 55552, 76800, 98048, 119296, 0, 21248, 42496, 63744]): add_chunk('gb', c, GB_CH).base = b
pos = 0
for c in range(9):
    for half, sz in (('a', P2A), ('b', P2B)):
        ch = add_chunk('p2' + half, c, sz)
        lim = KVL if (2*c + (half == 'b')) < 4 else LDS_TOTAL
        if pos + sz > lim: pos = 0
        ch.base = pos; pos += sz
KVC = add_chunk('kv', 0, 12*KVB); KVC.base = KVL; KVC.segstart = {}; chunks.pop()

def dma_items(ch):
    c, b = ch.c, ch.base
    it = []
    def grp(m0w, m0c, soff_ins, srdb, voffs, lines, fl=''):
        it.append([I(f"s_add_u32 m0, s{m0w}, {m0c}") if m0w else I(f"s_mov_b32 m0, {m0c}")] + [I(s) for s in soff_ins])
        for (v, imm) in voffs:
            d = VM(f"buffer_load_dwordx4 v{v}, {srd(srdb)}, s{sDM} offen offset:{imm}{fl} lds", lines)
            ch.dmas.append(d); it.append([d])
    four = lambda v, st: [(v + n, n * st) for n in range(4)]
    if ch.kind == 'ga':
        grp(sM0A, b, [f"s_mul_i32 s{sDM}, s{sRT+c}, 1728", f"s_add_u32 s{sDM}, s{sDM}, s{sQB}"], SQ, four(vDQ, 1088), 20)
        grp(sM0A, b + IMG, [f"s_mul_i32 s{sDM}, s{sRT+c}, 4608", f"s_add_u32 s{sDM}, s{sDM}, s{sHA}"], S1, four(vDH, 1088), 8)
    elif ch.kind == 'gb':
        grp(sM0B, b, [f"s_mul_i32 s{sDM+1}, s{sRT+c}, 4608", f"s_add_u32 s{sDM}, s{sDM+1}, s{sHB}"], S1, four(vDH, 1088), 8)
        grp(sM0B, b + IMG, [f"s_add_u32 s{sDM}, s{sDM+1}, s{sSG}"], S1, [(vDS, 0)], 16)
    elif ch.kind == 'p2a':
        grp(sM0C, b, [f"s_add_u32 s{sDM}, s{sW2A}, s{sRT+c}"], S2, four(vDQ, 1024), 8)
        grp(sM0C, b + 4096, [f"s_add_u32 s{sDM}, s{sDM}, {32*1152}"], S2, [(vDQ, 0)], 8)
    elif ch.kind == 'p2b':
        grp(None, b + 20480, [f"s_add_u32 s{sDM}, s{sWO6}, s{sRT+c}"], SO, [(vDQ, 0)], 8)
        grp(sM0D, b, [f"s_add_u32 s{sDM}, s{sW2B}, s{sRT+c}"], S2, four(vDQ, 1024), 8)
        grp(sM0E, b + 16384, [f"s_add_u32 s{sDM}, s{sWO5}, s{sRT+c}"], SO, [(vDQ, 0)], 8)
    else:
        for m in (2, 0, 1):
            ch.segstart[m] = len(it)
            grp(sM0C, b + 4*KVB*m, [f"s_mov_b32 s{sDM}, s{sKV+m}"], SWS, [(vL16, 1024*n) for n in range(4)], OPT['kvl'], ' sc1')
            grp(sM0C, b + 4*KVB*m + 4096, [f"s_add_u32 s{sDM}, s{sDM}, 4096"], SWS, [(vL16, 0)], OPT['kvl'], ' sc1')
    return it
for ch in chunks + [KVC]: ch.items = dma_items(ch)
SUB = {}
if OPT['hf']:
    for c in range(2):
        ch = chunks[c]
        q = Chunk(); q.kind = 'ga'; q.c = c; q.size = ch.size; q.base = ch.base; q.n = 80 + c
        q.items = ch.items[:5]; q.dmas = ch.dmas[:4]
        ch.items = ch.items[5:]; ch.dmas = ch.dmas[4:]
        SUB[c] = q

E(f"s_cmp_ge_u32 s2, 256")
E(f"s_cbranch_scc1 L_end")
E(f"s_load_dwordx16 s[40:55], s[0:1], 0")
E(f"s_load_dwordx2 s[56:57], s[0:1], 64")
if OPT['timing']:
    E("v_mov_b32 v11, 0"); STAMP("start")
    if OPT['dbgt']: E(RAW("  s_memrealtime s[98:99]\n  s_waitcnt lgkmcnt(0)\n  v_writelane_b32 v11, s98, 62\n  s_nop 4"))
E(f"v_lshrrev_b32 v{vT1}, 6, v0")
E(f"v_and_b32 v{vL}, 63, v0")
E(f"v_readfirstlane_b32 s{sW}, v{vT1}")
E(f"v_lshrrev_b32 v{vT0}, 3, v{vL}")
E(f"v_lshrrev_b32 v{vT1}, 4, v{vL}")
E(f"v_and_b32 v{vT2}, 7, v{vL}")
E(f"v_xor_b32 v{vT2}, v{vT2}, v{vT1}")
E(f"v_lshlrev_b32 v{vT2}, 4, v{vT2}")
E(f"v_mul_u32_u24 v{vT0}, 1152, v{vT0}")
E(f"v_add_u32 v{vXD}, v{vT0}, v{vT2}")
E(f"v_xor_b32 v{vXD+1}, 64, v{vXD}")
E(f"v_add_u32 v{vXD+2}, {2*8192}, v{vXD}")
E(f"v_add_u32 v{vXD+3}, {3*8192}, v{vXD+1}")
E(f"v_add_u32 v{vXD+1}, 8192, v{vXD+1}")
E(f"s_bfe_u32 s100, s2, 0x10002")
E(f"s_lshl_b32 s100, s100, 3")
E(f"s_lshr_b32 s{sROT}, s2, 5")
E(f"s_add_u32 s{sI}, s100, s{sROT}")
E(f"s_bfe_u32 s101, s2, 0x20003"); E(f"s_lshl_b32 s101, s101, 1"); E(f"s_add_u32 s101, s101, s{sROT}")
E(f"s_sub_u32 s100, s101, 9"); E(f"s_cmp_ge_u32 s101, 9"); E(f"s_cselect_b32 s101, s100, s101"); E(f"s_lshl_b32 s{sRT}, s101, 7")
E(f"s_lshl_b32 s100, s{sI}, 2")
E(f"s_add_u32 s100, s100, s{sW}")
E(f"s_mul_i32 s{sXB}, s100, {32*1152}")
E(f"s_mul_i32 s{sM0X}, s{sW}, 20480")
E(f"s_add_u32 s{sM0X}, s{sM0X}, {XS}")
E(f"s_mov_b32 s{SX+2}, {2048*1152}"); E(f"s_mov_b32 s{SX+3}, 0x00020000")
E("s_waitcnt lgkmcnt(0)")
E(f"s_mov_b32 s{SX}, s40"); E(f"s_mov_b32 s{SX+1}, s41")
E(TS('pro', 'karg'))

su = deque()
def U(t): su.append(t)
def drain(n):
    for _ in range(min(n, len(su))): E(su.popleft())
def mk_srd(b, p, n):
    U(f"s_mov_b32 s{b}, s{p}"); U(f"s_mov_b32 s{b+1}, s{p+1}"); U(f"s_mov_b32 s{b+2}, {n}"); U(f"s_mov_b32 s{b+3}, 0x00020000")
mk_srd(SWS, 56, WS_REC)
U(f"v_mov_b32 v{vFL}, {EBASE}")
U(RAW(f"""  s_or_b32 s101, s2, s{sW}
  s_cmp_lg_u32 s101, 0
  s_cbranch_scc1 L_noep1
  buffer_load_dword v{vFL+1}, v{vFL}, {srd(SWS)}, 0 offen sc1
L_noep1:"""))
U(RAW(f"  s_getpc_b64 s[{SCODE}:{SCODE+1}]\nL_pc:\n  s_mov_b32 s{SCODE+2}, L_code_end-L_pc\n  s_mov_b32 s{SCODE+3}, 0x00020000"))
U(f"s_lshr_b32 s101, s2, 3"); U(f"s_lshl_b32 s101, s101, 2"); U(f"s_add_u32 s101, s101, s{sW}"); U(f"s_lshl_b32 s101, s101, 9")
U(f"v_lshlrev_b32 v{vT0}, 7, v{vL}"); U(f"v_lshlrev_b32 v{vT1}, 29, v{vL}"); U(f"v_cmp_lt_u32 vcc, 3, v{vL}")
U(f"v_mov_b32 v{vT1}, {OOB:#x}"); U(f"v_cndmask_b32 v{vT0}, v{vT0}, v{vT1}, vcc")
U(f"buffer_load_dword v{vE}, v{vT0}, {srd(SCODE)}, s101 offen")
mk_srd(SQ, 42, 576*3456); mk_srd(SO, 44, 576*1152); mk_srd(S1, 48, 576*9216); mk_srd(S2, 50, 4608*1152)
mk_srd(SOUT, 52, 2048*1152); mk_srd(SDB, 54, 256)
U(f"s_and_b32 s{sA}, s2, 3"); U(f"s_lshl_b32 s{sA}, s{sA}, 2"); U(f"s_bfe_u32 s{sB}, s2, 0x20003"); U(f"s_add_u32 s{sJ}, s{sA}, s{sB}")
U(f"v_and_b32 v{vT0}, 31, v{vL}"); U(f"v_lshrrev_b32 v{vT1}, 5, v{vL}"); U(f"v_bfe_u32 v{vT2}, v{vL}, 1, 3")
U(f"v_xor_b32 v{vT2}, v{vT2}, v{vT1}"); U(f"v_lshlrev_b32 v{vT2}, 4, v{vT2}"); U(f"v_lshl_add_u32 v{vT2}, v{vT0}, 7, v{vT2}")
for s in range(4):
    U(f"v_xor_b32 v{vXR+s}, {32*s}, v{vT2}"); U(f"v_add_u32 v{vXR+s}, s{sM0X}, v{vXR+s}")
for k in range(4): U(f"v_mov_b32 v{vST+k}, 0")
U(f"v_lshlrev_b32 v{vL16}, 4, v{vL}")
U(f"s_mov_b32 s{sLO}, -1"); U(f"s_mov_b32 s{sLO+1}, 0")
U(f"v_lshlrev_b32 v{vT2}, 31, v{vT1}"); U(f"v_add_u32 v{vVSC}, 1024, v{vL16}"); U(f"v_add_u32 v{vVSC}, v{vVSC}, v{vT2}")
U(f"v_bfe_u32 v{vT0}, v{vL}, 2, 2"); U(f"v_bfe_u32 v{vT2}, v{vL}, 4, 1"); U(f"v_and_b32 v{vT3_}, 3, v{vL}")
U(f"v_lshl_add_u32 v{vT3_}, v{vT2}, 2, v{vT3_}")
U(f"v_mul_u32_u24 v{vA}, 1088, v{vT0}"); U(f"v_lshl_add_u32 v{vA}, v{vT1}, 9, v{vA}")
U(f"v_mul_u32_u24 v{vT3}, 40, v{vT3_}"); U(f"v_add3_u32 v{vT3}, v{vT3}, v{vA}, 36"); U(f"v_add_u32 v{vT3}, 36, v{vT3}")
U(f"v_lshl_add_u32 v{vA}, v{vT3_}, 3, v{vA}")
U(f"v_lshl_add_u32 v{vS}, v{vT1}, 3, v{vT0}"); U(f"v_lshlrev_b32 v{vS}, 6, v{vS}"); U(f"v_lshl_add_u32 v{vS}, v{vT3_}, 3, v{vS}")
U(f"v_lshl_add_u32 v{vP0}, v{vT1}, 2, v{vT0}"); U(f"v_lshlrev_b32 v{vP0}, 7, v{vP0}"); U(f"v_lshl_add_u32 v{vP0}, v{vT3_}, 3, v{vP0}")
U(f"v_lshrrev_b32 v{vT2}, 1, v{vT0}"); U(f"v_lshl_add_u32 v{vP0}, v{vT2}, 6, v{vP0}"); U(f"v_xor_b32 v{vP1}, 64, v{vP0}")
U(f"v_lshrrev_b32 v{vT0}, 4, v{vL}"); U(f"v_and_b32 v{vT1}, 15, v{vL}")
U(f"v_mul_u32_u24 v{vT2}, {4*9216}, v{vT0}"); U(f"v_lshl_add_u32 v{vDH}, v{vT1}, 4, v{vT2}")
for n in range(1, 4): U(f"v_add_u32 v{vDH+n}, {n*(9216-1088)}, v{vDH}")
U(f"v_min_u32 v{vT1}, 14, v{vT1}"); U(f"v_mul_u32_u24 v{vT2}, 13, v{vT1}"); U(f"v_lshrrev_b32 v{vT2}, 6, v{vT2}")
U(f"v_mul_u32_u24 v{vT3_}, 5, v{vT2}"); U(f"v_sub_u32 v{vT1}, v{vT1}, v{vT3_}"); U(f"v_lshlrev_b32 v{vT1}, 4, v{vT1}")
U(f"v_min_u32 v{vT1}, 56, v{vT1}"); U(f"v_mul_u32_u24 v{vT3_}, 1152, v{vT2}"); U(f"v_add_u32 v{vT1}, v{vT1}, v{vT3_}")
U(f"s_mul_i32 s{sA}, s{sJ}, 72"); U(f"s_xor_b32 s{sB}, s{sJ}, 1"); U(f"s_mul_i32 s{sC}, s{sB}, 72")
U(f"v_mov_b32 v{vT3_}, s{sC}"); U(f"v_mov_b32 v{vDS}, s{sA}"); U(f"v_cmp_eq_u32 vcc, 0, v{vT2}")
U(f"v_mul_u32_u24 v{vT2}, {4*3456}, v{vT0}"); U(f"v_add_u32 v{vT1}, v{vT1}, v{vT2}")
U(f"v_cndmask_b32 v{vT3_}, v{vT3_}, v{vDS}, vcc"); U(f"v_add_u32 v{vDQ}, v{vT1}, v{vT3_}")
for n in range(1, 4): U(f"v_add_u32 v{vDQ+n}, {n*(3456-1088)}, v{vDQ}")
U(f"v_lshrrev_b32 v{vT0}, 2, v{vL}"); U(f"v_mul_u32_u24 v{vT0}, 9216, v{vT0}"); U(f"v_and_b32 v{vT1}, 3, v{vL}")
U(f"v_lshl_add_u32 v{vDS}, v{vT1}, 4, v{vT0}")
U(f"s_mul_i32 s{sQB}, s{sW}, {16*3456}")
U(f"s_and_b32 s{sA}, s{sJ}, 1"); U(f"s_mul_i32 s{sC}, s{sJ}, 288"); U(f"s_lshl_b32 s{sD}, s{sA}, 5"); U(f"s_add_u32 s{sD}, s{sD}, s{sC}")
U(f"s_xor_b32 s{sA}, s{sA}, 1"); U(f"s_lshl_b32 s{sA}, s{sA}, 8"); U(f"s_add_u32 s{sC}, s{sC}, s{sA}")
U(f"s_mul_i32 s{sA}, s{sW}, {16*9216}"); U(f"s_lshl_b32 s{sHA}, s{sD}, 1"); U(f"s_add_u32 s{sHA}, s{sHA}, s{sA}")
U(f"s_add_u32 s{sHB}, s{sHA}, 256"); U(f"s_lshl_b32 s{sSG}, s{sC}, 1"); U(f"s_add_u32 s{sSG}, s{sSG}, s{sA}")
U(f"s_mul_i32 s{sM0A}, s{sW}, {GA_KS}"); U(f"s_mul_i32 s{sM0B}, s{sW}, {GB_KS}"); U(f"s_mul_i32 s{sM0C}, s{sW}, 5120")
U(f"s_lshl_b32 s{sM0D}, s{sW}, 12"); U(f"s_lshl_b32 s{sM0E}, s{sW}, 10")
U(f"s_mul_i32 s{sA}, s{sW}, 40"); U(f"s_add_u32 s{sA}, s{sA}, s{sD}"); U(f"s_mul_i32 s{sW2A}, s{sA}, 1152")
U(f"s_lshl_b32 s{sA}, s{sW}, 5"); U(f"s_add_u32 s{sA}, s{sA}, s{sD}"); U(f"s_add_u32 s{sA}, s{sA}, 160")
U([I(f"s_cmp_eq_u32 s{sW}, 3"), I(f"s_cselect_b32 s{sA}, s{sC}, s{sA}")]); U(f"s_mul_i32 s{sW2B}, s{sA}, 1152")
U(f"s_mul_i32 s{sC}, s{sJ}, 36"); U(f"s_lshl_b32 s{sA}, s{sW}, 3"); U(f"s_lshr_b32 s{sD}, s{sW}, 1"); U(f"s_lshl_b32 s{sD}, s{sD}, 2")
U(f"s_add_u32 s{sA}, s{sA}, s{sD}"); U(f"s_add_u32 s{sA}, s{sA}, s{sC}"); U(f"s_mul_i32 s{sWO5}, s{sA}, 1152")
U(f"s_add_u32 s{sC}, s{sC}, 16"); U(f"s_mul_i32 s{sWO6}, s{sC}, 1152")
NSU = len(su)
for m in range(3):
    U(f"s_add_i32 s{sA}, s{sI}, {m-2}")
    U([I(f"s_cmp_lt_i32 s{sA}, 0"), I(f"s_cselect_b32 s{sA}, s{sI}, s{sA}")])
    U(f"s_lshl_b32 s{sB}, s{sJ}, 4"); U(f"s_add_u32 s{sA}, s{sA}, s{sB}"); U(f"s_lshl_b32 s{sA}, s{sA}, 2"); U(f"s_add_u32 s{sA}, s{sA}, s{sW}")
    U(f"s_mul_i32 s{sA}, s{sA}, {KVB}"); U(f"s_add_u32 s{sKV+m}, s{sA}, {KVBASE}")
U(f"s_xor_b32 s{sA}, s{sJ}, 1"); U(f"s_lshl_b32 s{sA}, s{sA}, 4"); U(f"s_add_u32 s{sA}, s{sA}, s{sI}"); U(f"s_lshl_b32 s{sA}, s{sA}, 2")
U(f"s_add_u32 s{sA}, s{sA}, s{sW}"); U(f"s_mul_i32 s{sA}, s{sA}, {KVB}"); U(f"s_add_u32 s{sKVW}, s{sA}, {KVBASE}")
U(f"s_lshl_b32 s{sA}, s{sI}, 2"); U(f"s_add_u32 s{sA}, s{sA}, s{sW}"); U(f"s_lshl_b32 s{sA}, s{sA}, 4"); U(f"s_add_u32 s{sA}, s{sA}, s{sJ}")
U(f"s_lshl_b32 s{sFW}, s{sA}, 3")
U(f"s_mul_i32 s{sPB}, s{sI}, {9*262144}"); U(f"s_add_u32 s{sPB}, s{sPB}, {PBASE}")
U(f"v_and_b32 v{vT0}, 15, v{vL}"); U(f"v_and_b32 v{vT1}, 1, v{vL}"); U(f"v_lshlrev_b32 v{vT1}, 4, v{vT1}")
U(f"v_mov_b32 v{vT2}, 0x3f80"); U(f"v_lshlrev_b32 v{vT2}, v{vT1}, v{vT2}"); U(f"v_lshrrev_b32 v{vT0}, 1, v{vT0}")
for d in range(4):
    U([I(f"v_cmp_eq_u32 vcc, {d}, v{vT0}"), I("s_nop 1"), I(f"v_cndmask_b32 v{vT1}, 0, v{vT2}, vcc")])
    U(f"v_accvgpr_write_b32 a{aSEL+d}, v{vT1}")

vFW, vFK, vFR, vFL2 = 4, 5, 0, 24
vVA, vVBb = 2, 3
aST = 240
vY0, vY1, vY2 = vE + 4, vE + 5, vE + 6
for x_ in [f"v_bfe_u32 v{vY0}, v{vL}, 2, 3", f"v_lshlrev_b32 v{vY0}, 13, v{vY0}", f"v_and_b32 v{vY1}, 3, v{vL}", f"v_lshl_add_u32 v{vY0}, v{vY1}, 5, v{vY0}",
           f"v_lshrrev_b32 v{vY1}, 5, v{vL}", f"v_lshl_add_u32 v{vY0}, v{vY1}, 4, v{vY0}", f"s_lshl_b32 s{sA}, s{sW}, 16", f"s_lshl_b32 s{sB}, s{sJ}, 9",
           f"s_add_u32 s{sA}, s{sA}, s{sB}", f"v_add_u32 v{vY0}, s{sA}, v{vY0}", f"v_accvgpr_write_b32 a{aST}, v{vY0}",
           f"v_lshrrev_b32 v{vY0}, 4, v{vL}", f"v_lshlrev_b32 v{vY0}, 9, v{vY0}", f"v_and_b32 v{vY1}, 15, v{vL}", f"v_lshl_add_u32 v{vY0}, v{vY1}, 4, v{vY0}",
           f"s_lshl_b32 s{sA}, s{sJ}, 14", f"s_and_b32 s{sB}, s{sW}, 1", f"s_lshl_b32 s{sC}, s{sB}, 13", f"s_add_u32 s{sA}, s{sA}, s{sC}",
           f"s_lshr_b32 s{sC}, s{sW}, 1", f"s_lshl_b32 s{sD}, s{sC}, 8", f"s_add_u32 s{sA}, s{sA}, s{sD}", f"v_add_u32 v{vY0}, s{sA}, v{vY0}",
           f"v_accvgpr_write_b32 a{aST+1}, v{vY0}",
           f"s_lshl_b32 s{sA}, s{sI}, 7", f"s_lshl_b32 s{sD}, s{sJ}, 3", f"s_add_u32 s{sA}, s{sA}, s{sD}",
           f"s_lshl_b32 s{sB}, s{sB}, 2", f"s_add_u32 s{sA}, s{sA}, s{sB}", f"s_mul_i32 s{sA}, s{sA}, 1152", f"s_lshl_b32 s{sC}, s{sC}, 6",
           f"s_add_u32 s{sA}, s{sA}, s{sC}", f"v_bfe_u32 v{vY0}, v{vL}, 1, 2", f"v_mul_u32_u24 v{vY0}, 1152, v{vY0}", f"v_bfe_u32 v{vY1}, v{vL}, 3, 1",
           f"v_lshl_add_u32 v{vY0}, v{vY1}, 5, v{vY0}", f"v_bfe_u32 v{vY1}, v{vL}, 4, 1", f"v_lshl_add_u32 v{vY0}, v{vY1}, 4, v{vY0}", f"v_and_b32 v{vY1}, 1, v{vL}",
           f"v_lshl_add_u32 v{vY0}, v{vY1}, 3, v{vY0}", f"v_lshlrev_b32 v{vY1}, 26, v{vL}", f"v_and_b32 v{vY1}, {OOB:#x}, v{vY1}",
           f"v_add3_u32 v{vY0}, v{vY0}, v{vY1}, s{sA}", f"v_accvgpr_write_b32 a{aST+2}, v{vY0}",
           f"v_lshrrev_b32 v{vY0}, 3, v{vL}", f"v_bfe_u32 v{vY1}, v{vL}, 4, 1", f"v_lshlrev_b32 v{vY1}, 2, v{vY1}",
           f"v_and_b32 v{vY2}, 7, v{vL}", f"v_xor_b32 v{vY2}, v{vY2}, v{vY1}", f"v_mul_u32_u24 v{vY0}, 1152, v{vY0}",
           f"v_lshl_add_u32 v{vY0}, v{vY2}, 4, v{vY0}", f"v_accvgpr_write_b32 a{aST+3}, v{vY0}"]: U(x_)
for x_ in [f"v_bfe_u32 v{vT0}, v{vL}, 2, 2", f"v_min_u32 v{vT0}, 2, v{vT0}", f"s_sub_u32 s{sA}, s{sI}, 2", f"v_add_u32 v{vT0}, s{sA}, v{vT0}"]: U(x_)
for x_ in [f"v_mov_b32 v{vT1}, s{sI}", f"v_cmp_gt_i32 vcc, 0, v{vT0}", f"s_xor_b32 s{sA}, s{sJ}, 1", f"s_lshl_b32 s{sA}, s{sA}, 3",
          f"v_cndmask_b32 v{vT0}, v{vT0}, v{vT1}, vcc"]: U(x_)
for x_ in [f"v_lshlrev_b32 v{vT0}, 9, v{vT0}", f"v_and_b32 v{vT1}, 3, v{vL}", f"v_lshl_add_u32 v{vT0}, v{vT1}, 7, v{vT0}",
          f"v_add_u32 v{vFK}, s{sA}, v{vT0}"]: U(x_)
for x_ in [f"v_cmp_eq_u32 vcc, 0, v{vL}", f"v_mov_b32 v{vFW}, {OOB:#x}", f"s_nop 0", f"v_cndmask_b32_e64 v{vFW}, v{vFW}, 0, vcc"]: U(x_)
for x_ in [f"s_lshl_b32 s{sA}, s{sI}, 9", f"s_lshr_b32 s{sD}, s{sJ}, 2", f"s_lshl_b32 s{sD}, s{sD}, 7", f"s_add_u32 s{sA}, s{sA}, s{sD}"]: U(x_)
for x_ in [f"v_and_b32 v{vT1}, 15, v{vL}", f"v_lshlrev_b32 v{vT1}, 3, v{vT1}", f"v_add_u32 v{vFR}, s{sA}, v{vT1}"]: U(x_)
tabA = bytes([0, 64, 1, 65, 128, 128, 255, 255]); tabB = bytes([192, 129, 193, 254, 128, 128, 255, 255])
lo = lambda b: "0x%08x" % int.from_bytes(b[:4], 'little')
hi = lambda b: "0x%08x" % int.from_bytes(b[4:], 'little')
vX0, vX1 = vR, vR + 1
for x_ in [f"v_bfe_u32 v{vX0}, v{vL}, 4, 1", f"v_and_b32 v{vX1}, 3, v{vL}", f"v_lshl_add_u32 v{vX0}, v{vX0}, 2, v{vX1}",
          f"v_or_b32 v{vX0}, 0x0c0c0c00, v{vX0}"]: U(x_)
for x_ in [f"s_mov_b32 s{sA}, {hi(tabA)}", f"v_mov_b32 v{vX1}, {lo(tabA)}", f"v_perm_b32 v{vVA}, s{sA}, v{vX1}, v{vX0}"]: U(x_)
for x_ in [f"v_mov_b32 v{vX1}, {lo(tabB)}", f"v_perm_b32 v{vVBb}, s{sA}, v{vX1}, v{vX0}", f"v_bfe_u32 v{vX0}, v{vL}, 2, 2", f"v_lshrrev_b32 v{vX1}, 5, v{vL}"]: U(x_)
for x_ in [f"v_lshl_add_u32 v{vX0}, v{vX1}, 2, v{vX0}", f"v_lshlrev_b32 v{vX0}, 4, v{vX0}", f"s_add_u32 s{sM0K}, s{sM0C}, {KVL}",
          f"v_add_u32 v{vX0}, s{sM0K}, v{vX0}"]: U(x_)
for x_ in [f"v_add_u32 v{vX0}, 2560, v{vX0}", f"v_add_u32 v{vX1}, 2, v{vVA}", f"v_cmp_lt_u32 vcc, 0xfd, v{vVA}", f"v_add_u32 v{vR+2}, 2, v{vVBb}"]: U(x_)
for x_ in [f"v_cndmask_b32 v{vVA}, v{vVA}, v{vX1}, vcc", f"v_cmp_lt_u32 vcc, 0xfd, v{vVBb}", f"v_lshl_add_u32 v{vVA}, v{vVA}, 3, v{vX0}",
          f"v_mov_b32 v{vR+18}, 0", f"v_cndmask_b32 v{vVBb}, v{vVBb}, v{vR+2}, vcc"]: U(x_)
for x_ in [f"v_lshl_add_u32 v{vVBb}, v{vVBb}, 3, v{vX0}", f"v_mov_b32 v{vR+19}, 0"]: U(x_)


late = []
if OPT['lates']:
    while len(su) > NSU: late.insert(0, su.pop())
    U(f"v_cmp_eq_u32 vcc, 0, v{vL}"); U(f"v_mov_b32 v{vFW}, {OOB:#x}"); U("s_nop 0"); U(f"v_cndmask_b32_e64 v{vFW}, v{vFW}, 0, vcc")
def rt_next(c): return [I(f"s_add_u32 s{sRT+c}, s{sRT+c-1}, 128"), I(f"s_cmp_eq_u32 s{sRT+c}, 1152"), I(f"s_cselect_b32 s{sRT+c}, 0, s{sRT+c}")]
xh = {}
def x_items(cb):
    it = [(rt_next(cb) if cb else []) + [I(f"s_add_u32 m0, s{sM0X}, {(cb % 5)*4096}"), I(f"s_add_u32 s100, s{sXB}, s{sRT+cb}")]]
    xh[cb] = []
    for g in range(4):
        d = I(f"buffer_load_dwordx4 v{vXD+g}, {srd(SX)}, s100 offen offset:{g*1024} lds"); xh[cb].append(d); it.append([d])
    return it
per = (len(su) + 17) // 18
nx = 0
for cb in range(5):
    for it in x_items(cb):
        E(it)
        if it[0].kind == 'dma':
            nx += 1
            if nx >= 2: drain(per)
drain(999)
E(TS('pro', 'xiss'))
def stats(cb):
    o = []
    for d in range(16):
        x = XN + 16*cb + d
        o += [I(f"v_dot2c_f32_bf16 v{vST + (d & 1)}, 0x3f803f80, v{x}"), I(f"v_dot2c_f32_bf16 v{vST + 2 + (d & 1)}, v{x}, v{x}")]
    return o
pend = deque()
def stats_mix(cb, every):
    o = stats(cb)
    for k in range(0, 32, every):
        E(o[k:k+every])
        if pend:
            E(pend.popleft())
            if pend and prog[-1].kind != 'dma': E(pend.popleft())
for cb in range(9):
    E(TS('pro', f'w{cb}<')); E(WAITVM(*xh[cb])); E(TS('pro', f'w{cb}>'))
    rds = [E(f"ds_read_b128 {vr(XN + 16*cb + 4*s)}, v{vXR+s} offset:{(cb % 5)*4096}") for s in range(4)]
    if cb >= 1: stats_mix(cb - 1, 8)
    while pend and cb <= 4: E(pend.popleft())
    if cb + 5 <= 8:
        E(WAITLG(*rds))
        pend.extend(x_items(cb + 5))
    if cb == 1:
        E(RAW(f"""  s_or_b32 s101, s2, s{sW}
  s_cmp_lg_u32 s101, 0
  s_cbranch_scc1 L_noep2
  v_and_b32 v{vFL+1}, -16, v{vFL+1}
  v_add_u32 v{vFL+1}, 16, v{vFL+1}
  buffer_store_dword v{vFL+1}, v{vFL}, {srd(SWS)}, 0 offen sc1
  v_mov_b32 v{vE+2}, 0
  v_or_b32 v{vE+3}, 1, v{vFL+1}
  buffer_store_dword v{vE+3}, v{vE+2}, {srd(SDB)}, 0 offen sc1
  s_nop 1
L_noep2:"""))
    if cb == 4:
        pend.extend(chunks[0].items)
        if OPT['c1pro']: pend.extend(chunks[1].items); chunks[1].items = []
        for c_ in list(SUB)[:OPT['qpro']]: pend.extend(SUB[c_].items)
    last_rd = rds
E(WAITLG(*last_rd))
STAMP("xdone")

class Gap:
    def __init__(s): s.pre = []; s.post = []; s.frag = None; s.chunk = None; s.budget = OPT['budget']; s.rd = None
gaps = []
basecur = {vA: 0, vT3: 0, vS: 0, vP0: 0, vP1: 0}
def add_mfma(text, frag=None, chunk=None):
    g = Gap(); g.text = text; g.frag = frag; g.chunk = chunk; gaps.append(g); return len(gaps) - 1
def mf(D, A, B, C): return f"v_mfma_f32_32x32x16_bf16 {D}, {A}, {B}, {C}"
KS_FIRST = {}
def ga_steps(c, tiles, ch):
    for s in range(4):
        ks = 4*c + s
        KS_FIRST.setdefault(ks, len(gaps))
        for T in tiles:
            off = ch.base + s*GA_KS
            if T < 3: fr = (vA, off + 80*T, 256)
            elif T == 3: fr = (vT3, off, 256)
            else: fr = (vA, off + IMG + 64*(T-4), 256)
            D = ar(aT + 16*T, 16)
            add_mfma(lambda A, D=D, ks=ks: mf(D, A, vr(XN + 4*ks), D if ks else "0"), fr, ch)
if OPT['hf']:
    ga_steps(0, range(4, 8), chunks[0]); ga_steps(1, range(4, 8), chunks[1]); ga_steps(0, range(4), SUB[0]); ga_steps(1, range(4), SUB[1])
for c in range(2 if OPT['hf'] else 0, 9): ga_steps(c, range(8), chunks[c])
GA_END = len(gaps)
for c in range(9):
    ch = chunks[9 + c]
    for s in range(4):
        ks = 4*c + s
        for T in range(5):
            off = ch.base + s*GB_KS
            fr = (vA, off + 64*T, 256) if T < 4 else (vS, off + IMG, 256)
            D = ar(aG + 16*T, 16)
            add_mfma(lambda A, D=D, ks=ks: mf(D, A, vr(XN + 4*ks), D if ks else "0"), fr, ch)
GB_END = len(gaps)
TORD = [1, 2, 3, 4, 5, 6, 7, 0, 8]
steps = [(h, t) for h in range(2) for t in TORD]
def Kf(h, t): return ar(aK + 36*h + 4*t)
def Q1(h): return vr(vQ + 4*h)
def Q2(h): return vr(vQ + 8 + 4*h)
P1 = []
for u, (h, t) in enumerate(steps):
    S = vr(vSB + 16*(u % 3), 16)
    C = vr(vM0, 16) if t == 0 else (vr(vM8, 16) if t == 8 else "0")
    P1.append((add_mfma(mf(S, Kf(h, t), Q1(h), C)), add_mfma(mf(S, vr(vR + 2*t), Q2(h), S))))
P1_END = len(gaps)
vCM = vE
basecur[vVA] = 0; basecur[vVBb] = 0
P2s = []
NS = len(steps)
for u in range(NS + 2):
    ent = {}
    if u < NS:
        h, t = steps[u]
        S = vr(vSB + 16*(u % 4), 16)
        ent['qa'] = add_mfma(mf(S, Kf(h, t), Q1(h), S if t in (0, 8) else vr(vCM, 16)))
        ent['qb'] = add_mfma(mf(S, vr(vR + 2*t), Q2(h), S))
    if u >= 2:
        h, t = steps[u - 2]
        Pb = vSB + 16*((u - 2) % 4)
        O = ar(aO + 16*h, 16)
        first = (TORD.index(t) == 0)
        for s in range(2):
            fr = (vVA if h == 0 else vVBb, KVB*t + 256*s, 128)
            ent['pv%d' % s] = add_mfma(lambda A, O=O, Pb=Pb, s=s, first=first: mf(O, A, vr(Pb + 4*s), "0" if (first and s == 0) else O), fr, KVC)
    P2s.append(ent)
ATT_END = len(gaps)
vOX = vQ
vPK = 232
def hfrag(ks):
    if ks < 8: return vr(vH1 + 4*ks)
    if ks < 18: return vr(vH2 + 4*(ks - 8))
    return vr(vOX + 4*(ks - 18))
PAIR0 = []
for c in range(9):
    PAIR0.append(len(gaps))
    for ks in range(21):
        ch = chunks[18 + 2*c + (ks >= 10)]
        off = ch.base + (ks if ks < 10 else ks - 10) * 2048
        for T in range(2):
            D = vr(vSB + 32*(c & 1) + 16*T, 16)
            add_mfma(lambda A, D=D, ks=ks: mf(D, A, hfrag(ks), D if ks else "0"), (vP0 + T, off, 1024 if ks < 20 else None), ch)
NG = len(gaps)

PD = OPT['PD']
first_use, last_use = {}, {}
for g, G in enumerate(gaps):
    if G.chunk is not None:
        first_use.setdefault(G.chunk, g); last_use[G.chunk] = g
bar_at = {}
for ch in chunks[1:] + list(SUB.values()): bar_at[first_use[ch] - PD] = ch
BKV = GB_END - 6
assert BKV not in bar_at
bar_at[BKV] = KVC
REL = Chunk(); REL.kind = 'rel'; REL.n = 99; REL.dmas = []
bar_at[P1_END - 8] = REL
bars = sorted(bar_at)
def release_gap(key): return min(b for b in bars if b > last_use[key])
for ch in chunks[2:] + [KVC]:
    nb = 0
    for o in (chunks[:ch.n] if ch is not KVC else chunks[:18]) + list(SUB.values()):
        if o.base < ch.base + ch.size and ch.base < o.base + o.size: nb = max(nb, release_gap(o))
    if ch.base + ch.size > KVL and ch.kind.startswith('p2'): nb = max(nb, release_gap(KVC))
    ch.nb = nb

fragno = 0
reads_at = {}
for g, G in enumerate(gaps):
    if G.frag is None:
        G.m = I(G.text); continue
    G.fb = aF + 4*(fragno % 8); fragno += 1
    G.m = I(G.text(ar(G.fb)))
    reads_at.setdefault(g - PD, []).append(g)
def emit_reads(g):
    G = gaps[g]; bv, off, d = G.frag
    outl = []
    if off < basecur[bv] or off + (d or 0) - basecur[bv] > 65535 - 8:
        nbase = off & ~0x7ff
        outl.append(I(f"v_add_u32 v{bv}, {(nbase - basecur[bv]) & 0xffffffff:#x}, v{bv}"))
        basecur[bv] = nbase
    G.rd = [I(f"ds_read_b64_tr_b16 {ar(G.fb, 2)}, v{bv} offset:{off - basecur[bv]}")]
    if d is not None: G.rd.append(I(f"ds_read_b64_tr_b16 {ar(G.fb + 2, 2)}, v{bv} offset:{off + d - basecur[bv]}"))
    return outl + G.rd

class Stream:
    def __init__(s, name): s.q = deque(); s.name = name
    def add(s, ins, nb=0, dl=10**9):
        ins = [x if isinstance(x, I) else I(x) for x in (ins if isinstance(ins, list) else [ins])]
        s.q.append((nb, dl, ins)); return ins[-1]
lateq = None
norm, epi, side, dmaq = Stream('norm'), Stream('epi'), Stream('side'), Stream('dma')

def norm_ops(ks):
    o = []
    T = lambda d: vE + 2*d
    for d in range(4): o += [f"v_lshlrev_b32 v{T(d)}, 16, v{XN+4*ks+d}", f"v_and_b32 v{T(d)+1}, 0xffff0000, v{XN+4*ks+d}"]
    for d in range(4): o += [f"v_fma_f32 v{T(d)}, v{T(d)}, v{vRS}, v{vNB}", f"v_fma_f32 v{T(d)+1}, v{T(d)+1}, v{vRS}, v{vNB}"]
    for d in range(4): o += [f"v_cvt_pk_bf16_f32 v{XN+4*ks+d}, v{T(d)}, v{T(d)+1}"]
    return o
for ks in range(1, 36):
    for x in norm_ops(ks): norm.add(x, nb=max(0, KS_FIRST[ks] - 40), dl=KS_FIRST[ks] - 1)

def chk_ops(need, fl):
    return [f"s_add_u32 s{sA}, s{sT}, {need}", f"v_subrev_u32 v{fl}, s{sA}, v{fl}", f"v_cmp_eq_u32 s[{sCK}:{sCK+1}], s{sTH}, v{fl+1}",
            f"v_cmp_ge_u32 vcc, {15 - need}, v{fl}", f"s_and_b64 vcc, vcc, s[{sCK}:{sCK+1}]", f"s_cmp_eq_u64 vcc, -1"]
def poll_load(vaddr, lines=1): return VM(f"buffer_load_dwordx2 {vr(vFL, 2)}, v{vaddr}, {srd(SWS)}, 0 offen sc1", lines)
def poll_check(name, need, vaddr):
    chk = chk_ops(need, vFL)
    slow_paths.append(f"""L_slow_{name}:
  s_mov_b32 s{sD}, 0
L_spin_{name}:
  buffer_load_dwordx2 v[{vFL}:{vFL+1}], v{vaddr}, {srd(SWS)}, 0 offen sc1
  s_waitcnt vmcnt(0)
  """ + "\n  s_nop 1\n  ".join(chk) + f"""
  s_cbranch_scc1 L_back_{name}
  s_add_u32 s{sD}, s{sD}, 1
  s_cmp_lt_u32 s{sD}, 0x40000
  s_cbranch_scc1 L_spin_{name}
  s_branch L_back_{name}
""")
    g_ = 'gb' if name == 'kv' else 'poll'
    return TS(g_, f'poll{name}<') + [I(x) for x in chk] + [I(f"s_cbranch_scc0 L_slow_{name}"), I(f"L_back_{name}:")] + TS(g_, f'poll{name}>')
side.add([VM(f"buffer_load_dword v{vFL}, v{vFW}, {srd(SDB)}, 0 offen sc1", 1)], nb=100)
slow_paths.append(f"""L_slow_tag:
  s_mov_b32 s{sD}, 0
L_spin_tag:
  s_sleep 2
  buffer_load_dword v{vFL}, v{vFW}, {srd(SDB)}, 0 offen sc1
  s_waitcnt vmcnt(0)
  v_readfirstlane_b32 s{sT}, v{vFL}
  s_nop 1
  s_cmp_lg_u32 s{sT}, 0
  s_cbranch_scc1 L_back_tag
  s_add_u32 s{sD}, s{sD}, 1
  s_cmp_lt_u32 s{sD}, 0x40000
  s_cbranch_scc1 L_spin_tag
  s_branch L_back_tag
""")
side.add([f"v_readfirstlane_b32 s{sT}, v{vFL}", f"s_cmp_lg_u32 s{sT}, 0", "s_cbranch_scc0 L_slow_tag", "L_back_tag:",
          f"s_and_b32 s{sT}, s{sT}, -16", f"s_xor_b32 s{sTH}, s{sT}, {THI:#x}"], nb=160)
vFW, vFK, vFR, vFL2 = 4, 5, 0, 24
p2_setup = [f"v_accvgpr_read_b32 v{vDQ}, a{aST+3}"] + [f"v_add_u32 v{vDQ+n}, {n*8192}, v{vDQ}" for n in range(1, 4)]

lateq = Stream('late')
import re as _re
def _fix(t):
    t = t.text if isinstance(t, I) else t
    for a_, b_ in ((vY0, vR + 8), (vY1, vR + 9), (vY2, vR + 10)): t = _re.sub(rf"\bv{a_}\b", f"v{b_}", t)
    for a_, b_ in ((sA, 40), (sB, 41), (sC, 42), (sD, 43)): t = _re.sub(rf"\bs{a_}\b", f"s{b_}", t)
    return t
skip = 0
lt = []
for x in late:
    xs = x if isinstance(x, list) else [x]
    lt.append([_fix(y) for y in xs])
out_ = []
k = 0
while k < len(lt):
    it = lt[k]
    if it[0].startswith(f"v_cmp_eq_u32 vcc, 0, v{vL}"): k += 4; continue
    out_.append(it); k += 1
seln = next((n for n, it in enumerate(out_) if f"a{aSEL+3}," in it[0]), -1)
for n in range(seln + 1):
    out_[n] = [_re.sub(r"\bv4\b", f"v{vR+13}", _re.sub(r"\bv3\b", f"v{vR+12}", _re.sub(r"\bv2\b", f"v{vR+11}", t))) for t in out_[n]]
n = 0
while n < len(out_):
    it = out_[n]
    if len(it) == 1 and it[0].startswith("v_cmp"):
        m = n
        while "v_cndmask" not in out_[m][0]: m += 1
        it = sum(out_[n:m + 1], []); n = m
    lateq.add(it, nb=0, dl=GA_END - 1); n += 1
e0 = GA_END + 2
CSC = math.log2(math.e) / math.sqrt(18.0)
def rd_cvt(acc, n, dst, scale=None, relu=False, nb=e0, tb=vE, dl=10**9):
    for k0 in range(0, n, 8):
        m = min(8, n - k0)
        for k in range(m): epi.add(f"v_accvgpr_read_b32 v{tb+k}, a{acc+k0+k}", nb=nb, dl=dl)
        if scale:
            for k in range(m): epi.add(f"v_mul_f32 v{tb+k}, {scale}, v{tb+k}", nb=nb, dl=dl)
        for k in range(0, m, 2): epi.add(f"v_cvt_pk_bf16_f32 v{dst+(k0+k)//2}, v{tb+k}, v{tb+k+1}", nb=nb, dl=dl)
        if relu:
            for k in range(0, m, 2): epi.add(f"v_pk_max_i16 v{dst+(k0+k)//2}, v{dst+(k0+k)//2}, 0", nb=nb, dl=dl)
LO = f"s[{sLO}:{sLO+1}]"
kP, x8, vP_ = vH1, vH1 + 8, vH1 + 16
st = []
URGENT = set()
def KVST(text, lines):
    x = VM(text, lines); epi.add(x, nb=e0); st.append(x); URGENT.add(id(x))
rd_cvt(aT + 16, 16, kP)
KVST(f"buffer_store_dwordx4 {vr(kP)}, v{vL16}, {srd(SWS)}, s{sKVW} offen sc1", 8)
rd_cvt(aT + 48 + 4, 8, x8)
epi.add(f"v_cndmask_b32_e64 v{x8+6}, 0, v{kP+4}, {LO}", nb=e0); epi.add(f"v_cndmask_b32_e64 v{x8+7}, 0, v{x8+1}, {LO}", nb=e0)
epi.add(f"v_cndmask_b32_e64 v{kP+4}, v{kP+4}, v{x8}, {LO}", nb=e0)
epi.add(f"v_lshrrev_b32 v{vE+8}, 1, v{vL16}", nb=e0)
KVST(f"buffer_store_dwordx4 {vr(kP+4)}, v{vL16}, {srd(SWS)}, s{sKVW} offen offset:1024 sc1", 8)
epi.add(f"v_mov_b32 v{x8+4}, 0x3f803f80", nb=e0); epi.add(f"v_mov_b32 v{x8+5}, 0x3f803f80", nb=e0)
rd_cvt(aT + 32, 8, vP_)
KVST(f"buffer_store_dwordx2 {vr(x8+6, 2)}, v{vE+8}, {srd(SWS)}, s{sKVW} offen offset:2048 sc1", 4)
rd_cvt(aT + 40, 8, vP_ + 4)
KVST(f"buffer_store_dwordx4 {vr(vP_)}, v{vL16}, {srd(SWS)}, s{sKVW} offen offset:2560 sc1", 8)
rd_cvt(aT, 8, vQ, scale=f32(CSC))
KVST(f"buffer_store_dwordx4 {vr(vP_+4)}, v{vL16}, {srd(SWS)}, s{sKVW} offen offset:3584 sc1", 8)
rd_cvt(aT + 8, 8, vQ + 4, scale=f32(CSC))
KVST(f"buffer_store_dwordx4 {vr(x8+2)}, v{vVSC}, {srd(SWS)}, s{sKVW} offen offset:3584 sc1", 4)
rd_cvt(aT + 48, 4, vQ + 14, scale=f32(CSC))
epi.add(f"v_mov_b32 v{vQ+13}, 0x3f80", nb=e0)
epi.add(f"v_cndmask_b32_e64 v{vQ+8}, v{vQ+13}, v{vQ+4}, {LO}", nb=e0)
epi.add(f"v_cndmask_b32_e64 v{vQ+4}, v{vQ+4}, v{vQ+14}, {LO}", nb=e0)
epi.add(f"v_cndmask_b32_e64 v{vQ+13}, v{vQ+13}, v{vQ+15}, {LO}", nb=e0)
for k in (9, 10, 11, 12, 14, 15): epi.add(f"v_mov_b32 v{vQ+k}, 0", nb=e0)
for T in range(4): rd_cvt(aT + 64 + 16*T, 16, vH1 + 8*T, relu=True, dl=BKV - 1)

def publish(count, waits):
    g_ = 'gb' if count == 1 else 'pub'
    return TS(g_, f'pub{count}<') + [WAITVM(*waits)] + TS(g_, f'pub{count}>') + [I(f"s_add_u32 s{sB}, s{sT}, {count}"), I(f"v_mov_b32 v{vFL2}, s{sB}"),
            VM(f"buffer_store_dwordx2 {vr(vFL2, 2)}, v{vFW}, {srd(SWS)}, s{sFW} offen sc1", 1)]
side.add(f"v_mov_b32 v{vFL2+1}, s{sTH}", nb=GA_END + 1)
side.add(publish(1, st), nb=GA_END + OPT['kvpub'])
side.add(poll_load(vFK, 12), nb=GA_END + OPT['kvpoll'])
kvchk = side.add(poll_check('kv', 1, vFK), nb=GA_END + OPT['kvchk'], dl=GA_END + OPT['kvchk'])
KVC.nb = max(KVC.nb, GA_END + OPT['kvchk'])
vKL, vKXL = vVS, vVSC
side.add([f"v_add_u32 v{vKL}, s{sM0K}, v{vL16}", f"v_lshrrev_b32 v{vKXL}, 1, v{vL16}", f"v_add_u32 v{vKXL}, s{sM0K}, v{vKXL}"], nb=GA_END + OPT['kvchk'], dl=BKV)
rld = []
def kread(h, t): return I(f"ds_read_b128 {Kf(h, t)}, v{vKL} offset:{KVB*t + 1024*h}")
for k, t in enumerate(TORD):
    x = I(f"ds_read_b64 {vr(vR + 2*t, 2)}, v{vKXL} offset:{KVB*t + 2048}"); rld.append(x)
    gaps[BKV + k // 2].post += [x]
for k, (h, t) in enumerate(steps):
    gaps[min(BKV + 2 + k, P1[k][0] - 3) if k >= 4 else BKV + k].post += [kread(h, t)]
blk = [f"  s_cmp_ge_u32 s{sI}, 2", "  s_cbranch_scc1 L_nobias", f"  s_lshl_b32 s{sA}, s{sI}, 2", f"  s_add_u32 s{sA}, s{sA}, s{sW}",
       "  s_mov_b32 exec_lo, 0"]
for t in range(8):
    blk += [f"  s_cmp_ge_u32 s{sA}, {8 - t}", f"  s_cbranch_scc1 L_bias_done", f"  v_mov_b32 v{vR+2*t}, 0xf149", f"  v_mov_b32 v{vR+2*t+1}, 0xf149"]
blk += ["L_bias_done:", "  s_mov_b32 exec_lo, -1", "  s_nop 1", "L_nobias:"]
gaps[P1[0][1]].pre += [WAITLG(*rld), RAW("\n".join(blk))]

epi.add([f"v_and_b32 v{vTT}, 31, v{vL}", f"v_lshrrev_b32 v{vTT+1}, 5, v{vL}", f"v_lshlrev_b32 v{vTT+1}, 2, v{vTT+1}",
         f"v_sub_u32 v{vTT}, v{vTT}, v{vTT+1}"], nb=GB_END)
epi.add([f"v_cvt_f32_i32 v{vTT}, v{vTT}", f"v_add_f32 v{vTT}, 0.5, v{vTT}", f"v_mul_f32 v{vTT+1}, {f32(1e30)}, v{vTT}"], nb=GB_END)
for k in range(16):
    cc = 8*(k >> 2) + (k & 3)
    epi.add(f"v_sub_f32 v{vM8+k}, {f32(cc*1e30)}, v{vTT+1}", nb=GB_END, dl=P1[7][0] - 1)
    epi.add(f"v_min_f32 v{vM0+k}, 0, v{vM8+k}", nb=GB_END, dl=P1[7][0] - 1)
    epi.add(f"v_min_f32_e64 v{vM8+k}, 0, -v{vM8+k}", nb=GB_END, dl=P1[7][0] - 1)
for T in range(5): rd_cvt(aG + 16*T, 16, vH2 + 8*T, relu=True, nb=GB_END + 2, tb=vTT, dl=PAIR0[0] + 14 + 4*T)

for g in range(GA_END, GA_END + 24): gaps[g].budget = OPT['kvbud']
if OPT['hf']:
    for g in range(28): gaps[g].budget = 6
vMX = 16
def max_ops(u, half):
    h, t = steps[u]; S = vSB + 16*(u % 3) + 8*half
    o = []
    for k in range(4):
        acc = vMX + 2*h + (k & 1)
        if TORD.index(t) == 0 and half == 0 and k < 2: o.append(I(f"v_max_f32 v{acc}, v{S+2*k}, v{S+2*k+1}"))
        else: o.append(I(f"v_max3_f32 v{acc}, v{acc}, v{S+2*k}, v{S+2*k+1}"))
    return o
def fin_max(h):
    m = vMX + 2*h
    return [I(f"v_max_f32 v{m}, v{m}, v{m+1}"), I(f"v_mov_b32 v{m+1}, v{m}"), I(f"v_permlane32_swap_b32 v{m}, v{m+1}"),
            I(f"v_max_f32 v{m}, v{m}, v{m+1}"), I(f"v_sub_f32 v{m}, 0, v{m}")]
def cm_ops(h): return [I(f"v_mov_b32 v{vCM+k}, v{vMX+2*h}") for k in range(16)]
for u in range(2, NS):
    gaps[P1[u][0]].post += max_ops(u - 2, 0); gaps[P1[u][1]].post += max_ops(u - 2, 1)
gaps[P1[11][0]].post += fin_max(0)
for k in range(4): gaps[P1[12 + k][0]].post += cm_ops(0)[4*k:4*k+4]
for u in range(2):
    gaps[P2s[u]['qa']].post += max_ops(NS - 2 + u, 0); gaps[P2s[u]['qb']].post += max_ops(NS - 2 + u, 1)
gaps[P2s[2]['pv1']].post += fin_max(1)
for u in range(1, NS + 1):
    S = vSB + 16*((u - 1) % 4)
    ex = [I(f"v_exp_f32 v{S+k}, v{S+k}") for k in range(16)]
    cv = [I(f"v_cvt_pk_bf16_f32 v{S+k}, v{S+2*k}, v{S+2*k+1}") for k in range(8)]
    e = P2s[u]
    if u == 1:
        gaps[e['qa']].post += ex[:8]; gaps[e['qb']].post += ex[8:] + cv
    elif u < NS:
        gaps[e['qa']].post += ex[:5]; gaps[e['qb']].post += ex[5:10]
        gaps[e['pv0']].post += ex[10:14] + cv[:2]; gaps[e['pv1']].post += ex[14:] + cv[2:]
    else:
        gaps[e['pv0']].post += ex[:10]; gaps[e['pv1']].post += ex[10:] + cv
    if u + 1 < NS and steps[u + 1][1] in (0, 8):
        h, t = steps[u + 1]; Sn = vSB + 16*((u + 1) % 4); M = vM0 if t == 0 else vM8
        gaps[e['pv1']].post += [I(f"v_add_f32 v{Sn+k}, v{M+k}, v{vMX+2*h}") for k in range(16)]
gaps[P2s[7]['pv0']].post += cm_ops(1)
for g in range(GB_END, ATT_END): gaps[g].budget = OPT['abud'] if g < P1_END else OPT['a2bud']
onq = Stream('onorm')
def onorm(h, nb, dl, tb):
    O = aO + 16*h; rc = vFL
    A = lambda t: onq.add(t, nb=nb, dl=dl)
    A(f"v_accvgpr_read_b32 v{rc}, a{O+12}")
    for k in range(8): A(f"v_accvgpr_read_b32 v{tb+k}, a{O+k}")
    A(f"v_rcp_f32 v{rc}, v{rc}")
    A(f"v_accvgpr_read_b32 v{rc+1}, a{O+8+2*h}")
    for k in range(8): A(f"v_mul_f32 v{tb+k}, v{rc}, v{tb+k}")
    for k in range(4): A(f"v_cvt_pk_bf16_f32 v{vOX+4*h+k}, v{tb+2*k}, v{tb+2*k+1}")
    A(f"v_accvgpr_read_b32 v{tb}, a{O+9+2*h}")
    A(f"v_mul_f32 v{rc+1}, v{rc}, v{rc+1}"); A(f"v_mul_f32 v{tb}, v{rc}, v{tb}")
    A(f"v_cvt_pk_bf16_f32 v{tb}, v{rc+1}, v{tb}")
    A(f"v_cndmask_b32_e64 v{vOX+8+h}, 0, v{tb}, {LO}")
onorm(0, PAIR0[0], PAIR0[0] + 33, vE)
onorm(1, PAIR0[0] + 2, PAIR0[0] + 35, vE)

vPW, vPR, vPR2, vOUT = 16, 17, 18, 19
p0 = PAIR0[0] + 36
side.add([f"v_accvgpr_read_b32 v{vPW}, a{aST}", f"v_accvgpr_read_b32 v{vPR}, a{aST+1}", f"v_accvgpr_read_b32 v{vOUT}, a{aST+2}",
          f"v_add_u32 v{vPR2}, 4096, v{vPR}"], nb=p0, dl=PAIR0[1])

def p2_epi(p):
    A = vSB + 32*(p & 1)
    o = [[I(f"s_add_u32 s{sRS}, s{sPB}, {p*262144}")]]
    sts = []
    for q4 in range(4):
        for k in range(4): o.append([I(f"v_cvt_pk_bf16_f32 v{vPK+4*q4+k}, v{A+8*q4+2*k}, v{A+8*q4+2*k+1}")])
        x = VM(f"buffer_store_dwordx4 {vr(vPK+4*q4)}, v{vPW}, {srd(SWS)}, s{sRS} offen offset:{128*q4} sc1", 8)
        o.append([x]); sts.append(x)
    return o, sts
RXT = [216, 224, 248, 76, 84, 96, 104, 28, 36]
aRD = 0
def red_loads(p):
    a = aRD + 16*p
    o = [[I(f"s_add_u32 s{sRS+1}, s{sPB}, {p*262144}")]]
    for n in range(4):
        o.append([VM(f"buffer_load_dwordx4 {ar(a+4*n)}, v{vPR if n < 2 else vPR2}, {srd(SWS)}, s{sRS+1} offen offset:{2048*(n&1)} sc1", 8)])
    return o
def x_load(p): return [VM(f"buffer_load_dwordx2 {vr(RXT[p], 2)}, v{vOUT}, {srd(SX)}, s{sRT+p} offen", 4)]
def red_comp(p):
    a = aRD + 16*p; x = RXT[p]; C = x + 4
    o = [[I(f"v_lshlrev_b32 v{C}, 16, v{x}")], [I(f"v_and_b32 v{C+1}, 0xffff0000, v{x}")],
         [I(f"v_lshlrev_b32 v{C+2}, 16, v{x+1}")], [I(f"v_and_b32 v{C+3}, 0xffff0000, v{x+1}")]]
    mm = [[I(f"v_mfma_f32_16x16x32_bf16 {vr(C)}, {ar(aSEL)}, {ar(a+4*n)}, {vr(C)}")] for n in range(4)]
    fin = [[I(f"v_cvt_pk_bf16_f32 v{x+2}, v{C}, v{C+1}")], [I(f"v_cvt_pk_bf16_f32 v{x+3}, v{C+2}, v{C+3}")],
           [VM(f"buffer_store_dwordx2 {vr(x+2, 2)}, v{vOUT}, {srd(SOUT)}, s{sRT+p} offen" + (" sc1" if OPT['osc'] else ""), 4)]]
    return o, mm, fin
pst = {}
ev = []
red = Stream('red')
for c in range(1, 9):
    o, pst[c - 1] = p2_epi(c - 1)
    for x in o: epi.add(x, nb=PAIR0[c] + 3, dl=PAIR0[c] + 40)
for c in range(2, 9):
    if c in (5, 7, 8): ev.append((PAIR0[c] + OPT['pubat'], [publish(c, sum([pst[k] for k in range(c - 1)], []))]))
for p in range(7): ev.append((PAIR0[2] + 30 + 20*p, [x_load(p)]))
INL = OPT['inl']
if INL:
    ev.append((PAIR0[6] + 20, [[poll_load(vFR)]]))
    ev.append((PAIR0[7] + 2, [poll_check('ra', 5, vFR)]))
    for p in range(INL):
        for k_, it in enumerate(red_loads(p)): ev.append((PAIR0[7] + 4 + (80 // (4*INL)) * (4*p + max(0, k_ - 1)), [it]))
ev.append((PAIR0[8] + (22 if OPT['tail'] == 0 else 34), [[poll_load(vFR)]]))
for gp, items in sorted(ev, key=lambda x: x[0]):
    for it in items: side.add(it, nb=gp)
pf = Stream('pf')

s8 = stats(8)
c0n = len(chunks[0].items)
def c0_left(): return any(any(x is d for d in chunks[0].dmas for x in it) for it in pend)
k8 = 0
while c0_left():
    E(pend.popleft()); E(s8[k8:k8+4]); k8 += 4
E(s8[k8:])
E(f"v_add_f32 v{vST}, v{vST}, v{vST+1}"); E(f"v_add_f32 v{vST+2}, v{vST+2}, v{vST+3}")
E(f"v_mov_b32 v{vST+1}, v{vST}"); E(f"v_mov_b32 v{vST+3}, v{vST+2}")
if pend: E(pend.popleft())
E(f"v_permlane32_swap_b32 v{vST}, v{vST+1}"); E(f"v_permlane32_swap_b32 v{vST+2}, v{vST+3}")
E(f"v_add_f32 v{vST}, v{vST}, v{vST+1}"); E(f"v_add_f32 v{vST+2}, v{vST+2}, v{vST+3}")
E(f"v_mul_f32 v{vST}, {f32(1/576)}, v{vST}")
E(f"v_mul_f32 v{vST+2}, {f32(1/576)}, v{vST+2}")
E(f"v_fma_f32 v{vST+2}, -v{vST}, v{vST}, v{vST+2}")
E(f"v_max_f32 v{vST+2}, 0, v{vST+2}")
E(f"v_add_f32 v{vST+2}, {f32(1e-5)}, v{vST+2}")
E(f"v_rsq_f32 v{vRS}, v{vST+2}")
if pend: E(pend.popleft())
E(f"v_mul_f32_e64 v{vNB}, -v{vST}, v{vRS}")
n0 = norm_ops(0)
E(n0[:8])
E(TS('pro', 'c0<')); E(WAITVM(*chunks[0].dmas)); E(TS('pro', 'c0w')); E("s_barrier"); E(TS('pro', 'b0'))
for pos_ in sorted(k for k in reads_at if k < 0):
    for g in reads_at[pos_]: E(emit_reads(g))
E(n0[8:])
STAMP("ga0")

for it in pend: dmaq.add(it, nb=0, dl=0)
for c_ in list(SUB)[OPT['qpro']:]:
    for it in SUB[c_].items: dmaq.add(it, nb=0, dl=0)
chunks[1].nb = 0
order = chunks[1:18] + [KVC] + chunks[18:]
for ch in order:
    if ch.n == 18 and ch is not KVC:
        dmaq.add([f"s_lshl_b32 s{sRT}, s{sROT}, 7"], nb=0)
        for c_ in range(1, 9): dmaq.add(rt_next(c_), nb=0)
        dmaq.add(p2_setup, nb=0)
    if ch.n >= 18 and ch is not KVC: ch.nb = max(ch.nb, GB_END)
    for k_, it in enumerate(ch.items): dmaq.add(it, nb=(ch.nb if not (ch is KVC and k_ < ch.segstart[0]) else GA_END + OPT['kvchk']), dl=(BKV if ch is KVC else first_use[ch] - PD))
marks = {GA_END: 'gb0', GB_END: 'att0', P1_END: 'att2', ATT_END: 'p2_0'}
if 'p2' in OPT['ts'].split(','):
    for c in range(1, 9): marks[PAIR0[c]] = f'pair{c}'
fr_list = [g for g in range(NG) if gaps[g].frag is not None]
fr_idx = {g: k for k, g in enumerate(fr_list)}
backlog = 200.0
last_dma = [-99]
issued = {id(x) for x in prog}
lastg = {}
def emit_items(ins, g):
    global backlog
    c = 0
    for x in ins:
        E(x); c += x.cost; issued.add(id(x))
        if id(x) in LINES:
            backlog += LINES[id(x)] * 4 * OPT['lc']; lastg[id(x)] = g
    return c
for g, G in enumerate(gaps):
    if g in marks: STAMP(marks[g])
    for s_ in (norm, lateq, side, epi, onq, red, pf):
        lastdl = max([k for k, (nb, dl, _) in enumerate(s_.q) if dl <= g] + [-1])
        for _ in range(lastdl + 1):
            nb, dl, ins = s_.q.popleft()
            assert nb <= g, (s_.name, nb, dl, g, ins)
            emit_items(ins, g)
    if g in bar_at:
        key = bar_at[g]
        grp_ = 'b' + key.kind[:2]; nm_ = 'KV' if key is KVC else str(key.n)
        while not all(id(d) in issued for d in key.dmas):
            print("late DMA", nm_, g, file=sys.stderr)
            nb, dl, ins = dmaq.q.popleft(); assert nb <= g; emit_items(ins, g)
        E(TS(grp_, f'B{nm_}<')); E(WAITVM(*key.dmas)); E(TS(grp_, f'B{nm_}|')); E("s_barrier")
        if grp_ != 'bp2': E(TS(grp_, f'B{nm_}>'))
    E(G.pre)
    if G.frag is not None:
        k = fr_idx[g]
        wq = OPT['wq']
        if k % wq == 0:
            kk = k + wq - 1
            while kk > k and not (kk < len(fr_list) and gaps[fr_list[kk]].rd and fr_list[kk] - g <= wq): kk -= 1
            if kk > k: E(WAITLG(*gaps[fr_list[kk]].rd))
    E(G.m)
    cost = 0
    for gg in reads_at.get(g, []):
        for x in emit_reads(gg):
            E(x)
            if x.kind != 'dsr': cost += 1
    if not reads_at.get(g): cost -= 2
    for x in G.post: E(x); cost += x.cost
    fixed = cost
    vm_done = False
    urgent_dma = dmaq.q and dmaq.q[0][1] - g < OPT['dmarg']
    for s_ in ((dmaq, norm, pf, side, red, onq, epi, lateq) if (urgent_dma or g < ATT_END) else (side, red, onq, epi, dmaq)):
        n_ = 0
        while s_.q and s_.q[0][0] <= g:
            ins = s_.q[0][2]
            isvm = any(id(x) in LINES for x in ins)
            if isvm and s_ is dmaq and g >= GA_END - 40 and g - last_dma[0] < (OPT['attp'] if GB_END <= g < ATT_END else OPT['dsp']) and s_.q[0][1] - g > OPT['dmarg']: break
            if isvm and any(x.kind == 'vst' and LINES[id(x)] >= 4 and id(x) not in URGENT for x in ins) and backlog > OPT['stb']: break
            if isvm and (vm_done or backlog > OPT['tcp']) and not any(id(x) in URGENT for x in ins): break
            lim = max(G.budget, fixed + 1) if s_ is dmaq else G.budget
            if cost >= lim: break
            s_.q.popleft(); cost += emit_items(ins, g); n_ += 1
            if isvm: vm_done = True
            if isvm and s_ is dmaq: last_dma[0] = g
            if s_ is dmaq: break
    backlog = max(0.0, backlog - max(33.0, 8 + 4.4 * (cost + 2.5)))
assert not dmaq.q and not norm.q and not epi.q and not onq.q, (len(dmaq.q), len(norm.q), len(epi.q))
for _, _, ins in side.q: E(ins)
STAMP('tail0')
def comp(p):
    o, mm, fin = red_comp(p); E(o + mm + fin)
if OPT['tail'] == 0:
    o, pst[8] = p2_epi(8)
    E(o)
    E(poll_check('rb', 5, vFR))
    E(red_loads(0)); E(red_loads(1))
    E(publish(10, pst[8]))
    STAMP('pub10')
    E(poll_load(vFR))
    E(x_load(7)); E(x_load(8))
    E(red_loads(2)); E(red_loads(3))
    E(poll_check('rc', 8, vFR))
    E(red_loads(4)); comp(0)
    E(poll_load(vFR))
    E(red_loads(5)); comp(1)
    E(red_loads(6)); comp(2)
    E(poll_check('r8', 10, vFR))
    STAMP('got10')
    E(red_loads(7)); comp(3)
    E(red_loads(8))
    for p in range(4, 9): comp(p)
else:
    o, pst[8] = p2_epi(8)
    E(o)
    E(poll_check('rb', 7, vFR))
    E(red_loads(0)); E(red_loads(1))
    E(publish(10, pst[8]))
    STAMP('pub10')
    E(x_load(7)); E(x_load(8))
    E(red_loads(2)); E(red_loads(3)); comp(0)
    E(poll_load(vFR))
    E(red_loads(4)); comp(1)
    E(red_loads(5)); comp(2)
    E(poll_check('r8', 10, vFR))
    STAMP('got10')
    E(red_loads(6)); comp(3)
    E(red_loads(7)); comp(4)
    E(red_loads(8))
    for p in range(5, 9): comp(p)
if OPT['timing']:
    E("s_waitcnt vmcnt(0)"); STAMP("end")
    E(f"s_lshl_b32 s{sA}, s2, 10"); E(f"s_lshl_b32 s{sB}, s{sW}, 8"); E(f"s_add_u32 s{sA}, s{sA}, s{sB}"); E(f"s_add_u32 s{sA}, s{sA}, {DBGW}")
    E(RAW("  s_memrealtime s[98:99]\n  s_waitcnt lgkmcnt(0)\n  v_writelane_b32 v11, s98, 63\n  s_nop 4"))
    E(f"v_lshlrev_b32 v{vT0}, 2, v{vL}")
    E(f"buffer_store_dword v11, v{vT0}, {srd(SWS)}, s{sA} offen")
E("L_end:")
E("s_endpgm")

seen = set()
for x in prog:
    if x.kind in ('pvm', 'plg'):
        for t in x.target: assert id(t) in seen, ("wait on unissued op", t)
    seen.add(id(x))
p1 = insert_waits(prog)
p2, nn = insert_nops(p1)
hdr = open('parallel_sum__sliding_block__dense_activation_relu__prompt.s.ref').read().split('\n')
hdr = [l for l in hdr if l.startswith(';') and '@launch' not in l]
txt = "\n".join(hdr) + f"\n; @launch grid=(256,1,1) block=(256,1,1) lds={LDS_TOTAL}\n"
txt += f""".amdgcn_target "amdgcn-amd-amdhsa--gfx950"
.text
.globl {KNAME}
.p2align 8
.type {KNAME},@function
{KNAME}:
"""
txt += render(p2) + "".join(slow_paths) + "L_code_end:\n  s_endpgm\n.fill 64, 4, 0xbf800000\n"
txt += f""".section .rodata,"a"
.p2align 6
.amdhsa_kernel {KNAME}
  .amdhsa_next_free_vgpr 512
  .amdhsa_next_free_sgpr 102
  .amdhsa_accum_offset 256
  .amdhsa_group_segment_fixed_size 0
  .amdhsa_kernarg_size 72
  .amdhsa_user_sgpr_count 2
  .amdhsa_user_sgpr_kernarg_segment_ptr 1
  .amdhsa_system_sgpr_workgroup_id_x 1
.end_amdhsa_kernel
"""
if OPT['timing']: txt += "; stamps: " + " ".join(stamp_names) + "\n"
assert len(stamp_names) <= 62
open(sys.argv[1], 'w').write(txt)
print("instrs", len(p2), "nop states", nn, dict(Counter(x.kind for x in p2)), file=sys.stderr)
print("chunks (n, base, nb, last dma gap, barrier gap)", [(c.n, c.base, getattr(c, 'nb', None), lastg.get(id(c.dmas[-1])), (first_use[c] - PD) if c is not KVC else BKV) for c in chunks + [KVC]], file=sys.stderr)
print("kv stores at", [lastg[id(x)] - GA_END for x in st], file=sys.stderr)
```

```python
import sys, math, struct
from collections import deque, Counter
from asmlib import *

KNAME = "parallel_sum__sliding_block__dense_activation_relu__prompt_kernel"
OPT = dict(ts='', dbgt=0, timing=0, PD=7, budget=3, tcp=180, lc=2.2, kvpub=52, kvpoll=88, kvchk=110, kvbud=6, abud=5, a2bud=1, pubat=16, pollat=40, chkat=30, dmarg=45, slot0=3, c1pro=1, pf=0, xco=1, dsp=3, stb=35, pre=2, inl=0, osc=1, rt=0, tail=1, wq=4, lates=0, hf=1, x1=5, c0at=99, cpf='330,620,800', ntop=40, hoist=1, in0=4, rj=0, h0=0, qpro=1, kvl=12, attp=5)
for a in sys.argv[2:]:
    k, v = a.split('=')
    OPT[k] = (v if k in ('ts', 'cpf') else float(v) if k == 'lc' else int(v))

def f32(x): return "0x%08x" % struct.unpack('<I', struct.pack('<f', x))[0]

FBASE, EBASE, KVBASE, PBASE = 0, 0x20000, 0x40000, 0x800000
KVB = 5120
WS_USED = 0x2C00000
DBGW = 0x3000000
WS_REC = 0x4000000 if OPT['timing'] else WS_USED
OOB = 0x80000000
THI = 0x5bd1e995
LDS_TOTAL = 163840
XS = 81920
GA_KS, GA_CH = 8576, 34304
GB_KS, GB_CH = 5312, 21248
IMG = 4288
KVL = 102400
P2A, P2B = 20480, 21504
SX, SQ, S1, S2, SO, SOUT, SWS, SDB, SCODE = 4, 8, 12, 16, 20, 24, 28, 32, 36
def srd(b): return f"s[{b}:{b+3}]"
sI, sJ, sW, sROT = 58, 59, 60, 61
sRT = 62
sKV = 71
sM0K = 74
sXB, sQB, sHA, sHB, sSG = 80, 81, 82, 83, 84
sW2A, sW2B, sWO5, sWO6 = 85, 86, 87, 88
sKVW, sFW, sPB = 89, 90, 91
sT, sTH = 92, 93
sM0X = 94
sLO = 96
sA, sB, sC, sD = 75, 76, 77, 78
sDM = 44
sM0A, sM0B, sM0C, sM0D, sM0E = 46, 47, 48, 49, 50
sCK = 52
sRS = 54
sTS = 98
vL, vT0, vT1, vT2, vT3_ = 1, 2, 3, 4, 5
vA, vT3, vS, vP0, vP1 = 6, 7, 8, 9, 10
vDQ = 12
vDH = 16
vDS = 20
vL16, vVS, vVSC = 21, 22, 23
vRS, vNB = 24, 25
vFL = 26
vH1 = 28
vQ = 60
vR = 76
vE = 96
XN = 112
vXD, vXR, vST = 28, 32, 36
vH2 = 112
vSB = 152
vM0, vM8 = 216, 232
vTT = 248
aT, aG, aF, aSEL = 0, 128, 208, 252
aK, aO, aRD = 0, 72, 104

prog = []
stamp_names = []
def STAMP(name=''):
    if OPT['timing']:
        k = len(stamp_names); stamp_names.append(name)
        prog.append(I("s_waitcnt lgkmcnt(0)"))
        prog.append(RAW(f"  s_memtime s[{sTS}:{sTS+1}]\n  s_waitcnt lgkmcnt(0)\n  v_writelane_b32 v11, s{sTS}, {k}\n  s_nop 4"))
        if OPT.get('rt'): prog.append(RAW(f"  s_memrealtime s[{sTS}:{sTS+1}]\n  s_waitcnt lgkmcnt(0)\n  v_writelane_b32 v11, s{sTS}, {32+k}\n  s_nop 4"))
def TS(grp, name):
    if OPT['timing'] and grp in OPT['ts'].split(','):
        x = I('s_nop', kind='lazystamp'); x.note = name; x.R = set(); x.W = set(); x.cost = 0
        return [x]
    return []
def E(t):
    if isinstance(t, list):
        for x in t: E(x)
        return
    x = t if isinstance(t, I) else I(t)
    if x.kind == 'lazystamp':
        STAMP(x.note); return x
    prog.append(x); return x
def vr(b, n=4): return f"v[{b}:{b+n-1}]"
def ar(b, n=4): return f"a[{b}:{b+n-1}]"
LINES = {}
def VM(text, lines):
    x = I(text); LINES[id(x)] = lines; return x
slow_paths = []

class Chunk: pass
chunks = []
def add_chunk(kind, c, size):
    ch = Chunk(); ch.kind = kind; ch.c = c; ch.size = size; ch.n = len(chunks); ch.dmas = []; chunks.append(ch); return ch
for c in range(9): add_chunk('ga', c, GA_CH).base = (c % 4) * GA_CH
for c, b in enumerate([34304, 55552, 76800, 98048, 119296, 0, 21248, 42496, 63744]): add_chunk('gb', c, GB_CH).base = b
pos = 0
for c in range(9):
    for half, sz in (('a', P2A), ('b', P2B)):
        ch = add_chunk('p2' + half, c, sz)
        lim = KVL if (2*c + (half == 'b')) < 4 else LDS_TOTAL
        if pos + sz > lim: pos = 0
        ch.base = pos; pos += sz
KVC = add_chunk('kv', 0, 12*KVB); KVC.base = KVL; KVC.segstart = {}; chunks.pop()

def dma_items(ch):
    c, b = ch.c, ch.base
    it = []
    def grp(m0w, m0c, soff_ins, srdb, voffs, lines, fl=''):
        it.append([I(f"s_add_u32 m0, s{m0w}, {m0c}") if m0w else I(f"s_mov_b32 m0, {m0c}")] + [I(s) for s in soff_ins])
        for (v, imm) in voffs:
            d = VM(f"buffer_load_dwordx4 v{v}, {srd(srdb)}, s{sDM} offen offset:{imm}{fl} lds", lines)
            ch.dmas.append(d); it.append([d])
    four = lambda v, st: [(v + n, n * st) for n in range(4)]
    if ch.kind == 'ga':
        grp(sM0A, b, [f"s_mul_i32 s{sDM}, s{sRT+c}, 1728", f"s_add_u32 s{sDM}, s{sDM}, s{sQB}"], SQ, four(vDQ, 1088), 20)
        grp(sM0A, b + IMG, [f"s_mul_i32 s{sDM}, s{sRT+c}, 4608", f"s_add_u32 s{sDM}, s{sDM}, s{sHA}"], S1, four(vDH, 1088), 8)
    elif ch.kind == 'gb':
        grp(sM0B, b, [f"s_mul_i32 s{sDM+1}, s{sRT+c}, 4608", f"s_add_u32 s{sDM}, s{sDM+1}, s{sHB}"], S1, four(vDH, 1088), 8)
        grp(sM0B, b + IMG, [f"s_add_u32 s{sDM}, s{sDM+1}, s{sSG}"], S1, [(vDS, 0)], 16)
    elif ch.kind == 'p2a':
        grp(sM0C, b, [f"s_add_u32 s{sDM}, s{sW2A}, s{sRT+c}"], S2, four(vDQ, 1024), 8)
        grp(sM0C, b + 4096, [f"s_add_u32 s{sDM}, s{sDM}, {32*1152}"], S2, [(vDQ, 0)], 8)
    elif ch.kind == 'p2b':
        grp(None, b + 20480, [f"s_add_u32 s{sDM}, s{sWO6}, s{sRT+c}"], SO, [(vDQ, 0)], 8)
        grp(sM0D, b, [f"s_add_u32 s{sDM}, s{sW2B}, s{sRT+c}"], S2, four(vDQ, 1024), 8)
        grp(sM0E, b + 16384, [f"s_add_u32 s{sDM}, s{sWO5}, s{sRT+c}"], SO, [(vDQ, 0)], 8)
    else:
        for m in (2, 0, 1):
            ch.segstart[m] = len(it)
            grp(sM0C, b + 4*KVB*m, [f"s_mov_b32 s{sDM}, s{sKV+m}"], SWS, [(vL16, 1024*n) for n in range(4)], OPT['kvl'], ' sc1')
            grp(sM0C, b + 4*KVB*m + 4096, [f"s_add_u32 s{sDM}, s{sDM}, 4096"], SWS, [(vL16, 0)], OPT['kvl'], ' sc1')
    return it
for ch in chunks + [KVC]: ch.items = dma_items(ch)
SUB = {}
if OPT['hf']:
    for c in range(2):
        ch = chunks[c]
        q = Chunk(); q.kind = 'ga'; q.c = c; q.size = ch.size; q.base = ch.base; q.n = 80 + c
        q.items = ch.items[:5]; q.dmas = ch.dmas[:4]
        ch.items = ch.items[5:]; ch.dmas = ch.dmas[4:]
        SUB[c] = q

E(f"s_cmp_ge_u32 s2, 256")
E(f"s_cbranch_scc1 L_end")
E(f"s_load_dwordx16 s[40:55], s[0:1], 0")
E(f"s_load_dwordx2 s[56:57], s[0:1], 64")
if OPT['timing']:
    E("v_mov_b32 v11, 0"); STAMP("start")
    if OPT['dbgt']: E(RAW("  s_memrealtime s[98:99]\n  s_waitcnt lgkmcnt(0)\n  v_writelane_b32 v11, s98, 62\n  s_nop 4"))
E(f"v_lshrrev_b32 v{vT1}, 6, v0")
E(f"v_and_b32 v{vL}, 63, v0")
E(f"v_readfirstlane_b32 s{sW}, v{vT1}")
E(RAW(f"  s_getpc_b64 s[{SCODE}:{SCODE+1}]\nL_pc:\n  s_mov_b32 s{SCODE+2}, L_code_end-L_pc\n  s_mov_b32 s{SCODE+3}, 0x00020000"))
for x_ in [f"v_lshlrev_b32 v{vT0}, 7, v{vL}", f"v_cmp_lt_u32 vcc, 3, v{vL}", f"v_mov_b32 v{vT2}, {OOB:#x}", f"s_lshr_b32 s101, s2, 3",
           f"v_cndmask_b32 v{vE+1}, v{vT0}, v{vT2}, vcc", f"v_cmp_gt_u32 vcc, {OPT['ntop']}, v0", f"s_lshl_b32 s101, s101, 2", f"s_add_u32 s101, s101, s{sW}",
           f"v_cndmask_b32 v{vT0}, v{vT2}, v{vT0}, vcc", f"s_lshl_b32 s101, s101, 9",
           f"buffer_load_dword v{vE+8}, v{vT0}, {srd(SCODE)}, 0 offen", f"buffer_load_dword v{vE}, v{vE+1}, {srd(SCODE)}, s101 offen",
           f"v_accvgpr_write_b32 a244, v{vE+1}"]: E(x_)
E(f"v_lshrrev_b32 v{vT0}, 3, v{vL}")
E(f"v_lshrrev_b32 v{vT1}, 4, v{vL}")
E(f"v_and_b32 v{vT2}, 7, v{vL}")
E(f"v_xor_b32 v{vT2}, v{vT2}, v{vT1}")
E(f"v_lshlrev_b32 v{vT2}, 4, v{vT2}")
E(f"v_mul_u32_u24 v{vT0}, 1152, v{vT0}")
E(f"v_add_u32 v{vXD}, v{vT0}, v{vT2}")
E(f"v_xor_b32 v{vXD+1}, 64, v{vXD}")
E(f"v_add_u32 v{vXD+2}, {2*8192}, v{vXD}")
E(f"v_add_u32 v{vXD+3}, {3*8192}, v{vXD+1}")
E(f"v_add_u32 v{vXD+1}, 8192, v{vXD+1}")
E(f"s_bfe_u32 s100, s2, 0x10002")
E(f"s_lshl_b32 s100, s100, 3")
E(f"s_lshr_b32 s{sROT}, s2, 5")
E(f"s_add_u32 s{sI}, s100, s{sROT}")
E(f"s_bfe_u32 s101, s2, 0x20003"); E(f"s_lshl_b32 s101, s101, 1"); E(f"s_add_u32 s101, s101, s{sROT}")
if OPT['rj']: E(f"s_and_b32 s100, s2, 1"); E(f"s_add_u32 s101, s101, s100")
E(f"s_sub_u32 s100, s101, 9"); E(f"s_cmp_ge_u32 s101, 9"); E(f"s_cselect_b32 s101, s100, s101"); E(f"s_lshl_b32 s{sRT}, s101, 7")
E(f"s_lshl_b32 s100, s{sI}, 2")
E(f"s_add_u32 s100, s100, s{sW}")
E(f"s_mul_i32 s{sXB}, s100, {32*1152}")
E(f"s_mul_i32 s{sM0X}, s{sW}, 20480")
E(f"s_add_u32 s{sM0X}, s{sM0X}, {XS}")
E(f"s_mov_b32 s{SX+2}, {2048*1152}"); E(f"s_mov_b32 s{SX+3}, 0x00020000")
E("s_waitcnt lgkmcnt(0)")
E(f"s_mov_b32 s{SX}, s40"); E(f"s_mov_b32 s{SX+1}, s41")
E(TS('pro', 'karg'))

su = deque()
def U(t): su.append(t)
def drain(n):
    for _ in range(min(n, len(su))): E(su.popleft())
def mk_srd(b, p, n):
    U(f"s_mov_b32 s{b}, s{p}"); U(f"s_mov_b32 s{b+1}, s{p+1}"); U(f"s_mov_b32 s{b+2}, {n}"); U(f"s_mov_b32 s{b+3}, 0x00020000")
mk_srd(SWS, 56, WS_REC)
U(f"v_mov_b32 v{vFL}, {EBASE}")
U(RAW(f"""  s_or_b32 s101, s2, s{sW}
  s_cmp_lg_u32 s101, 0
  s_cbranch_scc1 L_noep1
  buffer_load_dword v{vFL+1}, v{vFL}, {srd(SWS)}, 0 offen sc1
L_noep1:"""))
mk_srd(SQ, 42, 576*3456); mk_srd(SO, 44, 576*1152); mk_srd(S1, 48, 576*9216); mk_srd(S2, 50, 4608*1152)
mk_srd(SOUT, 52, 2048*1152); mk_srd(SDB, 54, 256)
U(f"s_and_b32 s{sA}, s2, 3"); U(f"s_lshl_b32 s{sA}, s{sA}, 2"); U(f"s_bfe_u32 s{sB}, s2, 0x20003"); U(f"s_add_u32 s{sJ}, s{sA}, s{sB}")
U(f"v_and_b32 v{vT0}, 31, v{vL}"); U(f"v_lshrrev_b32 v{vT1}, 5, v{vL}"); U(f"v_bfe_u32 v{vT2}, v{vL}, 1, 3")
U(f"v_xor_b32 v{vT2}, v{vT2}, v{vT1}"); U(f"v_lshlrev_b32 v{vT2}, 4, v{vT2}"); U(f"v_lshl_add_u32 v{vT2}, v{vT0}, 7, v{vT2}")
for s in range(4):
    U(f"v_xor_b32 v{vXR+s}, {32*s}, v{vT2}"); U(f"v_add_u32 v{vXR+s}, s{sM0X}, v{vXR+s}")
for k in range(4): U(f"v_mov_b32 v{vST+k}, 0")
U(f"v_lshlrev_b32 v{vL16}, 4, v{vL}")
U(f"s_mov_b32 s95, 0xffff0000"); U(f"s_mov_b32 s{sLO}, -1"); U(f"s_mov_b32 s{sLO+1}, 0")
U(f"v_lshlrev_b32 v{vT2}, 31, v{vT1}"); U(f"v_add_u32 v{vVSC}, 1024, v{vL16}"); U(f"v_add_u32 v{vVSC}, v{vVSC}, v{vT2}")
U(f"v_bfe_u32 v{vT0}, v{vL}, 2, 2"); U(f"v_bfe_u32 v{vT2}, v{vL}, 4, 1"); U(f"v_and_b32 v{vT3_}, 3, v{vL}")
U(f"v_lshl_add_u32 v{vT3_}, v{vT2}, 2, v{vT3_}")
U(f"v_mul_u32_u24 v{vA}, 1088, v{vT0}"); U(f"v_lshl_add_u32 v{vA}, v{vT1}, 9, v{vA}")
U(f"v_mul_u32_u24 v{vT3}, 40, v{vT3_}"); U(f"v_add3_u32 v{vT3}, v{vT3}, v{vA}, 36"); U(f"v_add_u32 v{vT3}, 36, v{vT3}")
U(f"v_lshl_add_u32 v{vA}, v{vT3_}, 3, v{vA}")
U(f"v_lshl_add_u32 v{vS}, v{vT1}, 3, v{vT0}"); U(f"v_lshlrev_b32 v{vS}, 6, v{vS}"); U(f"v_lshl_add_u32 v{vS}, v{vT3_}, 3, v{vS}")
U(f"v_lshl_add_u32 v{vP0}, v{vT1}, 2, v{vT0}"); U(f"v_lshlrev_b32 v{vP0}, 7, v{vP0}"); U(f"v_lshl_add_u32 v{vP0}, v{vT3_}, 3, v{vP0}")
U(f"v_lshrrev_b32 v{vT2}, 1, v{vT0}"); U(f"v_lshl_add_u32 v{vP0}, v{vT2}, 6, v{vP0}"); U(f"v_xor_b32 v{vP1}, 64, v{vP0}")
U(f"v_lshrrev_b32 v{vT0}, 4, v{vL}"); U(f"v_and_b32 v{vT1}, 15, v{vL}")
U(f"v_mul_u32_u24 v{vT2}, {4*9216}, v{vT0}"); U(f"v_lshl_add_u32 v{vDH}, v{vT1}, 4, v{vT2}")
for n in range(1, 4): U(f"v_add_u32 v{vDH+n}, {n*(9216-1088)}, v{vDH}")
U(f"v_min_u32 v{vT1}, 14, v{vT1}"); U(f"v_mul_u32_u24 v{vT2}, 13, v{vT1}"); U(f"v_lshrrev_b32 v{vT2}, 6, v{vT2}")
U(f"v_mul_u32_u24 v{vT3_}, 5, v{vT2}"); U(f"v_sub_u32 v{vT1}, v{vT1}, v{vT3_}"); U(f"v_lshlrev_b32 v{vT1}, 4, v{vT1}")
U(f"v_min_u32 v{vT1}, 56, v{vT1}"); U(f"v_mul_u32_u24 v{vT3_}, 1152, v{vT2}"); U(f"v_add_u32 v{vT1}, v{vT1}, v{vT3_}")
U(f"s_mul_i32 s{sA}, s{sJ}, 72"); U(f"s_xor_b32 s{sB}, s{sJ}, 1"); U(f"s_mul_i32 s{sC}, s{sB}, 72")
U(f"v_mov_b32 v{vT3_}, s{sC}"); U(f"v_mov_b32 v{vDS}, s{sA}"); U(f"v_cmp_eq_u32 vcc, 0, v{vT2}")
U(f"v_mul_u32_u24 v{vT2}, {4*3456}, v{vT0}"); U(f"v_add_u32 v{vT1}, v{vT1}, v{vT2}")
U(f"v_cndmask_b32 v{vT3_}, v{vT3_}, v{vDS}, vcc"); U(f"v_add_u32 v{vDQ}, v{vT1}, v{vT3_}")
for n in range(1, 4): U(f"v_add_u32 v{vDQ+n}, {n*(3456-1088)}, v{vDQ}")
U(f"v_lshrrev_b32 v{vT0}, 2, v{vL}"); U(f"v_mul_u32_u24 v{vT0}, 9216, v{vT0}"); U(f"v_and_b32 v{vT1}, 3, v{vL}")
U(f"v_lshl_add_u32 v{vDS}, v{vT1}, 4, v{vT0}")
U(f"s_mul_i32 s{sQB}, s{sW}, {16*3456}")
U(f"s_and_b32 s{sA}, s{sJ}, 1"); U(f"s_mul_i32 s{sC}, s{sJ}, 288"); U(f"s_lshl_b32 s{sD}, s{sA}, 5"); U(f"s_add_u32 s{sD}, s{sD}, s{sC}")
U(f"s_xor_b32 s{sA}, s{sA}, 1"); U(f"s_lshl_b32 s{sA}, s{sA}, 8"); U(f"s_add_u32 s{sC}, s{sC}, s{sA}")
U(f"s_mul_i32 s{sA}, s{sW}, {16*9216}"); U(f"s_lshl_b32 s{sHA}, s{sD}, 1"); U(f"s_add_u32 s{sHA}, s{sHA}, s{sA}")
U(f"s_add_u32 s{sHB}, s{sHA}, 256"); U(f"s_lshl_b32 s{sSG}, s{sC}, 1"); U(f"s_add_u32 s{sSG}, s{sSG}, s{sA}")
U(f"s_mul_i32 s{sM0A}, s{sW}, {GA_KS}"); U(f"s_mul_i32 s{sM0B}, s{sW}, {GB_KS}"); U(f"s_mul_i32 s{sM0C}, s{sW}, 5120")
U(f"s_lshl_b32 s{sM0D}, s{sW}, 12"); U(f"s_lshl_b32 s{sM0E}, s{sW}, 10")
U(f"s_mul_i32 s{sA}, s{sW}, 40"); U(f"s_add_u32 s{sA}, s{sA}, s{sD}"); U(f"s_mul_i32 s{sW2A}, s{sA}, 1152")
U(f"s_lshl_b32 s{sA}, s{sW}, 5"); U(f"s_add_u32 s{sA}, s{sA}, s{sD}"); U(f"s_add_u32 s{sA}, s{sA}, 160")
U([I(f"s_cmp_eq_u32 s{sW}, 3"), I(f"s_cselect_b32 s{sA}, s{sC}, s{sA}")]); U(f"s_mul_i32 s{sW2B}, s{sA}, 1152")
U(f"s_mul_i32 s{sC}, s{sJ}, 36"); U(f"s_lshl_b32 s{sA}, s{sW}, 3"); U(f"s_lshr_b32 s{sD}, s{sW}, 1"); U(f"s_lshl_b32 s{sD}, s{sD}, 2")
U(f"s_add_u32 s{sA}, s{sA}, s{sD}"); U(f"s_add_u32 s{sA}, s{sA}, s{sC}"); U(f"s_mul_i32 s{sWO5}, s{sA}, 1152")
U(f"s_add_u32 s{sC}, s{sC}, 16"); U(f"s_mul_i32 s{sWO6}, s{sC}, 1152")
NSU = len(su)
for m in range(3):
    U(f"s_add_i32 s{sA}, s{sI}, {m-2}")
    U([I(f"s_cmp_lt_i32 s{sA}, 0"), I(f"s_cselect_b32 s{sA}, s{sI}, s{sA}")])
    U(f"s_lshl_b32 s{sB}, s{sJ}, 4"); U(f"s_add_u32 s{sA}, s{sA}, s{sB}"); U(f"s_lshl_b32 s{sA}, s{sA}, 2"); U(f"s_add_u32 s{sA}, s{sA}, s{sW}")
    U(f"s_mul_i32 s{sA}, s{sA}, {KVB}"); U(f"s_add_u32 s{sKV+m}, s{sA}, {KVBASE}")
U(f"s_xor_b32 s{sA}, s{sJ}, 1"); U(f"s_lshl_b32 s{sA}, s{sA}, 4"); U(f"s_add_u32 s{sA}, s{sA}, s{sI}"); U(f"s_lshl_b32 s{sA}, s{sA}, 2")
U(f"s_add_u32 s{sA}, s{sA}, s{sW}"); U(f"s_mul_i32 s{sA}, s{sA}, {KVB}"); U(f"s_add_u32 s{sKVW}, s{sA}, {KVBASE}")
U(f"s_lshl_b32 s{sA}, s{sI}, 2"); U(f"s_add_u32 s{sA}, s{sA}, s{sW}"); U(f"s_lshl_b32 s{sA}, s{sA}, 4"); U(f"s_add_u32 s{sA}, s{sA}, s{sJ}")
U(f"s_lshl_b32 s{sFW}, s{sA}, 3")
U(f"s_mul_i32 s{sPB}, s{sI}, {9*262144}"); U(f"s_add_u32 s{sPB}, s{sPB}, {PBASE}")
U(f"v_and_b32 v{vT0}, 15, v{vL}"); U(f"v_and_b32 v{vT1}, 1, v{vL}"); U(f"v_lshlrev_b32 v{vT1}, 4, v{vT1}")
U(f"v_mov_b32 v{vT2}, 0x3f80"); U(f"v_lshlrev_b32 v{vT2}, v{vT1}, v{vT2}"); U(f"v_lshrrev_b32 v{vT0}, 1, v{vT0}")
for d in range(4):
    U([I(f"v_cmp_eq_u32 vcc, {d}, v{vT0}"), I("s_nop 1"), I(f"v_cndmask_b32 v{vT1}, 0, v{vT2}, vcc")])
    U(f"v_accvgpr_write_b32 a{aSEL+d}, v{vT1}")

vFW, vFK, vFR, vFL2 = 4, 5, 0, 24
vVA, vVBb = 2, 3
aST = 240
vY0, vY1, vY2 = vE + 4, vE + 5, vE + 6
for x_ in [f"v_bfe_u32 v{vY0}, v{vL}, 2, 3", f"v_lshlrev_b32 v{vY0}, 13, v{vY0}", f"v_and_b32 v{vY1}, 3, v{vL}", f"v_lshl_add_u32 v{vY0}, v{vY1}, 5, v{vY0}",
           f"v_lshrrev_b32 v{vY1}, 5, v{vL}", f"v_lshl_add_u32 v{vY0}, v{vY1}, 4, v{vY0}", f"s_lshl_b32 s{sA}, s{sW}, 16", f"s_lshl_b32 s{sB}, s{sJ}, 9",
           f"s_add_u32 s{sA}, s{sA}, s{sB}", f"v_add_u32 v{vY0}, s{sA}, v{vY0}", f"v_accvgpr_write_b32 a{aST}, v{vY0}",
           f"v_lshrrev_b32 v{vY0}, 4, v{vL}", f"v_lshlrev_b32 v{vY0}, 9, v{vY0}", f"v_and_b32 v{vY1}, 15, v{vL}", f"v_lshl_add_u32 v{vY0}, v{vY1}, 4, v{vY0}",
           f"s_lshl_b32 s{sA}, s{sJ}, 14", f"s_and_b32 s{sB}, s{sW}, 1", f"s_lshl_b32 s{sC}, s{sB}, 13", f"s_add_u32 s{sA}, s{sA}, s{sC}",
           f"s_lshr_b32 s{sC}, s{sW}, 1", f"s_lshl_b32 s{sD}, s{sC}, 8", f"s_add_u32 s{sA}, s{sA}, s{sD}", f"v_add_u32 v{vY0}, s{sA}, v{vY0}",
           f"v_accvgpr_write_b32 a{aST+1}, v{vY0}",
           f"s_lshl_b32 s{sA}, s{sI}, 7", f"s_lshl_b32 s{sD}, s{sJ}, 3", f"s_add_u32 s{sA}, s{sA}, s{sD}",
           f"s_lshl_b32 s{sB}, s{sB}, 2", f"s_add_u32 s{sA}, s{sA}, s{sB}", f"s_mul_i32 s{sA}, s{sA}, 1152", f"s_lshl_b32 s{sC}, s{sC}, 6",
           f"s_add_u32 s{sA}, s{sA}, s{sC}", f"v_bfe_u32 v{vY0}, v{vL}, 1, 2", f"v_mul_u32_u24 v{vY0}, 1152, v{vY0}", f"v_bfe_u32 v{vY1}, v{vL}, 3, 1",
           f"v_lshl_add_u32 v{vY0}, v{vY1}, 5, v{vY0}", f"v_bfe_u32 v{vY1}, v{vL}, 4, 1", f"v_lshl_add_u32 v{vY0}, v{vY1}, 4, v{vY0}", f"v_and_b32 v{vY1}, 1, v{vL}",
           f"v_lshl_add_u32 v{vY0}, v{vY1}, 3, v{vY0}", f"v_lshlrev_b32 v{vY1}, 26, v{vL}", f"v_and_b32 v{vY1}, {OOB:#x}, v{vY1}",
           f"v_add3_u32 v{vY0}, v{vY0}, v{vY1}, s{sA}", f"v_accvgpr_write_b32 a{aST+2}, v{vY0}",
           f"v_lshrrev_b32 v{vY0}, 3, v{vL}", f"v_bfe_u32 v{vY1}, v{vL}, 4, 1", f"v_lshlrev_b32 v{vY1}, 2, v{vY1}",
           f"v_and_b32 v{vY2}, 7, v{vL}", f"v_xor_b32 v{vY2}, v{vY2}, v{vY1}", f"v_mul_u32_u24 v{vY0}, 1152, v{vY0}",
           f"v_lshl_add_u32 v{vY0}, v{vY2}, 4, v{vY0}", f"v_accvgpr_write_b32 a{aST+3}, v{vY0}"]: U(x_)
for x_ in [f"v_bfe_u32 v{vT0}, v{vL}, 2, 2", f"v_min_u32 v{vT0}, 2, v{vT0}", f"s_sub_u32 s{sA}, s{sI}, 2", f"v_add_u32 v{vT0}, s{sA}, v{vT0}"]: U(x_)
for x_ in [f"v_mov_b32 v{vT1}, s{sI}", f"v_cmp_gt_i32 vcc, 0, v{vT0}", f"s_xor_b32 s{sA}, s{sJ}, 1", f"s_lshl_b32 s{sA}, s{sA}, 3",
          f"v_cndmask_b32 v{vT0}, v{vT0}, v{vT1}, vcc"]: U(x_)
for x_ in [f"v_lshlrev_b32 v{vT0}, 9, v{vT0}", f"v_and_b32 v{vT1}, 3, v{vL}", f"v_lshl_add_u32 v{vT0}, v{vT1}, 7, v{vT0}",
          f"v_add_u32 v{vFK}, s{sA}, v{vT0}"]: U(x_)
for x_ in [f"v_cmp_eq_u32 vcc, 0, v{vL}", f"v_mov_b32 v{vFW}, {OOB:#x}", f"s_nop 0", f"v_cndmask_b32_e64 v{vFW}, v{vFW}, 0, vcc"]: U(x_)
for x_ in [f"s_lshl_b32 s{sA}, s{sI}, 9", f"s_lshr_b32 s{sD}, s{sJ}, 2", f"s_lshl_b32 s{sD}, s{sD}, 7", f"s_add_u32 s{sA}, s{sA}, s{sD}"]: U(x_)
for x_ in [f"v_and_b32 v{vT1}, 15, v{vL}", f"v_lshlrev_b32 v{vT1}, 3, v{vT1}", f"v_add_u32 v{vFR}, s{sA}, v{vT1}"]: U(x_)
tabA = bytes([0, 64, 1, 65, 128, 128, 255, 255]); tabB = bytes([192, 129, 193, 254, 128, 128, 255, 255])
lo = lambda b: "0x%08x" % int.from_bytes(b[:4], 'little')
hi = lambda b: "0x%08x" % int.from_bytes(b[4:], 'little')
vX0, vX1 = vR, vR + 1
for x_ in [f"v_bfe_u32 v{vX0}, v{vL}, 4, 1", f"v_and_b32 v{vX1}, 3, v{vL}", f"v_lshl_add_u32 v{vX0}, v{vX0}, 2, v{vX1}",
          f"v_or_b32 v{vX0}, 0x0c0c0c00, v{vX0}"]: U(x_)
for x_ in [f"s_mov_b32 s{sA}, {hi(tabA)}", f"v_mov_b32 v{vX1}, {lo(tabA)}", f"v_perm_b32 v{vVA}, s{sA}, v{vX1}, v{vX0}"]: U(x_)
for x_ in [f"v_mov_b32 v{vX1}, {lo(tabB)}", f"v_perm_b32 v{vVBb}, s{sA}, v{vX1}, v{vX0}", f"v_bfe_u32 v{vX0}, v{vL}, 2, 2", f"v_lshrrev_b32 v{vX1}, 5, v{vL}"]: U(x_)
for x_ in [f"v_lshl_add_u32 v{vX0}, v{vX1}, 2, v{vX0}", f"v_lshlrev_b32 v{vX0}, 4, v{vX0}", f"s_add_u32 s{sM0K}, s{sM0C}, {KVL}",
          f"v_add_u32 v{vX0}, s{sM0K}, v{vX0}"]: U(x_)
for x_ in [f"v_add_u32 v{vX0}, 2560, v{vX0}", f"v_add_u32 v{vX1}, 2, v{vVA}", f"v_cmp_lt_u32 vcc, 0xfd, v{vVA}", f"v_add_u32 v{vR+2}, 2, v{vVBb}"]: U(x_)
for x_ in [f"v_cndmask_b32 v{vVA}, v{vVA}, v{vX1}, vcc", f"v_cmp_lt_u32 vcc, 0xfd, v{vVBb}", f"v_lshl_add_u32 v{vVA}, v{vVA}, 3, v{vX0}",
          f"v_mov_b32 v{vR+18}, 0", f"v_cndmask_b32 v{vVBb}, v{vVBb}, v{vR+2}, vcc"]: U(x_)
for x_ in [f"v_lshl_add_u32 v{vVBb}, v{vVBb}, 3, v{vX0}", f"v_mov_b32 v{vR+19}, 0"]: U(x_)


late = []
if OPT['lates']:
    while len(su) > NSU: late.insert(0, su.pop())
    U(f"v_cmp_eq_u32 vcc, 0, v{vL}"); U(f"v_mov_b32 v{vFW}, {OOB:#x}"); U("s_nop 0"); U(f"v_cndmask_b32_e64 v{vFW}, v{vFW}, 0, vcc")
def rt_next(c): return [I(f"s_add_u32 s{sRT+c}, s{sRT+c-1}, 128"), I(f"s_cmp_eq_u32 s{sRT+c}, 1152"), I(f"s_cselect_b32 s{sRT+c}, 0, s{sRT+c}")]
xh = {}
def x_items(cb):
    it = [(rt_next(cb) if cb else []) + [I(f"s_add_u32 m0, s{sM0X}, {(cb % 5)*4096}"), I(f"s_add_u32 s100, s{sXB}, s{sRT+cb}")]]
    xh[cb] = []
    for g in range(4):
        d = I(f"buffer_load_dwordx4 v{vXD+g}, {srd(SX)}, s100 offen offset:{g*1024} lds"); xh[cb].append(d); it.append([d])
    return it
per = (len(su) + 17) // 18
nx = 0
X1 = OPT['x1']
per = (len(su) + 4*X1 - 3) // (4*X1 - 2)
for cb in range(X1):
    if OPT['h0'] == cb and cb:
        last = max(k for k, t in enumerate(su) if isinstance(t, str) and (f"s{sM0A}," in t or f"s{sHA}," in t))
        drain(last + 1)
        E(chunks[0].items); chunks[0].items = []
    for it in x_items(cb):
        E(it)
        if it[0].kind == 'dma':
            nx += 1
            if nx >= 2: drain(per)
drain(999)
E(TS('pro', 'xiss'))
def stats(cb):
    o = []
    for d in range(16):
        x = XN + 16*cb + d
        o += [I(f"v_dot2c_f32_bf16 v{vST + (d & 1)}, 0x3f803f80, v{x}"), I(f"v_dot2c_f32_bf16 v{vST + 2 + (d & 1)}, v{x}, v{x}")]
    return o
pend = deque()
def stats_mix(cb, every):
    o = stats(cb)
    for k in range(0, 32, every):
        E(o[k:k+every])
        if pend:
            E(pend.popleft())
            if pend and prog[-1].kind != 'dma': E(pend.popleft())
for cb in range(9):
    E(TS('pro', f'w{cb}<')); E(WAITVM(*xh[cb])); E(TS('pro', f'w{cb}>'))
    rds = [E(f"ds_read_b128 {vr(XN + 16*cb + 4*s)}, v{vXR+s} offset:{(cb % 5)*4096}") for s in range(4)]
    if X1 < 5 and cb + X1 <= 8: pend.extend(x_items(cb + X1))
    if cb >= 1: stats_mix(cb - 1, 8)
    while pend and cb <= (4 if X1 == 5 else 8 - X1): E(pend.popleft())
    if X1 == 5 and cb + 5 <= 8:
        E(WAITLG(*rds))
        pend.extend(x_items(cb + 5))
    if cb == 1:
        E(RAW(f"""  s_or_b32 s101, s2, s{sW}
  s_cmp_lg_u32 s101, 0
  s_cbranch_scc1 L_noep2
  v_and_b32 v{vFL+1}, -16, v{vFL+1}
  v_add_u32 v{vFL+1}, 16, v{vFL+1}
  buffer_store_dword v{vFL+1}, v{vFL}, {srd(SWS)}, 0 offen sc1
  v_mov_b32 v{vE+2}, 0
  v_or_b32 v{vE+3}, 1, v{vFL+1}
  buffer_store_dword v{vE+3}, v{vE+2}, {srd(SDB)}, 0 offen sc1
  s_nop 1
L_noep2:"""))
    if cb == OPT['c0at'] and X1 < 5:
        E(chunks[0].items); chunks[0].items = []
    if cb == (4 if X1 == 5 else 8 - X1):
        pend.extend(chunks[0].items)
        if OPT['c1pro']: pend.extend(chunks[1].items); chunks[1].items = []
        for c_ in list(SUB)[:OPT['qpro']]: pend.extend(SUB[c_].items)
    last_rd = rds
E(WAITLG(*last_rd))
STAMP("xdone")

class Gap:
    def __init__(s): s.pre = []; s.post = []; s.frag = None; s.chunk = None; s.budget = OPT['budget']; s.rd = None
gaps = []
basecur = {vA: 0, vT3: 0, vS: 0, vP0: 0, vP1: 0}
def add_mfma(text, frag=None, chunk=None):
    g = Gap(); g.text = text; g.frag = frag; g.chunk = chunk; gaps.append(g); return len(gaps) - 1
def mf(D, A, B, C): return f"v_mfma_f32_32x32x16_bf16 {D}, {A}, {B}, {C}"
KS_FIRST = {}
def ga_steps(c, tiles, ch):
    for s in range(4):
        ks = 4*c + s
        KS_FIRST.setdefault(ks, len(gaps))
        for T in tiles:
            off = ch.base + s*GA_KS
            if T < 3: fr = (vA, off + 80*T, 256)
            elif T == 3: fr = (vT3, off, 256)
            else: fr = (vA, off + IMG + 64*(T-4), 256)
            D = ar(aT + 16*T, 16)
            add_mfma(lambda A, D=D, ks=ks: mf(D, A, vr(XN + 4*ks), D if ks else "0"), fr, ch)
if OPT['hf']:
    ga_steps(0, range(4, 8), chunks[0]); ga_steps(1, range(4, 8), chunks[1]); ga_steps(0, range(4), SUB[0]); ga_steps(1, range(4), SUB[1])
for c in range(2 if OPT['hf'] else 0, 9): ga_steps(c, range(8), chunks[c])
GA_END = len(gaps)
for c in range(9):
    ch = chunks[9 + c]
    for s in range(4):
        ks = 4*c + s
        for T in range(5):
            off = ch.base + s*GB_KS
            fr = (vA, off + 64*T, 256) if T < 4 else (vS, off + IMG, 256)
            D = ar(aG + 16*T, 16)
            add_mfma(lambda A, D=D, ks=ks: mf(D, A, vr(XN + 4*ks), D if ks else "0"), fr, ch)
GB_END = len(gaps)
TORD = [1, 2, 3, 4, 5, 6, 7, 0, 8]
steps = [(h, t) for h in range(2) for t in TORD]
def Kf(h, t): return ar(aK + 36*h + 4*t)
def Q1(h): return vr(vQ + 4*h)
def Q2(h): return vr(vQ + 8 + 4*h)
P1 = []
for u, (h, t) in enumerate(steps):
    S = vr(vSB + 16*(u % 3), 16)
    C = vr(vM0, 16) if t == 0 else (vr(vM8, 16) if t == 8 else "0")
    P1.append((add_mfma(mf(S, Kf(h, t), Q1(h), C)), add_mfma(mf(S, vr(vR + 2*t), Q2(h), S))))
P1_END = len(gaps)
vCM = vE
basecur[vVA] = 0; basecur[vVBb] = 0
P2s = []
NS = len(steps)
for u in range(NS + 2):
    ent = {}
    if u < NS:
        h, t = steps[u]
        S = vr(vSB + 16*(u % 4), 16)
        ent['qa'] = add_mfma(mf(S, Kf(h, t), Q1(h), S if t in (0, 8) else vr(vCM, 16)))
        ent['qb'] = add_mfma(mf(S, vr(vR + 2*t), Q2(h), S))
    if u >= 2:
        h, t = steps[u - 2]
        Pb = vSB + 16*((u - 2) % 4)
        O = ar(aO + 16*h, 16)
        first = (TORD.index(t) == 0)
        for s in range(2):
            fr = (vVA if h == 0 else vVBb, KVB*t + 256*s, 128)
            ent['pv%d' % s] = add_mfma(lambda A, O=O, Pb=Pb, s=s, first=first: mf(O, A, vr(Pb + 4*s), "0" if (first and s == 0) else O), fr, KVC)
    P2s.append(ent)
ATT_END = len(gaps)
vOX = vQ
vPK = 232
def hfrag(ks):
    if ks < 8: return vr(vH1 + 4*ks)
    if ks < 18: return vr(vH2 + 4*(ks - 8))
    return vr(vOX + 4*(ks - 18))
PAIR0 = []
for c in range(9):
    PAIR0.append(len(gaps))
    for ks in range(21):
        ch = chunks[18 + 2*c + (ks >= 10)]
        off = ch.base + (ks if ks < 10 else ks - 10) * 2048
        for T in range(2):
            D = vr(vSB + 32*(c & 1) + 16*T, 16)
            add_mfma(lambda A, D=D, ks=ks: mf(D, A, hfrag(ks), D if ks else "0"), (vP0 + T, off, 1024 if ks < 20 else None), ch)
NG = len(gaps)

PD = OPT['PD']
first_use, last_use = {}, {}
for g, G in enumerate(gaps):
    if G.chunk is not None:
        first_use.setdefault(G.chunk, g); last_use[G.chunk] = g
bar_at = {}
for ch in chunks[1:] + list(SUB.values()): bar_at[first_use[ch] - PD] = ch
BKV = GB_END - 6
assert BKV not in bar_at
bar_at[BKV] = KVC
REL = Chunk(); REL.kind = 'rel'; REL.n = 99; REL.dmas = []
bar_at[P1_END - 8] = REL
bars = sorted(bar_at)
def release_gap(key): return min(b for b in bars if b > last_use[key])
for ch in chunks[2:] + [KVC]:
    nb = 0
    for o in (chunks[:ch.n] if ch is not KVC else chunks[:18]) + list(SUB.values()):
        if o.base < ch.base + ch.size and ch.base < o.base + o.size: nb = max(nb, release_gap(o))
    if ch.base + ch.size > KVL and ch.kind.startswith('p2'): nb = max(nb, release_gap(KVC))
    ch.nb = nb

fragno = 0
reads_at = {}
for g, G in enumerate(gaps):
    if G.frag is None:
        G.m = I(G.text); continue
    G.fb = aF + 4*(fragno % 8); fragno += 1
    G.m = I(G.text(ar(G.fb)))
    reads_at.setdefault(g - PD, []).append(g)
def emit_reads(g):
    G = gaps[g]; bv, off, d = G.frag
    outl = []
    if off < basecur[bv] or off + (d or 0) - basecur[bv] > 65535 - 8:
        nbase = off & ~0x7ff
        outl.append(I(f"v_add_u32 v{bv}, {(nbase - basecur[bv]) & 0xffffffff:#x}, v{bv}"))
        basecur[bv] = nbase
    G.rd = [I(f"ds_read_b64_tr_b16 {ar(G.fb, 2)}, v{bv} offset:{off - basecur[bv]}")]
    if d is not None: G.rd.append(I(f"ds_read_b64_tr_b16 {ar(G.fb + 2, 2)}, v{bv} offset:{off + d - basecur[bv]}"))
    return outl + G.rd

class Stream:
    def __init__(s, name): s.q = deque(); s.name = name
    def add(s, ins, nb=0, dl=10**9):
        ins = [x if isinstance(x, I) else I(x) for x in (ins if isinstance(ins, list) else [ins])]
        s.q.append((nb, dl, ins)); return ins[-1]
lateq = None
norm, epi, side, dmaq = Stream('norm'), Stream('epi'), Stream('side'), Stream('dma')

def norm_ops(ks):
    o = []
    T = lambda d: vE + 2*d
    for d in range(4): o += [f"v_lshlrev_b32 v{T(d)}, 16, v{XN+4*ks+d}", f"v_and_b32 v{T(d)+1}, s95, v{XN+4*ks+d}"]
    for d in range(4): o += [f"v_fma_f32 v{T(d)}, v{T(d)}, v{vRS}, v{vNB}", f"v_fma_f32 v{T(d)+1}, v{T(d)+1}, v{vRS}, v{vNB}"]
    for d in range(4): o += [f"v_cvt_pk_bf16_f32 v{XN+4*ks+d}, v{T(d)}, v{T(d)+1}"]
    return o
for ks in range(1, 36):
    for x in norm_ops(ks): norm.add(x, nb=max(0, KS_FIRST[ks] - 40), dl=KS_FIRST[ks] - 1)

def chk_ops(need, fl):
    return [f"s_add_u32 s{sA}, s{sT}, {need}", f"v_subrev_u32 v{fl}, s{sA}, v{fl}", f"v_cmp_eq_u32 s[{sCK}:{sCK+1}], s{sTH}, v{fl+1}",
            f"v_cmp_ge_u32 vcc, {15 - need}, v{fl}", f"s_and_b64 vcc, vcc, s[{sCK}:{sCK+1}]", f"s_cmp_eq_u64 vcc, -1"]
def poll_load(vaddr, lines=1): return VM(f"buffer_load_dwordx2 {vr(vFL, 2)}, v{vaddr}, {srd(SWS)}, 0 offen sc1", lines)
def poll_check(name, need, vaddr):
    chk = chk_ops(need, vFL)
    slow_paths.append(f"""L_slow_{name}:
  s_mov_b32 s{sD}, 0
L_spin_{name}:
  buffer_load_dwordx2 v[{vFL}:{vFL+1}], v{vaddr}, {srd(SWS)}, 0 offen sc1
  s_waitcnt vmcnt(0)
  """ + "\n  s_nop 1\n  ".join(chk) + f"""
  s_cbranch_scc1 L_back_{name}
  s_add_u32 s{sD}, s{sD}, 1
  s_cmp_lt_u32 s{sD}, 0x40000
  s_cbranch_scc1 L_spin_{name}
  s_branch L_back_{name}
""")
    g_ = 'gb' if name == 'kv' else 'poll'
    return TS(g_, f'poll{name}<') + [I(x) for x in chk] + [I(f"s_cbranch_scc0 L_slow_{name}"), I(f"L_back_{name}:")] + TS(g_, f'poll{name}>')
side.add([VM(f"buffer_load_dword v{vFL}, v{vFW}, {srd(SDB)}, 0 offen sc1", 1)], nb=100)
slow_paths.append(f"""L_slow_tag:
  s_mov_b32 s{sD}, 0
L_spin_tag:
  s_sleep 2
  buffer_load_dword v{vFL}, v{vFW}, {srd(SDB)}, 0 offen sc1
  s_waitcnt vmcnt(0)
  v_readfirstlane_b32 s{sT}, v{vFL}
  s_nop 1
  s_cmp_lg_u32 s{sT}, 0
  s_cbranch_scc1 L_back_tag
  s_add_u32 s{sD}, s{sD}, 1
  s_cmp_lt_u32 s{sD}, 0x40000
  s_cbranch_scc1 L_spin_tag
  s_branch L_back_tag
""")
side.add([f"v_readfirstlane_b32 s{sT}, v{vFL}", f"s_cmp_lg_u32 s{sT}, 0", "s_cbranch_scc0 L_slow_tag", "L_back_tag:",
          f"s_and_b32 s{sT}, s{sT}, -16", f"s_xor_b32 s{sTH}, s{sT}, {THI:#x}"], nb=160)
vFW, vFK, vFR, vFL2 = 4, 5, 0, 24
p2_setup = [f"v_accvgpr_read_b32 v{vDQ}, a{aST+3}"] + [f"v_add_u32 v{vDQ+n}, {n*8192}, v{vDQ}" for n in range(1, 4)]

lateq = Stream('late')
import re as _re
def _fix(t):
    t = t.text if isinstance(t, I) else t
    for a_, b_ in ((vY0, vR + 8), (vY1, vR + 9), (vY2, vR + 10)): t = _re.sub(rf"\bv{a_}\b", f"v{b_}", t)
    for a_, b_ in ((sA, 40), (sB, 41), (sC, 42), (sD, 43)): t = _re.sub(rf"\bs{a_}\b", f"s{b_}", t)
    return t
skip = 0
lt = []
for x in late:
    xs = x if isinstance(x, list) else [x]
    lt.append([_fix(y) for y in xs])
out_ = []
k = 0
while k < len(lt):
    it = lt[k]
    if it[0].startswith(f"v_cmp_eq_u32 vcc, 0, v{vL}"): k += 4; continue
    out_.append(it); k += 1
seln = next((n for n, it in enumerate(out_) if f"a{aSEL+3}," in it[0]), -1)
for n in range(seln + 1):
    out_[n] = [_re.sub(r"\bv4\b", f"v{vR+13}", _re.sub(r"\bv3\b", f"v{vR+12}", _re.sub(r"\bv2\b", f"v{vR+11}", t))) for t in out_[n]]
n = 0
while n < len(out_):
    it = out_[n]
    if len(it) == 1 and it[0].startswith("v_cmp"):
        m = n
        while "v_cndmask" not in out_[m][0]: m += 1
        it = sum(out_[n:m + 1], []); n = m
    lateq.add(it, nb=0, dl=GA_END - 1); n += 1
e0 = GA_END + 2
CSC = math.log2(math.e) / math.sqrt(18.0)
def rd_cvt(acc, n, dst, scale=None, relu=False, nb=e0, tb=vE, dl=10**9):
    for k0 in range(0, n, 8):
        m = min(8, n - k0)
        for k in range(m): epi.add(f"v_accvgpr_read_b32 v{tb+k}, a{acc+k0+k}", nb=nb, dl=dl)
        if scale:
            for k in range(m): epi.add(f"v_mul_f32 v{tb+k}, {scale}, v{tb+k}", nb=nb, dl=dl)
        for k in range(0, m, 2): epi.add(f"v_cvt_pk_bf16_f32 v{dst+(k0+k)//2}, v{tb+k}, v{tb+k+1}", nb=nb, dl=dl)
        if relu:
            for k in range(0, m, 2): epi.add(f"v_pk_max_i16 v{dst+(k0+k)//2}, v{dst+(k0+k)//2}, 0", nb=nb, dl=dl)
LO = f"s[{sLO}:{sLO+1}]"
kP, x8, vP_ = vH1, vH1 + 8, vH1 + 16
st = []
URGENT = set()
def KVST(text, lines):
    x = VM(text, lines); epi.add(x, nb=e0); st.append(x); URGENT.add(id(x))
rd_cvt(aT + 16, 16, kP)
KVST(f"buffer_store_dwordx4 {vr(kP)}, v{vL16}, {srd(SWS)}, s{sKVW} offen sc1", 8)
rd_cvt(aT + 48 + 4, 8, x8)
epi.add(f"v_cndmask_b32_e64 v{x8+6}, 0, v{kP+4}, {LO}", nb=e0); epi.add(f"v_cndmask_b32_e64 v{x8+7}, 0, v{x8+1}, {LO}", nb=e0)
epi.add(f"v_cndmask_b32_e64 v{kP+4}, v{kP+4}, v{x8}, {LO}", nb=e0)
epi.add(f"v_lshrrev_b32 v{vE+8}, 1, v{vL16}", nb=e0)
KVST(f"buffer_store_dwordx4 {vr(kP+4)}, v{vL16}, {srd(SWS)}, s{sKVW} offen offset:1024 sc1", 8)
epi.add(f"v_mov_b32 v{x8+4}, 0x3f803f80", nb=e0); epi.add(f"v_mov_b32 v{x8+5}, 0x3f803f80", nb=e0)
rd_cvt(aT + 32, 8, vP_)
KVST(f"buffer_store_dwordx2 {vr(x8+6, 2)}, v{vE+8}, {srd(SWS)}, s{sKVW} offen offset:2048 sc1", 4)
rd_cvt(aT + 40, 8, vP_ + 4)
KVST(f"buffer_store_dwordx4 {vr(vP_)}, v{vL16}, {srd(SWS)}, s{sKVW} offen offset:2560 sc1", 8)
rd_cvt(aT, 8, vQ, scale=f32(CSC))
KVST(f"buffer_store_dwordx4 {vr(vP_+4)}, v{vL16}, {srd(SWS)}, s{sKVW} offen offset:3584 sc1", 8)
rd_cvt(aT + 8, 8, vQ + 4, scale=f32(CSC))
KVST(f"buffer_store_dwordx4 {vr(x8+2)}, v{vVSC}, {srd(SWS)}, s{sKVW} offen offset:3584 sc1", 4)
rd_cvt(aT + 48, 4, vQ + 14, scale=f32(CSC))
epi.add(f"v_mov_b32 v{vQ+13}, 0x3f80", nb=e0)
epi.add(f"v_cndmask_b32_e64 v{vQ+8}, v{vQ+13}, v{vQ+4}, {LO}", nb=e0)
epi.add(f"v_cndmask_b32_e64 v{vQ+4}, v{vQ+4}, v{vQ+14}, {LO}", nb=e0)
epi.add(f"v_cndmask_b32_e64 v{vQ+13}, v{vQ+13}, v{vQ+15}, {LO}", nb=e0)
for k in (9, 10, 11, 12, 14, 15): epi.add(f"v_mov_b32 v{vQ+k}, 0", nb=e0)
for T in range(4): rd_cvt(aT + 64 + 16*T, 16, vH1 + 8*T, relu=True, dl=BKV - 1)

def publish(count, waits):
    g_ = 'gb' if count == 1 else 'pub'
    return TS(g_, f'pub{count}<') + [WAITVM(*waits)] + TS(g_, f'pub{count}>') + [I(f"s_add_u32 s{sB}, s{sT}, {count}"), I(f"v_mov_b32 v{vFL2}, s{sB}"),
            VM(f"buffer_store_dwordx2 {vr(vFL2, 2)}, v{vFW}, {srd(SWS)}, s{sFW} offen sc1", 1)]
side.add(f"v_mov_b32 v{vFL2+1}, s{sTH}", nb=GA_END + 1)
side.add(publish(1, st), nb=GA_END + OPT['kvpub'])
side.add(poll_load(vFK, 12), nb=GA_END + OPT['kvpoll'])
kvchk = side.add(poll_check('kv', 1, vFK), nb=GA_END + OPT['kvchk'], dl=GA_END + OPT['kvchk'])
KVC.nb = max(KVC.nb, GA_END + OPT['kvchk'])
vKL, vKXL = vVS, vVSC
side.add([f"v_add_u32 v{vKL}, s{sM0K}, v{vL16}", f"v_lshrrev_b32 v{vKXL}, 1, v{vL16}", f"v_add_u32 v{vKXL}, s{sM0K}, v{vKXL}"], nb=GA_END + OPT['kvchk'], dl=BKV)
rld = []
def kread(h, t): return I(f"ds_read_b128 {Kf(h, t)}, v{vKL} offset:{KVB*t + 1024*h}")
for k, t in enumerate(TORD):
    x = I(f"ds_read_b64 {vr(vR + 2*t, 2)}, v{vKXL} offset:{KVB*t + 2048}"); rld.append(x)
    gaps[BKV + k // 2].post += [x]
for k, (h, t) in enumerate(steps):
    gaps[min(BKV + 2 + k, P1[k][0] - 3) if k >= 4 else BKV + k].post += [kread(h, t)]
blk = [f"  s_cmp_ge_u32 s{sI}, 2", "  s_cbranch_scc1 L_nobias", f"  s_lshl_b32 s{sA}, s{sI}, 2", f"  s_add_u32 s{sA}, s{sA}, s{sW}",
       "  s_mov_b32 exec_lo, 0"]
for t in range(8):
    blk += [f"  s_cmp_ge_u32 s{sA}, {8 - t}", f"  s_cbranch_scc1 L_bias_done", f"  v_mov_b32 v{vR+2*t}, 0xf149", f"  v_mov_b32 v{vR+2*t+1}, 0xf149"]
blk += ["L_bias_done:", "  s_mov_b32 exec_lo, -1", "  s_nop 1", "L_nobias:"]
gaps[P1[0][1]].pre += [WAITLG(*rld), RAW("\n".join(blk))]

epi.add([f"v_and_b32 v{vTT}, 31, v{vL}", f"v_lshrrev_b32 v{vTT+1}, 5, v{vL}", f"v_lshlrev_b32 v{vTT+1}, 2, v{vTT+1}",
         f"v_sub_u32 v{vTT}, v{vTT}, v{vTT+1}"], nb=GB_END)
epi.add([f"v_cvt_f32_i32 v{vTT}, v{vTT}", f"v_add_f32 v{vTT}, 0.5, v{vTT}", f"v_mul_f32 v{vTT+1}, {f32(1e30)}, v{vTT}"], nb=GB_END)
for k in range(16):
    cc = 8*(k >> 2) + (k & 3)
    epi.add(f"v_sub_f32 v{vM8+k}, {f32(cc*1e30)}, v{vTT+1}", nb=GB_END, dl=P1[7][0] - 1)
    epi.add(f"v_min_f32 v{vM0+k}, 0, v{vM8+k}", nb=GB_END, dl=P1[7][0] - 1)
    epi.add(f"v_min_f32_e64 v{vM8+k}, 0, -v{vM8+k}", nb=GB_END, dl=P1[7][0] - 1)
for T in range(5): rd_cvt(aG + 16*T, 16, vH2 + 8*T, relu=True, nb=GB_END + 2, tb=vTT, dl=PAIR0[0] + 14 + 4*T)

for g in range(GA_END, GA_END + 24): gaps[g].budget = OPT['kvbud']
if OPT['hf']:
    for g in range(28): gaps[g].budget = 6
vMX = 16
def max_ops(u, half):
    h, t = steps[u]; S = vSB + 16*(u % 3) + 8*half
    o = []
    for k in range(4):
        acc = vMX + 2*h + (k & 1)
        if TORD.index(t) == 0 and half == 0 and k < 2: o.append(I(f"v_max_f32 v{acc}, v{S+2*k}, v{S+2*k+1}"))
        else: o.append(I(f"v_max3_f32 v{acc}, v{acc}, v{S+2*k}, v{S+2*k+1}"))
    return o
def fin_max(h):
    m = vMX + 2*h
    return [I(f"v_max_f32 v{m}, v{m}, v{m+1}"), I(f"v_mov_b32 v{m+1}, v{m}"), I(f"v_permlane32_swap_b32 v{m}, v{m+1}"),
            I(f"v_max_f32 v{m}, v{m}, v{m+1}"), I(f"v_sub_f32 v{m}, 0, v{m}")]
def cm_ops(h): return [I(f"v_mov_b32 v{vCM+k}, v{vMX+2*h}") for k in range(16)]
for u in range(2, NS):
    gaps[P1[u][0]].post += max_ops(u - 2, 0); gaps[P1[u][1]].post += max_ops(u - 2, 1)
gaps[P1[11][0]].post += fin_max(0)
for k in range(4): gaps[P1[12 + k][0]].post += cm_ops(0)[4*k:4*k+4]
for u in range(2):
    gaps[P2s[u]['qa']].post += max_ops(NS - 2 + u, 0); gaps[P2s[u]['qb']].post += max_ops(NS - 2 + u, 1)
gaps[P2s[2]['pv1']].post += fin_max(1)
for u in range(1, NS + 1):
    S = vSB + 16*((u - 1) % 4)
    ex = [I(f"v_exp_f32 v{S+k}, v{S+k}") for k in range(16)]
    cv = [I(f"v_cvt_pk_bf16_f32 v{S+k}, v{S+2*k}, v{S+2*k+1}") for k in range(8)]
    e = P2s[u]
    if u == 1:
        gaps[e['qa']].post += ex[:8]; gaps[e['qb']].post += ex[8:] + cv
    elif u < NS:
        gaps[e['qa']].post += ex[:5]; gaps[e['qb']].post += ex[5:10]
        gaps[e['pv0']].post += ex[10:14] + cv[:2]; gaps[e['pv1']].post += ex[14:] + cv[2:]
    else:
        gaps[e['pv0']].post += ex[:10]; gaps[e['pv1']].post += ex[10:] + cv
    if u + 1 < NS and steps[u + 1][1] in (0, 8):
        h, t = steps[u + 1]; Sn = vSB + 16*((u + 1) % 4); M = vM0 if t == 0 else vM8
        gaps[e['pv1']].post += [I(f"v_add_f32 v{Sn+k}, v{M+k}, v{vMX+2*h}") for k in range(16)]
gaps[P2s[7]['pv0']].post += cm_ops(1)
for g in range(GB_END, ATT_END): gaps[g].budget = OPT['abud'] if g < P1_END else OPT['a2bud']
onq = Stream('onorm')
def onorm(h, nb, dl, tb):
    O = aO + 16*h; rc = vFL
    A = lambda t: onq.add(t, nb=nb, dl=dl)
    A(f"v_accvgpr_read_b32 v{rc}, a{O+12}")
    for k in range(8): A(f"v_accvgpr_read_b32 v{tb+k}, a{O+k}")
    A(f"v_rcp_f32 v{rc}, v{rc}")
    A(f"v_accvgpr_read_b32 v{rc+1}, a{O+8+2*h}")
    for k in range(8): A(f"v_mul_f32 v{tb+k}, v{rc}, v{tb+k}")
    for k in range(4): A(f"v_cvt_pk_bf16_f32 v{vOX+4*h+k}, v{tb+2*k}, v{tb+2*k+1}")
    A(f"v_accvgpr_read_b32 v{tb}, a{O+9+2*h}")
    A(f"v_mul_f32 v{rc+1}, v{rc}, v{rc+1}"); A(f"v_mul_f32 v{tb}, v{rc}, v{tb}")
    A(f"v_cvt_pk_bf16_f32 v{tb}, v{rc+1}, v{tb}")
    A(f"v_cndmask_b32_e64 v{vOX+8+h}, 0, v{tb}, {LO}")
onorm(0, PAIR0[0], PAIR0[0] + 33, vE)
onorm(1, PAIR0[0] + 2, PAIR0[0] + 35, vE)

vPW, vPR, vPR2, vOUT = 16, 17, 18, 19
p0 = PAIR0[0] + 36
side.add([f"v_accvgpr_read_b32 v{vPW}, a{aST}", f"v_accvgpr_read_b32 v{vPR}, a{aST+1}", f"v_accvgpr_read_b32 v{vOUT}, a{aST+2}",
          f"v_add_u32 v{vPR2}, 4096, v{vPR}"], nb=p0, dl=PAIR0[1])

def p2_epi(p):
    A = vSB + 32*(p & 1)
    o = [[I(f"s_add_u32 s{sRS}, s{sPB}, {p*262144}")]]
    sts = []
    for q4 in range(4):
        for k in range(4): o.append([I(f"v_cvt_pk_bf16_f32 v{vPK+4*q4+k}, v{A+8*q4+2*k}, v{A+8*q4+2*k+1}")])
        x = VM(f"buffer_store_dwordx4 {vr(vPK+4*q4)}, v{vPW}, {srd(SWS)}, s{sRS} offen offset:{128*q4} sc1", 8)
        o.append([x]); sts.append(x)
    return o, sts
RXT = [216, 224, 248, 76, 84, 96, 104, 28, 36]
aRD = 0
def red_loads(p):
    a = aRD + 16*p
    o = [[I(f"s_add_u32 s{sRS+1}, s{sPB}, {p*262144}")]]
    for n in range(4):
        o.append([VM(f"buffer_load_dwordx4 {ar(a+4*n)}, v{vPR if n < 2 else vPR2}, {srd(SWS)}, s{sRS+1} offen offset:{2048*(n&1)} sc1", 8)])
    return o
def x_load(p): return [VM(f"buffer_load_dwordx2 {vr(RXT[p], 2)}, v{vOUT}, {srd(SX)}, s{sRT+p} offen", 4)]
def red_comp(p):
    a = aRD + 16*p; x = RXT[p]; C = x + 4
    o = [[I(f"v_lshlrev_b32 v{C}, 16, v{x}")], [I(f"v_and_b32 v{C+1}, 0xffff0000, v{x}")],
         [I(f"v_lshlrev_b32 v{C+2}, 16, v{x+1}")], [I(f"v_and_b32 v{C+3}, 0xffff0000, v{x+1}")]]
    mm = [[I(f"v_mfma_f32_16x16x32_bf16 {vr(C)}, {ar(aSEL)}, {ar(a+4*n)}, {vr(C)}")] for n in range(4)]
    fin = [[I(f"v_cvt_pk_bf16_f32 v{x+2}, v{C}, v{C+1}")], [I(f"v_cvt_pk_bf16_f32 v{x+3}, v{C+2}, v{C+3}")],
           [VM(f"buffer_store_dwordx2 {vr(x+2, 2)}, v{vOUT}, {srd(SOUT)}, s{sRT+p} offen" + (" sc1" if OPT['osc'] else ""), 4)]]
    return o, mm, fin
pst = {}
ev = []
red = Stream('red')
for c in range(1, 9):
    o, pst[c - 1] = p2_epi(c - 1)
    for x in o: epi.add(x, nb=PAIR0[c] + 3, dl=PAIR0[c] + 40)
for c in range(2, 9):
    if c in (5, 7, 8): ev.append((PAIR0[c] + OPT['pubat'], [publish(c, sum([pst[k] for k in range(c - 1)], []))]))
for p in range(7): ev.append((PAIR0[2] + 30 + 20*p, [x_load(p)]))
INL = OPT['inl']
if INL:
    ev.append((PAIR0[6] + 20, [[poll_load(vFR)]]))
    ev.append((PAIR0[7] + 2, [poll_check('ra', 5, vFR)]))
    for p in range(INL):
        for k_, it in enumerate(red_loads(p)): ev.append((PAIR0[7] + OPT['in0'] + ((84 - OPT['in0']) // (4*INL)) * (4*p + max(0, k_ - 1)), [it]))
ev.append((PAIR0[8] + (22 if OPT['tail'] == 0 else 34), [[poll_load(vFR)]]))
for gp, items in sorted(ev, key=lambda x: x[0]):
    for it in items: side.add(it, nb=gp)
pf = Stream('pf')
for g_ in [int(x) for x in OPT['cpf'].split(',') if x]:
    pf.add([f"s_lshr_b32 s3, s2, 3", f"s_lshl_b32 s3, s3, 2", f"s_add_u32 s3, s3, s{sW}", f"s_lshl_b32 s3, s3, 9"], nb=g_)
    pf.add([f"v_accvgpr_read_b32 v{vFL}, a{aST+4}", VM(f"buffer_load_dword v{vFL}, v{vFL}, {srd(SCODE)}, s3 offen", 1)], nb=g_)

s8 = stats(8)
c0n = len(chunks[0].items)
def c0_left(): return any(any(x is d for d in chunks[0].dmas for x in it) for it in pend)
k8 = 0
while c0_left():
    E(pend.popleft()); E(s8[k8:k8+4]); k8 += 4
E(s8[k8:])
E(f"v_add_f32 v{vST}, v{vST}, v{vST+1}"); E(f"v_add_f32 v{vST+2}, v{vST+2}, v{vST+3}")
E(f"v_mov_b32 v{vST+1}, v{vST}"); E(f"v_mov_b32 v{vST+3}, v{vST+2}")
if pend: E(pend.popleft())
E(f"v_permlane32_swap_b32 v{vST}, v{vST+1}"); E(f"v_permlane32_swap_b32 v{vST+2}, v{vST+3}")
E(f"v_add_f32 v{vST}, v{vST}, v{vST+1}"); E(f"v_add_f32 v{vST+2}, v{vST+2}, v{vST+3}")
E(f"v_mul_f32 v{vST}, {f32(1/576)}, v{vST}")
E(f"v_mul_f32 v{vST+2}, {f32(1/576)}, v{vST+2}")
E(f"v_fma_f32 v{vST+2}, -v{vST}, v{vST}, v{vST+2}")
E(f"v_max_f32 v{vST+2}, 0, v{vST+2}")
E(f"v_add_f32 v{vST+2}, {f32(1e-5)}, v{vST+2}")
E(f"v_rsq_f32 v{vRS}, v{vST+2}")
if pend: E(pend.popleft())
E(f"v_mul_f32_e64 v{vNB}, -v{vST}, v{vRS}")
n0 = norm_ops(0)
E(n0[:8])
E(TS('pro', 'c0<')); E(WAITVM(*chunks[0].dmas)); E(TS('pro', 'c0w')); E("s_barrier"); E(TS('pro', 'b0'))
for pos_ in sorted(k for k in reads_at if k < 0):
    for g in reads_at[pos_]: E(emit_reads(g))
E(n0[8:])
STAMP("ga0")

for it in pend: dmaq.add(it, nb=0, dl=0)
for c_ in list(SUB)[OPT['qpro']:]:
    for it in SUB[c_].items: dmaq.add(it, nb=0, dl=0)
chunks[1].nb = 0
order = chunks[1:18] + [KVC] + chunks[18:]
for ch in order:
    if ch.n == 18 and ch is not KVC:
        dmaq.add([f"s_lshl_b32 s{sRT}, s{sROT}, 7"], nb=0)
        for c_ in range(1, 9): dmaq.add(rt_next(c_), nb=0)
        dmaq.add(p2_setup, nb=0)
    if ch.n >= 18 and ch is not KVC: ch.nb = max(ch.nb, GB_END)
    for k_, it in enumerate(ch.items): dmaq.add(it, nb=(ch.nb if not (ch is KVC and k_ < ch.segstart[0]) else GA_END + OPT['kvchk']), dl=(BKV if ch is KVC else first_use[ch] - PD))
marks = {GA_END: 'gb0', GB_END: 'att0', P1_END: 'att2', ATT_END: 'p2_0'}
if 'p2' in OPT['ts'].split(','):
    for c in range(1, 9): marks[PAIR0[c]] = f'pair{c}'
fr_list = [g for g in range(NG) if gaps[g].frag is not None]
fr_idx = {g: k for k, g in enumerate(fr_list)}
backlog = 200.0
last_dma = [-99]
issued = {id(x) for x in prog}
lastg = {}
def emit_items(ins, g):
    global backlog
    c = 0
    for x in ins:
        E(x); c += x.cost; issued.add(id(x))
        if id(x) in LINES:
            backlog += LINES[id(x)] * 4 * OPT['lc']; lastg[id(x)] = g
    return c
for g, G in enumerate(gaps):
    if g in marks: STAMP(marks[g])
    for s_ in (norm, lateq, side, epi, onq, red, pf):
        lastdl = max([k for k, (nb, dl, _) in enumerate(s_.q) if dl <= g] + [-1])
        for _ in range(lastdl + 1):
            nb, dl, ins = s_.q.popleft()
            assert nb <= g, (s_.name, nb, dl, g, ins)
            emit_items(ins, g)
    if g in bar_at:
        key = bar_at[g]
        grp_ = 'b' + key.kind[:2]; nm_ = 'KV' if key is KVC else str(key.n)
        while not all(id(d) in issued for d in key.dmas):
            print("late DMA", nm_, g, file=sys.stderr)
            nb, dl, ins = dmaq.q.popleft(); assert nb <= g; emit_items(ins, g)
        E(TS(grp_, f'B{nm_}<')); E(WAITVM(*key.dmas)); E(TS(grp_, f'B{nm_}|')); E("s_barrier")
        if grp_ != 'bp2': E(TS(grp_, f'B{nm_}>'))
    E(G.pre)
    if G.frag is not None:
        k = fr_idx[g]
        wq = OPT['wq']
        if k % wq == 0:
            kk = k + wq - 1
            while kk > k and not (kk < len(fr_list) and gaps[fr_list[kk]].rd and fr_list[kk] - g <= wq): kk -= 1
            if kk > k: E(WAITLG(*gaps[fr_list[kk]].rd))
    E(G.m)
    cost = 0
    for gg in reads_at.get(g, []):
        for x in emit_reads(gg):
            E(x)
            if x.kind != 'dsr': cost += 1
    if not reads_at.get(g): cost -= 2
    for x in G.post: E(x); cost += x.cost
    fixed = cost
    vm_done = False
    urgent_dma = dmaq.q and dmaq.q[0][1] - g < OPT['dmarg']
    for s_ in ((dmaq, norm, pf, side, red, onq, epi, lateq) if (urgent_dma or g < ATT_END) else (side, pf, red, onq, epi, dmaq)):
        n_ = 0
        while s_.q and s_.q[0][0] <= g:
            ins = s_.q[0][2]
            isvm = any(id(x) in LINES for x in ins)
            if isvm and s_ is dmaq and g >= GA_END - 40 and g - last_dma[0] < (OPT['attp'] if GB_END <= g < ATT_END else OPT['dsp']) and s_.q[0][1] - g > OPT['dmarg']: break
            if isvm and any(x.kind == 'vst' and LINES[id(x)] >= 4 and id(x) not in URGENT for x in ins) and backlog > OPT['stb']: break
            if isvm and (vm_done or backlog > OPT['tcp']) and not any(id(x) in URGENT for x in ins): break
            lim = max(G.budget, fixed + 1) if s_ is dmaq else G.budget
            if cost >= lim: break
            s_.q.popleft(); cost += emit_items(ins, g); n_ += 1
            if isvm: vm_done = True
            if isvm and s_ is dmaq: last_dma[0] = g
            if s_ is dmaq: break
    backlog = max(0.0, backlog - max(33.0, 8 + 4.4 * (cost + 2.5)))
assert not dmaq.q and not norm.q and not epi.q and not onq.q, (len(dmaq.q), len(norm.q), len(epi.q))
for _, _, ins in side.q: E(ins)
STAMP('tail0')
def comp(p):
    o, mm, fin = red_comp(p); E(o + mm + fin)
if OPT['tail'] == 0:
    o, pst[8] = p2_epi(8)
    E(o)
    E(poll_check('rb', 5, vFR))
    E(red_loads(0)); E(red_loads(1))
    E(publish(10, pst[8]))
    STAMP('pub10')
    E(poll_load(vFR))
    E(x_load(7)); E(x_load(8))
    E(red_loads(2)); E(red_loads(3))
    E(poll_check('rc', 8, vFR))
    E(red_loads(4)); comp(0)
    E(poll_load(vFR))
    E(red_loads(5)); comp(1)
    E(red_loads(6)); comp(2)
    E(poll_check('r8', 10, vFR))
    STAMP('got10')
    E(red_loads(7)); comp(3)
    E(red_loads(8))
    for p in range(4, 9): comp(p)
else:
    o, pst[8] = p2_epi(8)
    E(o)
    E(poll_check('rb', 7, vFR))
    todo = list(range(INL, 6)); done = list(range(INL))
    def nxt(n):
        for _ in range(n):
            if todo:
                p = todo.pop(0); E(red_loads(p)); done.append(p)
    nxt(2 if INL <= 2 else 1)
    E(publish(10, pst[8]))
    STAMP('pub10')
    E(x_load(7)); E(x_load(8))
    npre = max(0, len(todo) - 2)
    nxt(npre); comp(done.pop(0))
    E(poll_load(vFR))
    nxt(1); comp(done.pop(0))
    nxt(1); comp(done.pop(0))
    E(poll_check('r8', 10, vFR))
    STAMP('got10')
    todo = [6, 7, 8]
    nxt(1); comp(done.pop(0))
    nxt(1); comp(done.pop(0))
    nxt(1)
    for p in done: comp(p)
if OPT['timing']:
    E("s_waitcnt vmcnt(0)"); STAMP("end")
    E(f"s_lshl_b32 s{sA}, s2, 10"); E(f"s_lshl_b32 s{sB}, s{sW}, 8"); E(f"s_add_u32 s{sA}, s{sA}, s{sB}"); E(f"s_add_u32 s{sA}, s{sA}, {DBGW}")
    E(RAW("  s_memrealtime s[98:99]\n  s_waitcnt lgkmcnt(0)\n  v_writelane_b32 v11, s98, 63\n  s_nop 4"))
    E(f"v_lshlrev_b32 v{vT0}, 2, v{vL}")
    E(f"buffer_store_dword v11, v{vT0}, {srd(SWS)}, s{sA} offen")
E("L_end:")
E("s_endpgm")

def hoist_vmem(prog):
    out_ = []
    n_ = 0
    for x in prog:
        if x.kind in ('dma', 'vld', 'vst'):
            k = len(out_)
            while k > 0:
                p = out_[k - 1]
                if p.kind == 'mfma32': break
                if p.kind not in ('dsr', 'valu', 'trans', 'salu') or (p.W & (x.R | x.W)) or (p.R & x.W) or len(out_) - k > 24: k = -1; break
                k -= 1
            if k > 0 and k < len(out_):
                out_.insert(k, x); n_ += 1; continue
        out_.append(x)
    print("hoisted", n_, file=sys.stderr)
    return out_
if OPT['hoist']: prog = hoist_vmem(prog)
seen = set()
for x in prog:
    if x.kind in ('pvm', 'plg'):
        for t in x.target: assert id(t) in seen, ("wait on unissued op", t)
    seen.add(id(x))
p1 = insert_waits(prog)
p2, nn = insert_nops(p1)
hdr = open('parallel_sum__sliding_block__dense_activation_relu__prompt.s.ref').read().split('\n')
hdr = [l for l in hdr if l.startswith(';') and '@launch' not in l]
txt = "\n".join(hdr) + f"\n; @launch grid=(256,1,1) block=(256,1,1) lds={LDS_TOTAL}\n"
txt += f""".amdgcn_target "amdgcn-amd-amdhsa--gfx950"
.text
.globl {KNAME}
.p2align 8
.type {KNAME},@function
{KNAME}:
"""
txt += render(p2) + "".join(slow_paths) + "L_code_end:\n  s_endpgm\n.fill 64, 4, 0xbf800000\n"
txt += f""".section .rodata,"a"
.p2align 6
.amdhsa_kernel {KNAME}
  .amdhsa_next_free_vgpr 512
  .amdhsa_next_free_sgpr 102
  .amdhsa_accum_offset 256
  .amdhsa_group_segment_fixed_size 0
  .amdhsa_kernarg_size 72
  .amdhsa_user_sgpr_count 2
  .amdhsa_user_sgpr_kernarg_segment_ptr 1
  .amdhsa_system_sgpr_workgroup_id_x 1
.end_amdhsa_kernel
"""
if OPT['timing']: txt += "; stamps: " + " ".join(stamp_names) + "\n"
assert len(stamp_names) <= 62
open(sys.argv[1], 'w').write(txt)
print("instrs", len(p2), "nop states", nn, dict(Counter(x.kind for x in p2)), file=sys.stderr)
print("chunks (n, base, nb, last dma gap, barrier gap)", [(c.n, c.base, getattr(c, 'nb', None), lastg.get(id(c.dmas[-1])), (first_use[c] - PD) if c is not KVC else BKV) for c in chunks + [KVC]], file=sys.stderr)
print("kv stores at", [lastg[id(x)] - GA_END for x in st], file=sys.stderr)
```

```python
import sys, math, struct
from collections import deque, Counter
from asmlib import *

KNAME = "parallel_sum__sliding_block__dense_activation_relu__prompt_kernel"
OPT = dict(ts='', dbgt=0, timing=0, PD=7, budget=3, tcp=180, lc=2.2, kvpub=52, kvpoll=88, kvchk=110, kvbud=6, abud=9, a2bud=1, pubat=16, pollat=40, chkat=30, dmarg=45, slot0=3, c1pro=1, pf=0, xco=1, dsp=3, stb=35, pre=2, inl=0, osc=1, rt=0, tail=1, wq=4, lates=0, hf=1, rbp=36, dp=0, t2=0, swp=0, pog=30, pod=20, dpu=3, h1c=20, h1d=4, p3=34, h2c=20, h2d=4, p4=65, oc=120, dmaat=42, p6=85, p7=60, stch=1, x1=5, c0at=99, cpf='330,720,860', ntop=40, hoist=1, in0=4, rj=0, h0=0, qpro=1, kvl=12, attp=4)
for a in sys.argv[2:]:
    k, v = a.split('=')
    OPT[k] = (v if k in ('ts', 'cpf') else float(v) if k == 'lc' else int(v))

def f32(x): return "0x%08x" % struct.unpack('<I', struct.pack('<f', x))[0]

FBASE, EBASE, KVBASE, HXBASE, PBASE = 0, 0x20000, 0x40000, 0x600000, 0x1C00000
HXB = 21504
PU = 131072
KVB = 5120
WS_USED = 0x3000000
DBGW = 0x3000000
WS_REC = 0x4000000 if OPT['timing'] else WS_USED
OOB = 0x80000000
THI = 0x5bd1e995
LDS_TOTAL = 163840
XS = 81920
GA_KS, GA_CH = 8576, 34304
GB_KS, GB_CH = 5312, 21248
IMG = 4288
KVL = 102400
P2A, P2B = 20480, 21504
SX, SQ, S1, S2, SO, SOUT, SWS, SDB, SCODE = 4, 8, 12, 16, 20, 24, 28, 32, 36
def srd(b): return f"s[{b}:{b+3}]"
sI, sJ, sW, sROT = 58, 59, 60, 61
sRT = 62
sKV = 71
sM0K = 74
sXB, sQB, sHA, sHB, sSG = 80, 81, 82, 83, 84
sUC, sSC = 62, 66
sW2A, sW2B, sWO5, sWO6, sSA, sSS, sSE = [67, 68], [69, 70], [80, 81], [82, 83], [84, 85], [86, 87], [88, 94]
sHXW, sHXR, sCA = 56, 57, 79
sKVW, sFW, sPB = 89, 90, 91
sT, sTH = 92, 93
sM0X = 94
sLO = 96
sA, sB, sC, sD = 75, 76, 77, 78
sDM = 44
sM0A, sM0B, sM0C, sM0D, sM0E = 46, 47, 48, 49, 50
sCK = 52
sRS = 54
sTS = 98
vL, vT0, vT1, vT2, vT3_ = 1, 2, 3, 4, 5
vA, vT3, vS, vP0, vP1 = 6, 7, 8, 9, 10
vDQ = 12
vDH = 16
vDS = 20
vL16, vVS, vVSC = 21, 22, 23
vRS, vNB = 24, 25
vFL = 26
vH1 = 28
vQ = 60
vR = 76
vE = 96
XN = 112
vXD, vXR, vST = 28, 32, 36
vH2 = 112
vSB = 152
vM0, vM8 = 216, 232
vTT = 248
aT, aG, aF, aSEL = 0, 128, 208, 252
aK, aO, aRD, aSEL2 = 0, 72, 0, 248
def aPF(k): return 104 + 4*k

prog = []
stamp_names = []
def STAMP(name=''):
    if OPT['timing']:
        k = len(stamp_names); stamp_names.append(name)
        prog.append(I("s_waitcnt lgkmcnt(0)"))
        prog.append(RAW(f"  s_memtime s[{sTS}:{sTS+1}]\n  s_waitcnt lgkmcnt(0)\n  v_writelane_b32 v11, s{sTS}, {k}\n  s_nop 4"))
        if OPT.get('rt'): prog.append(RAW(f"  s_memrealtime s[{sTS}:{sTS+1}]\n  s_waitcnt lgkmcnt(0)\n  v_writelane_b32 v11, s{sTS}, {32+k}\n  s_nop 4"))
def TS(grp, name):
    if OPT['timing'] and grp in OPT['ts'].split(','):
        x = I('s_nop', kind='lazystamp'); x.note = name; x.R = set(); x.W = set(); x.cost = 0
        return [x]
    return []
def E(t):
    if isinstance(t, list):
        for x in t: E(x)
        return
    x = t if isinstance(t, I) else I(t)
    if x.kind == 'lazystamp':
        STAMP(x.note); return x
    prog.append(x); return x
def vr(b, n=4): return f"v[{b}:{b+n-1}]"
def ar(b, n=4): return f"a[{b}:{b+n-1}]"
LINES = {}
def VM(text, lines):
    x = I(text); LINES[id(x)] = lines; return x
slow_paths = []

class Chunk: pass
chunks = []
def add_chunk(kind, c, size):
    ch = Chunk(); ch.kind = kind; ch.c = c; ch.size = size; ch.n = len(chunks); ch.dmas = []; chunks.append(ch); return ch
for c in range(9): add_chunk('ga', c, GA_CH).base = (c % 4) * GA_CH
for c, b in enumerate([34304, 55552, 76800, 98048, 119296, 0, 21248, 42496, 63744]): add_chunk('gb', c, GB_CH).base = b
P2SEQ = [('a', 0, 0), ('b', 0, 0), ('a', 0, 1), ('c', 0, 1), ('a', 1, 0), ('b', 1, 0), ('a', 1, 1), ('c', 1, 1), ('e', 0, 1),
         ('a', 2, 0), ('b', 2, 0), ('a', 2, 1), ('b', 2, 1), ('a', 3, 0), ('b', 3, 0), ('a', 3, 1), ('b', 3, 1), ('s', 4, 0), ('s', 4, 1)]
P2C = {}
pos = 0
for k, (kd_, u, src) in enumerate(P2SEQ):
    sz = dict(a=P2A, b=P2B, c=16384, e=10240, s=21504)[kd_]
    ch = add_chunk('p2' + kd_, u, sz); ch.src = src; P2C[(kd_, u, src)] = ch
    if k == 5: pos = KVL
    if pos + sz > LDS_TOTAL: pos = 0
    if k == 9: pos = 10240
    if k == 10: pos = 78848
    ch.base = pos; pos += sz
KVC = add_chunk('kv', 0, 12*KVB); KVC.base = KVL; KVC.segstart = {}; chunks.pop()

def dma_items(ch):
    c, b = ch.c, ch.base
    it = []
    def grp(m0w, m0c, soff_ins, srdb, voffs, lines, fl=''):
        it.append([I(f"s_add_u32 m0, s{m0w}, {m0c}") if m0w else I(f"s_mov_b32 m0, {m0c}")] + [I(s) for s in soff_ins])
        for (v, imm) in voffs:
            d = VM(f"buffer_load_dwordx4 v{v}, {srd(srdb)}, s{sDM} offen offset:{imm}{fl} lds", lines)
            ch.dmas.append(d); it.append([d])
    four = lambda v, st: [(v + n, n * st) for n in range(4)]
    if ch.kind == 'ga':
        grp(sM0A, b, [f"s_mul_i32 s{sDM}, s{sRT+c}, 1728", f"s_add_u32 s{sDM}, s{sDM}, s{sQB}"], SQ, four(vDQ, 1088), 20)
        grp(sM0A, b + IMG, [f"s_mul_i32 s{sDM}, s{sRT+c}, 4608", f"s_add_u32 s{sDM}, s{sDM}, s{sHA}"], S1, four(vDH, 1088), 8)
    elif ch.kind == 'gb':
        grp(sM0B, b, [f"s_mul_i32 s{sDM+1}, s{sRT+c}, 4608", f"s_add_u32 s{sDM}, s{sDM+1}, s{sHB}"], S1, four(vDH, 1088), 8)
        grp(sM0B, b + IMG, [f"s_add_u32 s{sDM}, s{sDM+1}, s{sSG}"], S1, [(vDS, 0)], 16)
    elif ch.kind == 'p2a':
        grp(sM0C, b, [f"s_add_u32 s{sDM}, s{sW2A[ch.src]}, s{sUC+c}"], S2, four(vDQ, 1024), 8)
        grp(sM0C, b + 4096, [f"s_add_u32 s{sDM}, s{sDM}, {32*1152}"], S2, [(vDQ, 0)], 8)
    elif ch.kind == 'p2b':
        grp(None, b + 20480, [f"s_add_u32 s{sDM}, s{sWO6[ch.src]}, s{sUC+c}"], SO, [(vDQ, 0)], 8)
        grp(sM0D, b, [f"s_add_u32 s{sDM}, s{sW2B[ch.src]}, s{sUC+c}"], S2, four(vDQ, 1024), 8)
        grp(sM0E, b + 16384, [f"s_add_u32 s{sDM}, s{sWO5[ch.src]}, s{sUC+c}"], SO, [(vDQ, 0)], 8)
    elif ch.kind == 'p2c':
        grp(sM0D, b, [f"s_add_u32 s{sDM}, s{sW2B[ch.src]}, s{sUC+c}"], S2, four(vDQ, 1024), 8)
    elif ch.kind == 'p2e':
        for u in range(2):
            grp(None, b + 5120*u + 4096, [f"s_add_u32 s{sDM}, s{sWO6[1]}, s{sUC+u}"], SO, [(vDQ, 0)], 8)
            grp(sM0E, b + 5120*u, [f"s_add_u32 s{sDM}, s{sWO5[1]}, s{sUC+u}"], SO, [(vDQ, 0)], 8)
    elif ch.kind == 'p2s':
        grp(sM0D, b, [f"s_add_u32 s{sDM}, s{sSA[ch.src]}, s{sSC}"], S2, four(vDQ, 1024), 16)
        it.append([I(f"s_and_b32 s{sDM+1}, s{sM0E}, 1024")])
        grp(sDM+1, b + 16384, [f"s_add_u32 s{sDM}, s{sSS[ch.src]}, s{sSC}"], S2, [(vDQ, 0)], 16)
        it.append([I(f"s_min_u32 s{sDM+1}, s{sM0E}, 2048")])
        grp(sDM+1, b + 18432, [f"s_add_u32 s{sDM}, s{sSE[ch.src]}, s{sSC}"], SO, [(vDQ, 0)], 16)
    else:
        for m in (2, 0, 1):
            ch.segstart[m] = len(it)
            grp(sM0C, b + 4*KVB*m, [f"s_mov_b32 s{sDM}, s{sKV+m}"], SWS, [(vL16, 1024*n) for n in range(4)], OPT['kvl'], ' sc1')
            grp(sM0C, b + 4*KVB*m + 4096, [f"s_add_u32 s{sDM}, s{sDM}, 4096"], SWS, [(vL16, 0)], OPT['kvl'], ' sc1')
    return it
for ch in chunks + [KVC]: ch.items = dma_items(ch)
if OPT['swp']:
    A0, B0, A1, C1 = P2C[('a', 0, 0)], P2C[('b', 0, 0)], P2C[('a', 0, 1)], P2C[('c', 0, 1)]
    def swapped(ch, oth, m0w, rows, first):
        it = ch.items
        k0 = next(k for k, x in enumerate(it) if f"s{rows[ch.src]}," in " ".join(y.text for y in x))
        it[k0] = [I(f"s_bitcmp1_b32 s{sI}, 2"), I(f"s_cselect_b32 s{sDM}, s{rows[oth.src]}, s{rows[ch.src]}"), I(f"s_cselect_b32 s{sDM+1}, {(oth.base - ch.base) & 0xffffffff:#x}, 0"),
                  I(f"s_add_u32 s{sDM+1}, s{sDM+1}, s{m0w}"), I(f"s_add_u32 s{sDM+1}, s{sDM+1}, {ch.base}"), I(f"s_mov_b32 m0, s{sDM+1}"), I(f"s_add_u32 s{sDM}, s{sDM}, s{sUC}")]
        if ch.kind == 'p2a': it[k0 + 5] = [I(f"s_add_u32 m0, s{sDM+1}, 4096"), I(f"s_add_u32 s{sDM}, s{sDM}, {32*1152}")]
    swapped(A0, A1, sM0C, sW2A, 1); swapped(A1, A0, sM0C, sW2A, 0); swapped(B0, C1, sM0D, sW2B, 1); swapped(C1, B0, sM0D, sW2B, 0)
    alld = A0.dmas + B0.dmas + A1.dmas + C1.dmas
    A0.dmas = alld
SUB = {}
if OPT['hf']:
    for c in range(2):
        ch = chunks[c]
        q = Chunk(); q.kind = 'ga'; q.c = c; q.size = ch.size; q.base = ch.base; q.n = 80 + c
        q.items = ch.items[:5]; q.dmas = ch.dmas[:4]
        ch.items = ch.items[5:]; ch.dmas = ch.dmas[4:]
        SUB[c] = q

E(f"s_cmp_ge_u32 s2, 256")
E(f"s_cbranch_scc1 L_end")
E(f"s_load_dwordx16 s[40:55], s[0:1], 0")
E(f"s_load_dwordx2 s[56:57], s[0:1], 64")
if OPT['timing']:
    E("v_mov_b32 v11, 0"); STAMP("start")
    if OPT['dbgt']: E(RAW("  s_memrealtime s[98:99]\n  s_waitcnt lgkmcnt(0)\n  v_writelane_b32 v11, s98, 62\n  s_nop 4"))
E(f"v_lshrrev_b32 v{vT1}, 6, v0")
E(f"v_and_b32 v{vL}, 63, v0")
E(f"v_readfirstlane_b32 s{sW}, v{vT1}")
E(RAW(f"  s_getpc_b64 s[{SCODE}:{SCODE+1}]\nL_pc:\n  s_mov_b32 s{SCODE+2}, L_code_end-L_pc\n  s_mov_b32 s{SCODE+3}, 0x00020000"))
for x_ in [f"v_lshlrev_b32 v{vT0}, 7, v{vL}", f"v_cmp_lt_u32 vcc, 3, v{vL}", f"v_mov_b32 v{vT2}, {OOB:#x}", f"s_lshr_b32 s101, s2, 3",
           f"v_cndmask_b32 v{vE+1}, v{vT0}, v{vT2}, vcc", f"v_cmp_gt_u32 vcc, {OPT['ntop']}, v0", f"s_lshl_b32 s101, s101, 2", f"s_add_u32 s101, s101, s{sW}",
           f"v_cndmask_b32 v{vT0}, v{vT2}, v{vT0}, vcc", f"s_lshl_b32 s101, s101, 9",
           f"buffer_load_dword v{vE+8}, v{vT0}, {srd(SCODE)}, 0 offen", f"buffer_load_dword v{vE}, v{vE+1}, {srd(SCODE)}, s101 offen",
           f"v_accvgpr_write_b32 a246, v{vE+1}"]: E(x_)
E(f"v_lshrrev_b32 v{vT0}, 3, v{vL}")
E(f"v_lshrrev_b32 v{vT1}, 4, v{vL}")
E(f"v_and_b32 v{vT2}, 7, v{vL}")
E(f"v_xor_b32 v{vT2}, v{vT2}, v{vT1}")
E(f"v_lshlrev_b32 v{vT2}, 4, v{vT2}")
E(f"v_mul_u32_u24 v{vT0}, 1152, v{vT0}")
E(f"v_add_u32 v{vXD}, v{vT0}, v{vT2}")
E(f"v_xor_b32 v{vXD+1}, 64, v{vXD}")
E(f"v_add_u32 v{vXD+2}, {2*8192}, v{vXD}")
E(f"v_add_u32 v{vXD+3}, {3*8192}, v{vXD+1}")
E(f"v_add_u32 v{vXD+1}, 8192, v{vXD+1}")
E(f"s_bfe_u32 s100, s2, 0x10002")
E(f"s_lshl_b32 s100, s100, 3")
E(f"s_lshr_b32 s{sROT}, s2, 5")
E(f"s_add_u32 s{sI}, s100, s{sROT}")
E(f"s_bfe_u32 s101, s2, 0x20003"); E(f"s_lshl_b32 s101, s101, 1"); E(f"s_add_u32 s101, s101, s{sROT}")
if OPT['rj']: E(f"s_and_b32 s100, s2, 1"); E(f"s_add_u32 s101, s101, s100")
E(f"s_sub_u32 s100, s101, 9"); E(f"s_cmp_ge_u32 s101, 9"); E(f"s_cselect_b32 s101, s100, s101"); E(f"s_lshl_b32 s{sRT}, s101, 7")
E(f"s_lshl_b32 s100, s{sI}, 2")
E(f"s_add_u32 s100, s100, s{sW}")
E(f"s_mul_i32 s{sXB}, s100, {32*1152}")
E(f"s_mul_i32 s{sM0X}, s{sW}, 20480")
E(f"s_add_u32 s{sM0X}, s{sM0X}, {XS}")
E(f"s_mov_b32 s{SX+2}, {2048*1152}"); E(f"s_mov_b32 s{SX+3}, 0x00020000")
E("s_waitcnt lgkmcnt(0)")
E(f"s_mov_b32 s{SX}, s40"); E(f"s_mov_b32 s{SX+1}, s41")
E(TS('pro', 'karg'))

su = deque()
def U(t): su.append(t)
def drain(n):
    for _ in range(min(n, len(su))): E(su.popleft())
def mk_srd(b, p, n):
    U(f"s_mov_b32 s{b}, s{p}"); U(f"s_mov_b32 s{b+1}, s{p+1}"); U(f"s_mov_b32 s{b+2}, {n}"); U(f"s_mov_b32 s{b+3}, 0x00020000")
mk_srd(SWS, 56, WS_REC)
U(f"v_mov_b32 v{vFL}, {EBASE}")
U(RAW(f"""  s_or_b32 s101, s2, s{sW}
  s_cmp_lg_u32 s101, 0
  s_cbranch_scc1 L_noep1
  buffer_load_dword v{vFL+1}, v{vFL}, {srd(SWS)}, 0 offen sc1
L_noep1:"""))
mk_srd(SQ, 42, 576*3456); mk_srd(SO, 44, 576*1152); mk_srd(S1, 48, 576*9216); mk_srd(S2, 50, 4608*1152)
mk_srd(SOUT, 52, 2048*1152); mk_srd(SDB, 54, 256)
U(f"s_and_b32 s{sA}, s2, 3"); U(f"s_lshl_b32 s{sA}, s{sA}, 2"); U(f"s_bfe_u32 s{sB}, s2, 0x20003"); U(f"s_add_u32 s{sJ}, s{sA}, s{sB}")
U(f"v_and_b32 v{vT0}, 31, v{vL}"); U(f"v_lshrrev_b32 v{vT1}, 5, v{vL}"); U(f"v_bfe_u32 v{vT2}, v{vL}, 1, 3")
U(f"v_xor_b32 v{vT2}, v{vT2}, v{vT1}"); U(f"v_lshlrev_b32 v{vT2}, 4, v{vT2}"); U(f"v_lshl_add_u32 v{vT2}, v{vT0}, 7, v{vT2}")
for s in range(4):
    U(f"v_xor_b32 v{vXR+s}, {32*s}, v{vT2}"); U(f"v_add_u32 v{vXR+s}, s{sM0X}, v{vXR+s}")
for k in range(4): U(f"v_mov_b32 v{vST+k}, 0")
U(f"v_lshlrev_b32 v{vL16}, 4, v{vL}")
U(f"s_mov_b32 s95, 0xffff0000"); U(f"s_mov_b32 s{sLO}, -1"); U(f"s_mov_b32 s{sLO+1}, 0")
U(f"v_lshlrev_b32 v{vT2}, 31, v{vT1}"); U(f"v_add_u32 v{vVSC}, 1024, v{vL16}"); U(f"v_add_u32 v{vVSC}, v{vVSC}, v{vT2}")
U(f"v_bfe_u32 v{vT0}, v{vL}, 2, 2"); U(f"v_bfe_u32 v{vT2}, v{vL}, 4, 1"); U(f"v_and_b32 v{vT3_}, 3, v{vL}")
U(f"v_lshl_add_u32 v{vT3_}, v{vT2}, 2, v{vT3_}")
U(f"v_mul_u32_u24 v{vA}, 1088, v{vT0}"); U(f"v_lshl_add_u32 v{vA}, v{vT1}, 9, v{vA}")
U(f"v_mul_u32_u24 v{vT3}, 40, v{vT3_}"); U(f"v_add3_u32 v{vT3}, v{vT3}, v{vA}, 36"); U(f"v_add_u32 v{vT3}, 36, v{vT3}")
U(f"v_lshl_add_u32 v{vA}, v{vT3_}, 3, v{vA}")
U(f"v_lshl_add_u32 v{vS}, v{vT1}, 3, v{vT0}"); U(f"v_lshlrev_b32 v{vS}, 6, v{vS}"); U(f"v_lshl_add_u32 v{vS}, v{vT3_}, 3, v{vS}")
U(f"v_lshl_add_u32 v{vP0}, v{vT1}, 2, v{vT0}"); U(f"v_lshlrev_b32 v{vP0}, 7, v{vP0}"); U(f"v_lshl_add_u32 v{vP0}, v{vT3_}, 3, v{vP0}")
U(f"v_lshrrev_b32 v{vT2}, 1, v{vT0}"); U(f"v_lshl_add_u32 v{vP0}, v{vT2}, 6, v{vP0}"); U(f"v_xor_b32 v{vP1}, 64, v{vP0}")
U(f"v_lshrrev_b32 v{vT0}, 4, v{vL}"); U(f"v_and_b32 v{vT1}, 15, v{vL}")
U(f"v_mul_u32_u24 v{vT2}, {4*9216}, v{vT0}"); U(f"v_lshl_add_u32 v{vDH}, v{vT1}, 4, v{vT2}")
for n in range(1, 4): U(f"v_add_u32 v{vDH+n}, {n*(9216-1088)}, v{vDH}")
U(f"v_min_u32 v{vT1}, 14, v{vT1}"); U(f"v_mul_u32_u24 v{vT2}, 13, v{vT1}"); U(f"v_lshrrev_b32 v{vT2}, 6, v{vT2}")
U(f"v_mul_u32_u24 v{vT3_}, 5, v{vT2}"); U(f"v_sub_u32 v{vT1}, v{vT1}, v{vT3_}"); U(f"v_lshlrev_b32 v{vT1}, 4, v{vT1}")
U(f"v_min_u32 v{vT1}, 56, v{vT1}"); U(f"v_mul_u32_u24 v{vT3_}, 1152, v{vT2}"); U(f"v_add_u32 v{vT1}, v{vT1}, v{vT3_}")
U(f"s_mul_i32 s{sA}, s{sJ}, 72"); U(f"s_xor_b32 s{sB}, s{sJ}, 1"); U(f"s_mul_i32 s{sC}, s{sB}, 72")
U(f"v_mov_b32 v{vT3_}, s{sC}"); U(f"v_mov_b32 v{vDS}, s{sA}"); U(f"v_cmp_eq_u32 vcc, 0, v{vT2}")
U(f"v_mul_u32_u24 v{vT2}, {4*3456}, v{vT0}"); U(f"v_add_u32 v{vT1}, v{vT1}, v{vT2}")
U(f"v_cndmask_b32 v{vT3_}, v{vT3_}, v{vDS}, vcc"); U(f"v_add_u32 v{vDQ}, v{vT1}, v{vT3_}")
for n in range(1, 4): U(f"v_add_u32 v{vDQ+n}, {n*(3456-1088)}, v{vDQ}")
U(f"v_lshrrev_b32 v{vT0}, 2, v{vL}"); U(f"v_mul_u32_u24 v{vT0}, 9216, v{vT0}"); U(f"v_and_b32 v{vT1}, 3, v{vL}")
U(f"v_lshl_add_u32 v{vDS}, v{vT1}, 4, v{vT0}")
U(f"s_mul_i32 s{sQB}, s{sW}, {16*3456}")
U(f"s_and_b32 s{sA}, s{sJ}, 1"); U(f"s_mul_i32 s{sC}, s{sJ}, 288"); U(f"s_lshl_b32 s{sD}, s{sA}, 5"); U(f"s_add_u32 s{sD}, s{sD}, s{sC}")
U(f"s_xor_b32 s{sA}, s{sA}, 1"); U(f"s_lshl_b32 s{sA}, s{sA}, 8"); U(f"s_add_u32 s{sC}, s{sC}, s{sA}")
U(f"s_mul_i32 s{sA}, s{sW}, {16*9216}"); U(f"s_lshl_b32 s{sHA}, s{sD}, 1"); U(f"s_add_u32 s{sHA}, s{sHA}, s{sA}")
U(f"s_add_u32 s{sHB}, s{sHA}, 256"); U(f"s_lshl_b32 s{sSG}, s{sC}, 1"); U(f"s_add_u32 s{sSG}, s{sSG}, s{sA}")
U(f"s_mul_i32 s{sM0A}, s{sW}, {GA_KS}"); U(f"s_mul_i32 s{sM0B}, s{sW}, {GB_KS}"); U(f"s_mul_i32 s{sM0C}, s{sW}, 5120")
U(f"s_lshl_b32 s{sM0D}, s{sW}, 12"); U(f"s_lshl_b32 s{sM0E}, s{sW}, 10")
NSU = len(su)
for m in range(3):
    U(f"s_add_i32 s{sA}, s{sI}, {m-2}")
    U([I(f"s_cmp_lt_i32 s{sA}, 0"), I(f"s_cselect_b32 s{sA}, s{sI}, s{sA}")])
    U(f"s_lshl_b32 s{sB}, s{sJ}, 4"); U(f"s_add_u32 s{sA}, s{sA}, s{sB}"); U(f"s_lshl_b32 s{sA}, s{sA}, 2"); U(f"s_add_u32 s{sA}, s{sA}, s{sW}")
    U(f"s_mul_i32 s{sA}, s{sA}, {KVB}"); U(f"s_add_u32 s{sKV+m}, s{sA}, {KVBASE}")
U(f"s_xor_b32 s{sA}, s{sJ}, 1"); U(f"s_lshl_b32 s{sA}, s{sA}, 4"); U(f"s_add_u32 s{sA}, s{sA}, s{sI}"); U(f"s_lshl_b32 s{sA}, s{sA}, 2")
U(f"s_add_u32 s{sA}, s{sA}, s{sW}"); U(f"s_mul_i32 s{sA}, s{sA}, {KVB}"); U(f"s_add_u32 s{sKVW}, s{sA}, {KVBASE}")
U(f"s_lshl_b32 s{sA}, s{sI}, 2"); U(f"s_add_u32 s{sA}, s{sA}, s{sW}"); U(f"s_lshl_b32 s{sA}, s{sA}, 4"); U(f"s_add_u32 s{sA}, s{sA}, s{sJ}")
U(f"s_lshl_b32 s{sFW}, s{sA}, 3")
U(f"s_and_b32 s{sB}, s{sJ}, 1"); U(f"s_lshl_b32 s{sC}, s{sI}, 1"); U(f"s_add_u32 s{sC}, s{sC}, s{sB}")
U(f"s_mul_i32 s{sPB}, s{sC}, {5*PU}"); U(f"s_add_u32 s{sPB}, s{sPB}, {PBASE}")
U(f"s_mul_i32 s{sHXW}, s{sA}, {HXB}"); U(f"s_add_u32 s{sHXW}, s{sHXW}, {HXBASE}")
U(f"s_xor_b32 s{sA}, s{sA}, 1"); U(f"s_mul_i32 s{sHXR}, s{sA}, {HXB}"); U(f"s_add_u32 s{sHXR}, s{sHXR}, {HXBASE}")
U(f"v_and_b32 v{vT0}, 15, v{vL}"); U(f"v_and_b32 v{vT1}, 1, v{vL}"); U(f"v_lshlrev_b32 v{vT1}, 4, v{vT1}")
U(f"v_mov_b32 v{vT2}, 0x3f80"); U(f"v_lshlrev_b32 v{vT2}, v{vT1}, v{vT2}"); U(f"v_lshrrev_b32 v{vT0}, 1, v{vT0}")
for d in range(4):
    U([I(f"v_cmp_eq_u32 vcc, {d}, v{vT0}"), I("s_nop 1"), I(f"v_cndmask_b32 v{vT1}, 0, v{vT2}, vcc")])
    U(f"v_accvgpr_write_b32 a{aSEL+d}, v{vT1}")
    U([I(f"v_cmp_eq_u32 vcc, {d+4}, v{vT0}"), I("s_nop 1"), I(f"v_cndmask_b32 v{vT1}, 0, v{vT2}, vcc")])
    U(f"v_accvgpr_write_b32 a{aSEL2+d}, v{vT1}")

vFW, vFK, vFR, vFL2 = 4, 5, 0, 24
vVA, vVBb = 2, 3
aST = 240
vY0, vY1, vY2 = vE + 4, vE + 5, vE + 6
for x_ in [f"v_bfe_u32 v{vY0}, v{vL}, 2, 3", f"v_lshlrev_b32 v{vY0}, 12, v{vY0}", f"v_and_b32 v{vY1}, 3, v{vL}", f"v_lshl_add_u32 v{vY0}, v{vY1}, 5, v{vY0}",
           f"v_lshrrev_b32 v{vY1}, 5, v{vL}", f"v_lshl_add_u32 v{vY0}, v{vY1}, 4, v{vY0}", f"s_lshl_b32 s{sA}, s{sW}, 15", f"s_lshr_b32 s{sC}, s{sJ}, 1",
           f"s_lshl_b32 s{sB}, s{sC}, 9", f"s_add_u32 s{sA}, s{sA}, s{sB}", f"v_add_u32 v{vY0}, s{sA}, v{vY0}", f"v_accvgpr_write_b32 a{aST}, v{vY0}",
           f"v_lshrrev_b32 v{vY0}, 4, v{vL}", f"v_lshlrev_b32 v{vY0}, 9, v{vY0}", f"v_and_b32 v{vY1}, 15, v{vL}", f"v_lshl_add_u32 v{vY0}, v{vY1}, 4, v{vY0}",
           f"s_lshl_b32 s{sA}, s{sC}, 14", f"s_lshl_b32 s{sB}, s{sW}, 12", f"s_add_u32 s{sA}, s{sA}, s{sB}", f"v_add_u32 v{vY0}, s{sA}, v{vY0}",
           f"v_accvgpr_write_b32 a{aST+1}, v{vY0}",
           f"s_lshl_b32 s{sA}, s{sI}, 7", f"s_lshl_b32 s{sD}, s{sC}, 4", f"s_add_u32 s{sA}, s{sA}, s{sD}",
           f"s_lshl_b32 s{sB}, s{sW}, 2", f"s_add_u32 s{sA}, s{sA}, s{sB}", f"s_mul_i32 s{sA}, s{sA}, 1152",
           f"v_bfe_u32 v{vY0}, v{vL}, 1, 2", f"v_mul_u32_u24 v{vY0}, 1152, v{vY0}", f"v_bfe_u32 v{vY1}, v{vL}, 3, 1",
           f"v_lshl_add_u32 v{vY0}, v{vY1}, 5, v{vY0}", f"v_bfe_u32 v{vY1}, v{vL}, 4, 1", f"v_lshl_add_u32 v{vY0}, v{vY1}, 4, v{vY0}", f"v_and_b32 v{vY1}, 1, v{vL}",
           f"v_lshl_add_u32 v{vY0}, v{vY1}, 3, v{vY0}", f"v_lshrrev_b32 v{vY1}, 5, v{vL}", f"v_lshl_add_u32 v{vY0}, v{vY1}, 6, v{vY0}",
           f"v_add_u32 v{vY0}, s{sA}, v{vY0}", f"v_accvgpr_write_b32 a{aST+2}, v{vY0}",
           f"v_lshrrev_b32 v{vY0}, 3, v{vL}", f"v_bfe_u32 v{vY1}, v{vL}, 4, 1", f"v_lshlrev_b32 v{vY1}, 2, v{vY1}",
           f"v_and_b32 v{vY2}, 7, v{vL}", f"v_xor_b32 v{vY2}, v{vY2}, v{vY1}", f"v_mul_u32_u24 v{vY0}, 1152, v{vY0}",
           f"v_lshl_add_u32 v{vY0}, v{vY2}, 4, v{vY0}", f"v_accvgpr_write_b32 a{aST+3}, v{vY0}",
           f"v_lshrrev_b32 v{vY0}, 2, v{vL}", f"v_mul_u32_u24 v{vY0}, 1152, v{vY0}", f"v_and_b32 v{vY1}, 3, v{vL}",
           f"v_lshl_add_u32 v{vY0}, v{vY1}, 4, v{vY0}", f"v_accvgpr_write_b32 a{aST+4}, v{vY0}",
           f"v_lshrrev_b32 v{vY0}, 5, v{vL}", f"v_lshlrev_b32 v{vY0}, 8, v{vY0}", f"v_sub_u32 v{vY0}, v{vS}, v{vY0}", f"v_accvgpr_write_b32 a{aST+5}, v{vY0}"]: U(x_)
for x_ in [f"v_bfe_u32 v{vT0}, v{vL}, 2, 2", f"v_min_u32 v{vT0}, 2, v{vT0}", f"s_sub_u32 s{sA}, s{sI}, 2", f"v_add_u32 v{vT0}, s{sA}, v{vT0}"]: U(x_)
for x_ in [f"v_mov_b32 v{vT1}, s{sI}", f"v_cmp_gt_i32 vcc, 0, v{vT0}", f"s_xor_b32 s{sA}, s{sJ}, 1", f"s_lshl_b32 s{sA}, s{sA}, 3",
          f"v_cndmask_b32 v{vT0}, v{vT0}, v{vT1}, vcc"]: U(x_)
for x_ in [f"v_lshlrev_b32 v{vT0}, 9, v{vT0}", f"v_and_b32 v{vT1}, 3, v{vL}", f"v_lshl_add_u32 v{vT0}, v{vT1}, 7, v{vT0}",
          f"v_add_u32 v{vFK}, s{sA}, v{vT0}"]: U(x_)
for x_ in [f"v_cmp_eq_u32 vcc, 0, v{vL}", f"v_mov_b32 v{vFW}, {OOB:#x}", f"s_nop 0", f"v_cndmask_b32_e64 v{vFW}, v{vFW}, 0, vcc"]: U(x_)
for x_ in [f"s_lshl_b32 s{sA}, s{sI}, 9", f"s_lshr_b32 s{sD}, s{sJ}, 2", f"s_lshl_b32 s{sD}, s{sD}, 7", f"s_add_u32 s{sA}, s{sA}, s{sD}",
           f"s_and_b32 s{sD}, s{sJ}, 1", f"s_lshl_b32 s{sD}, s{sD}, 3", f"s_add_u32 s{sA}, s{sA}, s{sD}",
           f"v_and_b32 v{vT1}, 7, v{vL}", f"v_lshlrev_b32 v{vT1}, 4, v{vT1}", f"v_add_u32 v{vFR}, s{sA}, v{vT1}"]: U(x_)
tabA = bytes([0, 64, 1, 65, 128, 128, 255, 255]); tabB = bytes([192, 129, 193, 254, 128, 128, 255, 255])
lo = lambda b: "0x%08x" % int.from_bytes(b[:4], 'little')
hi = lambda b: "0x%08x" % int.from_bytes(b[4:], 'little')
vX0, vX1 = vR, vR + 1
for x_ in [f"v_bfe_u32 v{vX0}, v{vL}, 4, 1", f"v_and_b32 v{vX1}, 3, v{vL}", f"v_lshl_add_u32 v{vX0}, v{vX0}, 2, v{vX1}",
          f"v_or_b32 v{vX0}, 0x0c0c0c00, v{vX0}"]: U(x_)
for x_ in [f"s_mov_b32 s{sA}, {hi(tabA)}", f"v_mov_b32 v{vX1}, {lo(tabA)}", f"v_perm_b32 v{vVA}, s{sA}, v{vX1}, v{vX0}"]: U(x_)
for x_ in [f"v_mov_b32 v{vX1}, {lo(tabB)}", f"v_perm_b32 v{vVBb}, s{sA}, v{vX1}, v{vX0}", f"v_bfe_u32 v{vX0}, v{vL}, 2, 2", f"v_lshrrev_b32 v{vX1}, 5, v{vL}"]: U(x_)
for x_ in [f"v_lshl_add_u32 v{vX0}, v{vX1}, 2, v{vX0}", f"v_lshlrev_b32 v{vX0}, 4, v{vX0}", f"s_add_u32 s{sM0K}, s{sM0C}, {KVL}",
          f"v_add_u32 v{vX0}, s{sM0K}, v{vX0}"]: U(x_)
for x_ in [f"v_add_u32 v{vX0}, 2560, v{vX0}", f"v_add_u32 v{vX1}, 2, v{vVA}", f"v_cmp_lt_u32 vcc, 0xfd, v{vVA}", f"v_add_u32 v{vR+2}, 2, v{vVBb}"]: U(x_)
for x_ in [f"v_cndmask_b32 v{vVA}, v{vVA}, v{vX1}, vcc", f"v_cmp_lt_u32 vcc, 0xfd, v{vVBb}", f"v_lshl_add_u32 v{vVA}, v{vVA}, 3, v{vX0}",
          f"v_mov_b32 v{vR+18}, 0", f"v_cndmask_b32 v{vVBb}, v{vVBb}, v{vR+2}, vcc"]: U(x_)
for x_ in [f"v_lshl_add_u32 v{vVBb}, v{vVBb}, 3, v{vX0}", f"v_mov_b32 v{vR+19}, 0"]: U(x_)


late = []
if OPT['lates']:
    while len(su) > NSU: late.insert(0, su.pop())
    U(f"v_cmp_eq_u32 vcc, 0, v{vL}"); U(f"v_mov_b32 v{vFW}, {OOB:#x}"); U("s_nop 0"); U(f"v_cndmask_b32_e64 v{vFW}, v{vFW}, 0, vcc")
def rt_next(c): return [I(f"s_add_u32 s{sRT+c}, s{sRT+c-1}, 128"), I(f"s_cmp_eq_u32 s{sRT+c}, 1152"), I(f"s_cselect_b32 s{sRT+c}, 0, s{sRT+c}")]
xh = {}
def x_items(cb):
    it = [(rt_next(cb) if cb else []) + [I(f"s_add_u32 m0, s{sM0X}, {(cb % 5)*4096}"), I(f"s_add_u32 s100, s{sXB}, s{sRT+cb}")]]
    xh[cb] = []
    for g in range(4):
        d = I(f"buffer_load_dwordx4 v{vXD+g}, {srd(SX)}, s100 offen offset:{g*1024} lds"); xh[cb].append(d); it.append([d])
    return it
per = (len(su) + 17) // 18
nx = 0
X1 = OPT['x1']
per = (len(su) + 4*X1 - 3) // (4*X1 - 2)
for cb in range(X1):
    if OPT['h0'] == cb and cb:
        last = max(k for k, t in enumerate(su) if isinstance(t, str) and (f"s{sM0A}," in t or f"s{sHA}," in t))
        drain(last + 1)
        E(chunks[0].items); chunks[0].items = []
    for it in x_items(cb):
        E(it)
        if it[0].kind == 'dma':
            nx += 1
            if nx >= 2: drain(per)
drain(999)
E(TS('pro', 'xiss'))
def stats(cb):
    o = []
    for d in range(16):
        x = XN + 16*cb + d
        o += [I(f"v_dot2c_f32_bf16 v{vST + (d & 1)}, 0x3f803f80, v{x}"), I(f"v_dot2c_f32_bf16 v{vST + 2 + (d & 1)}, v{x}, v{x}")]
    return o
pend = deque()
def stats_mix(cb, every):
    o = stats(cb)
    for k in range(0, 32, every):
        E(o[k:k+every])
        if pend:
            E(pend.popleft())
            if pend and prog[-1].kind != 'dma': E(pend.popleft())
for cb in range(9):
    E(TS('pro', f'w{cb}<')); E(WAITVM(*xh[cb])); E(TS('pro', f'w{cb}>'))
    rds = [E(f"ds_read_b128 {vr(XN + 16*cb + 4*s)}, v{vXR+s} offset:{(cb % 5)*4096}") for s in range(4)]
    if X1 < 5 and cb + X1 <= 8: pend.extend(x_items(cb + X1))
    if cb >= 1: stats_mix(cb - 1, 8)
    while pend and cb <= (4 if X1 == 5 else 8 - X1): E(pend.popleft())
    if X1 == 5 and cb + 5 <= 8:
        E(WAITLG(*rds))
        pend.extend(x_items(cb + 5))
    if cb == 1:
        E(RAW(f"""  s_or_b32 s101, s2, s{sW}
  s_cmp_lg_u32 s101, 0
  s_cbranch_scc1 L_noep2
  v_and_b32 v{vFL+1}, -16, v{vFL+1}
  v_add_u32 v{vFL+1}, 16, v{vFL+1}
  buffer_store_dword v{vFL+1}, v{vFL}, {srd(SWS)}, 0 offen sc1
  v_mov_b32 v{vE+2}, 0
  v_or_b32 v{vE+3}, 1, v{vFL+1}
  buffer_store_dword v{vE+3}, v{vE+2}, {srd(SDB)}, 0 offen sc1
  s_nop 1
L_noep2:"""))
    if cb == OPT['c0at'] and X1 < 5:
        E(chunks[0].items); chunks[0].items = []
    if cb == (4 if X1 == 5 else 8 - X1):
        pend.extend(chunks[0].items)
        if OPT['c1pro']: pend.extend(chunks[1].items); chunks[1].items = []
        for c_ in list(SUB)[:OPT['qpro']]: pend.extend(SUB[c_].items)
    last_rd = rds
E(WAITLG(*last_rd))
STAMP("xdone")

class Gap:
    def __init__(s): s.pre = []; s.post = []; s.frag = None; s.chunk = None; s.budget = OPT['budget']; s.rd = None
gaps = []
basecur = {vA: 0, vT3: 0, vS: 0, vP0: 0, vP1: 0}
def add_mfma(text, frag=None, chunk=None):
    g = Gap(); g.text = text; g.frag = frag; g.chunk = chunk; gaps.append(g); return len(gaps) - 1
def mf(D, A, B, C): return f"v_mfma_f32_32x32x16_bf16 {D}, {A}, {B}, {C}"
KS_FIRST = {}
def ga_steps(c, tiles, ch):
    for s in range(4):
        ks = 4*c + s
        KS_FIRST.setdefault(ks, len(gaps))
        for T in tiles:
            off = ch.base + s*GA_KS
            if T < 3: fr = (vA, off + 80*T, 256)
            elif T == 3: fr = (vT3, off, 256)
            else: fr = (vA, off + IMG + 64*(T-4), 256)
            D = ar(aT + 16*T, 16)
            add_mfma(lambda A, D=D, ks=ks: mf(D, A, vr(XN + 4*ks), D if ks else "0"), fr, ch)
if OPT['hf']:
    ga_steps(0, range(4, 8), chunks[0]); ga_steps(1, range(4, 8), chunks[1]); ga_steps(0, range(4), SUB[0]); ga_steps(1, range(4), SUB[1])
for c in range(2 if OPT['hf'] else 0, 9): ga_steps(c, range(8), chunks[c])
GA_END = len(gaps)
for c in range(9):
    ch = chunks[9 + c]
    for s in range(4):
        ks = 4*c + s
        for T in range(5):
            off = ch.base + s*GB_KS
            fr = (vA, off + 64*T, 256) if T < 4 else (vS, off + IMG, 256)
            D = ar(aG + 16*T, 16)
            add_mfma(lambda A, D=D, ks=ks: mf(D, A, vr(XN + 4*ks), D if ks else "0"), fr, ch)
GB_END = len(gaps)
TORD = [1, 2, 3, 4, 5, 6, 7, 0, 8]
steps = [(h, t) for h in range(2) for t in TORD]
def Kf(h, t): return ar(aK + 36*h + 4*t)
def Q1(h): return vr(vQ + 4*h)
def Q2(h): return vr(vQ + 8 + 4*h)
P1 = []
for u, (h, t) in enumerate(steps):
    S = vr(vSB + 16*(u % 3), 16)
    C = vr(vM0, 16) if t == 0 else (vr(vM8, 16) if t == 8 else "0")
    P1.append((add_mfma(mf(S, Kf(h, t), Q1(h), C)), add_mfma(mf(S, vr(vR + 2*t), Q2(h), S))))
P1_END = len(gaps)
vCM = vE
basecur[vVA] = 0; basecur[vVBb] = 0
P2s = []
NS = len(steps)
for u in range(NS + 2):
    ent = {}
    if u < NS:
        h, t = steps[u]
        S = vr(vSB + 16*(u % 4), 16)
        ent['qa'] = add_mfma(mf(S, Kf(h, t), Q1(h), S if t in (0, 8) else vr(vCM, 16)))
        ent['qb'] = add_mfma(mf(S, vr(vR + 2*t), Q2(h), S))
    if u >= 2:
        h, t = steps[u - 2]
        Pb = vSB + 16*((u - 2) % 4)
        O = ar(aO + 16*h, 16)
        first = (TORD.index(t) == 0)
        for s in range(2):
            fr = (vVA if h == 0 else vVBb, KVB*t + 256*s, 128)
            ent['pv%d' % s] = add_mfma(lambda A, O=O, Pb=Pb, s=s, first=first: mf(O, A, vr(Pb + 4*s), "0" if (first and s == 0) else O), fr, KVC)
    P2s.append(ent)
ATT_END = len(gaps)
vOX = vQ
vPK = 76
vS2 = vT3
def hfrag(ks, src):
    if src: return ar(aPF(ks))
    if ks < 8: return vr(vH1 + 4*ks)
    if ks < 18: return vr(vH2 + 4*(ks - 8))
    return vr(vOX + 4*(ks - 18))
UACC = [152, 184, 216, 152, 184]
UEND = {}
POS = {}
def unit_steps(u, src, k0, k1):
    for ks in range(k0, k1):
        POS[(u, src, ks)] = len(gaps)
        first = (src == 0 and ks == 0)
        if u == 4:
            ch = P2C[('s', 4, src)]; D = vr(UACC[u], 16)
            add_mfma(lambda A, D=D, ks=ks, first=first: mf(D, A, hfrag(ks, src), "0" if first else D), ('s2', ch.base + 1024*ks, 512 if ks < 20 else None), ch)
            continue
        if ks < 10: ch = P2C[('a', u, src)]; off = ch.base + 2048*ks
        elif (('b', u, src) in P2C): ch = P2C[('b', u, src)]; off = ch.base + 2048*(ks - 10)
        elif ks < 18: ch = P2C[('c', u, src)]; off = ch.base + 2048*(ks - 10)
        else: ch = P2C[('e', 0, 1)]; off = ch.base + 5120*u + 2048*(ks - 18)
        for T in range(2):
            D = vr(UACC[u] + 16*T, 16)
            add_mfma(lambda A, D=D, ks=ks, first=first: mf(D, A, hfrag(ks, src), "0" if first else D), (vP0 + T, off, 1024 if ks < 20 else None), ch)
    UEND[u] = len(gaps)
for u in range(2): unit_steps(u, 0, 0, 21)
for u in range(2): unit_steps(u, 1, 0, 18)
for u in range(2): unit_steps(u, 1, 18, 21)
for u in range(2, 5): unit_steps(u, 0, 0, 21); unit_steps(u, 1, 0, 21)
basecur['s2'] = 0
NG = len(gaps)

PD = OPT['PD']
first_use, last_use = {}, {}
for g, G in enumerate(gaps):
    if G.chunk is not None:
        first_use.setdefault(G.chunk, g); last_use[G.chunk] = g
bar_at = {}
for ch in chunks[1:] + list(SUB.values()): bar_at[first_use[ch] - PD] = ch
BKV = GB_END - 6
assert BKV not in bar_at
bar_at[BKV] = KVC
REL = Chunk(); REL.kind = 'rel'; REL.n = 99; REL.dmas = []
bar_at[GB_END + 2] = REL
bars = sorted(bar_at)
def release_gap(key): return min(b for b in bars if b > last_use[key])
for ch in chunks[2:] + [KVC]:
    nb = 0
    for o in (chunks[:ch.n] if ch is not KVC else chunks[:18]) + list(SUB.values()):
        if o.base < ch.base + ch.size and ch.base < o.base + o.size: nb = max(nb, release_gap(o))
    if ch.base + ch.size > KVL and ch.kind.startswith('p2'): nb = max(nb, release_gap(KVC))
    ch.nb = nb

fragno = 0
reads_at = {}
for g, G in enumerate(gaps):
    if G.frag is None:
        G.m = I(G.text); continue
    G.fb = aF + 4*(fragno % 8); fragno += 1
    G.m = I(G.text(ar(G.fb)))
    reads_at.setdefault(g - PD, []).append(g)
def emit_reads(g):
    G = gaps[g]; bk, off, d = G.frag
    bv = vS2 if bk == 's2' else bk
    outl = []
    if off < basecur[bk] or off + (d or 0) - basecur[bk] > 65535 - 8:
        nbase = off & ~0x7ff
        outl.append(I(f"v_add_u32 v{bv}, {(nbase - basecur[bk]) & 0xffffffff:#x}, v{bv}"))
        basecur[bk] = nbase
    G.rd = [I(f"ds_read_b64_tr_b16 {ar(G.fb, 2)}, v{bv} offset:{off - basecur[bk]}")]
    if d is not None: G.rd.append(I(f"ds_read_b64_tr_b16 {ar(G.fb + 2, 2)}, v{bv} offset:{off + d - basecur[bk]}"))
    return outl + G.rd

class Stream:
    def __init__(s, name): s.q = deque(); s.name = name
    def add(s, ins, nb=0, dl=10**9):
        ins = [x if isinstance(x, I) else I(x) for x in (ins if isinstance(ins, list) else [ins])]
        s.q.append((nb, dl, ins)); return ins[-1]
lateq = None
norm, epi, side, dmaq = Stream('norm'), Stream('epi'), Stream('side'), Stream('dma')

def norm_ops(ks):
    o = []
    T = lambda d: vE + 2*d
    for d in range(4): o += [f"v_lshlrev_b32 v{T(d)}, 16, v{XN+4*ks+d}", f"v_and_b32 v{T(d)+1}, s95, v{XN+4*ks+d}"]
    for d in range(4): o += [f"v_fma_f32 v{T(d)}, v{T(d)}, v{vRS}, v{vNB}", f"v_fma_f32 v{T(d)+1}, v{T(d)+1}, v{vRS}, v{vNB}"]
    for d in range(4): o += [f"v_cvt_pk_bf16_f32 v{XN+4*ks+d}, v{T(d)}, v{T(d)+1}"]
    return o
for ks in range(1, 36):
    for x in norm_ops(ks): norm.add(x, nb=max(0, KS_FIRST[ks] - 40), dl=KS_FIRST[ks] - 1)

def chk_ops(need, fl):
    return [f"s_add_u32 s{sA}, s{sT}, {need}", f"v_subrev_u32 v{fl}, s{sA}, v{fl}", f"v_cmp_eq_u32 s[{sCK}:{sCK+1}], s{sTH}, v{fl+1}",
            f"v_cmp_ge_u32 vcc, {15 - need}, v{fl}", f"s_and_b64 vcc, vcc, s[{sCK}:{sCK+1}]", f"s_cmp_eq_u64 vcc, -1"]
def poll_load(vaddr, lines=1): return VM(f"buffer_load_dwordx2 {vr(vFL, 2)}, v{vaddr}, {srd(SWS)}, 0 offen sc1", lines)
def poll_check(name, need, vaddr):
    chk = chk_ops(need, vFL)
    slow_paths.append(f"""L_slow_{name}:
  s_mov_b32 s{sD}, 0
L_spin_{name}:
  buffer_load_dwordx2 v[{vFL}:{vFL+1}], v{vaddr}, {srd(SWS)}, 0 offen sc1
  s_waitcnt vmcnt(0)
  """ + "\n  s_nop 1\n  ".join(chk) + f"""
  s_cbranch_scc1 L_back_{name}
  s_add_u32 s{sD}, s{sD}, 1
  s_cmp_lt_u32 s{sD}, 0x40000
  s_cbranch_scc1 L_spin_{name}
  s_branch L_back_{name}
""")
    g_ = 'gb' if name == 'kv' else 'poll'
    return TS(g_, f'poll{name}<') + [I(x) for x in chk] + [I(f"s_cbranch_scc0 L_slow_{name}"), I(f"L_back_{name}:")] + TS(g_, f'poll{name}>')
side.add([VM(f"buffer_load_dword v{vFL}, v{vFW}, {srd(SDB)}, 0 offen sc1", 1)], nb=100)
slow_paths.append(f"""L_slow_tag:
  s_mov_b32 s{sD}, 0
L_spin_tag:
  s_sleep 2
  buffer_load_dword v{vFL}, v{vFW}, {srd(SDB)}, 0 offen sc1
  s_waitcnt vmcnt(0)
  v_readfirstlane_b32 s{sT}, v{vFL}
  s_nop 1
  s_cmp_lg_u32 s{sT}, 0
  s_cbranch_scc1 L_back_tag
  s_add_u32 s{sD}, s{sD}, 1
  s_cmp_lt_u32 s{sD}, 0x40000
  s_cbranch_scc1 L_spin_tag
  s_branch L_back_tag
""")
side.add([f"v_readfirstlane_b32 s{sT}, v{vFL}", f"s_cmp_lg_u32 s{sT}, 0", "s_cbranch_scc0 L_slow_tag", "L_back_tag:",
          f"s_and_b32 s{sT}, s{sT}, -16", f"s_xor_b32 s{sTH}, s{sT}, {THI:#x}"], nb=160)
vFW, vFK, vFR, vFL2 = 4, 5, 0, 24
p2_setup = [f"v_accvgpr_read_b32 v{vDQ}, a{aST+3}"] + [f"v_add_u32 v{vDQ+n}, {n*8192}, v{vDQ}" for n in range(1, 4)]
s_setup = [f"v_accvgpr_read_b32 v{vDQ}, a{aST+4}"] + [f"v_add_u32 v{vDQ+n}, {n*(16*1152-1024)}, v{vDQ}" for n in range(1, 4)]
def p2_scalars():
    t0, t1, t2, t3 = sDM, sDM + 1, 100, 101
    o = [[f"s_and_b32 s{t0}, s{sJ}, 1", f"s_mul_i32 s{sCA}, s{t0}, 640", f"s_lshl_b32 s{t1}, s{t0}, 6", f"s_add_u32 s{sSC}, s{t1}, 512"]]
    for u in range(4):
        o.append([f"s_add_u32 s{t1}, s{sI}, {u}", f"s_and_b32 s{t1}, s{t1}, 3", f"s_lshl_b32 s{t1}, s{t1}, 7", f"s_add_u32 s{sUC+u}, s{t1}, s{sCA}"])
    for src in range(2):
        o.append([f"s_xor_b32 s{t0}, s{sJ}, {src}", f"s_and_b32 s{t1}, s{t0}, 1", f"s_mul_i32 s{t2}, s{t0}, 288", f"s_lshl_b32 s{t3}, s{t1}, 5"])
        o.append([f"s_add_u32 s{t3}, s{t3}, s{t2}", f"s_xor_b32 s{t1}, s{t1}, 1", f"s_lshl_b32 s{t1}, s{t1}, 8", f"s_add_u32 s{t2}, s{t2}, s{t1}"])
        o.append([f"s_mul_i32 s{t1}, s{sW}, 40", f"s_add_u32 s{t1}, s{t1}, s{t3}", f"s_mul_i32 s{sW2A[src]}, s{t1}, 1152", f"s_lshl_b32 s{t1}, s{sW}, 6"])
        o.append([f"s_add_u32 s{t1}, s{t1}, s{t3}", f"s_mul_i32 s{sSA[src]}, s{t1}, 1152", f"s_lshl_b32 s{t1}, s{sW}, 5", f"s_add_u32 s{t1}, s{t1}, s{t3}"])
        o.append([f"s_add_u32 s{t1}, s{t1}, 160", f"s_cmp_eq_u32 s{sW}, 3", f"s_cselect_b32 s{t1}, s{t2}, s{t1}", f"s_mul_i32 s{sW2B[src]}, s{t1}, 1152"])
        o.append([f"s_and_b32 s{t1}, s{sW}, 1", f"s_lshl_b32 s{t1}, s{t1}, 4", f"s_add_u32 s{t1}, s{t1}, s{t2}", f"s_mul_i32 s{sSS[src]}, s{t1}, 1152"])
        o.append([f"s_mul_i32 s{t0}, s{t0}, 36", f"s_lshl_b32 s{t1}, s{sW}, 3", f"s_lshr_b32 s{t2}, s{sW}, 1", f"s_lshl_b32 s{t2}, s{t2}, 2"])
        o.append([f"s_add_u32 s{t1}, s{t1}, s{t2}", f"s_add_u32 s{t1}, s{t1}, s{t0}", f"s_mul_i32 s{sWO5[src]}, s{t1}, 1152", f"s_add_u32 s{t1}, s{t0}, 16"])
        o.append([f"s_mul_i32 s{sWO6[src]}, s{t1}, 1152", f"s_cmp_eq_u32 s{sW}, 1", f"s_cselect_b32 s{t1}, 20, 16", f"s_cmp_eq_u32 s{sW}, 0",
                  f"s_cselect_b32 s{t1}, 0, s{t1}"])
        o.append([f"s_add_u32 s{t1}, s{t1}, s{t0}", f"s_mul_i32 s{sSE[src]}, s{t1}, 1152"])
    return o

lateq = Stream('late')
import re as _re
def _fix(t):
    t = t.text if isinstance(t, I) else t
    for a_, b_ in ((vY0, vR + 8), (vY1, vR + 9), (vY2, vR + 10)): t = _re.sub(rf"\bv{a_}\b", f"v{b_}", t)
    for a_, b_ in ((sA, 40), (sB, 41), (sC, 42), (sD, 43)): t = _re.sub(rf"\bs{a_}\b", f"s{b_}", t)
    return t
skip = 0
lt = []
for x in late:
    xs = x if isinstance(x, list) else [x]
    lt.append([_fix(y) for y in xs])
out_ = []
k = 0
while k < len(lt):
    it = lt[k]
    if it[0].startswith(f"v_cmp_eq_u32 vcc, 0, v{vL}"): k += 4; continue
    out_.append(it); k += 1
seln = next((n for n, it in enumerate(out_) if f"a{aSEL+3}," in it[0]), -1)
for n in range(seln + 1):
    out_[n] = [_re.sub(r"\bv4\b", f"v{vR+13}", _re.sub(r"\bv3\b", f"v{vR+12}", _re.sub(r"\bv2\b", f"v{vR+11}", t))) for t in out_[n]]
n = 0
while n < len(out_):
    it = out_[n]
    if len(it) == 1 and it[0].startswith("v_cmp"):
        m = n
        while "v_cndmask" not in out_[m][0]: m += 1
        it = sum(out_[n:m + 1], []); n = m
    lateq.add(it, nb=0, dl=GA_END - 1); n += 1
e0 = GA_END + 2
CSC = math.log2(math.e) / math.sqrt(18.0)
def rd_cvt(acc, n, dst, scale=None, relu=False, nb=e0, tb=vE, dl=10**9):
    for k0 in range(0, n, 8):
        m = min(8, n - k0)
        for k in range(m): epi.add(f"v_accvgpr_read_b32 v{tb+k}, a{acc+k0+k}", nb=nb, dl=dl)
        if scale:
            for k in range(m): epi.add(f"v_mul_f32 v{tb+k}, {scale}, v{tb+k}", nb=nb, dl=dl)
        for k in range(0, m, 2): epi.add(f"v_cvt_pk_bf16_f32 v{dst+(k0+k)//2}, v{tb+k}, v{tb+k+1}", nb=nb, dl=dl)
        if relu:
            for k in range(0, m, 2): epi.add(f"v_pk_max_i16 v{dst+(k0+k)//2}, v{dst+(k0+k)//2}, 0", nb=nb, dl=dl)
LO = f"s[{sLO}:{sLO+1}]"
kP, x8, vP_ = vH1, vH1 + 8, vH1 + 16
st = []
URGENT = set()
def KVST(text, lines):
    x = VM(text, lines); epi.add(x, nb=e0); st.append(x); URGENT.add(id(x))
rd_cvt(aT + 16, 16, kP)
KVST(f"buffer_store_dwordx4 {vr(kP)}, v{vL16}, {srd(SWS)}, s{sKVW} offen sc1", 8)
rd_cvt(aT + 48 + 4, 8, x8)
epi.add(f"v_cndmask_b32_e64 v{x8+6}, 0, v{kP+4}, {LO}", nb=e0); epi.add(f"v_cndmask_b32_e64 v{x8+7}, 0, v{x8+1}, {LO}", nb=e0)
epi.add(f"v_cndmask_b32_e64 v{kP+4}, v{kP+4}, v{x8}, {LO}", nb=e0)
epi.add(f"v_lshrrev_b32 v{vE+8}, 1, v{vL16}", nb=e0)
KVST(f"buffer_store_dwordx4 {vr(kP+4)}, v{vL16}, {srd(SWS)}, s{sKVW} offen offset:1024 sc1", 8)
epi.add(f"v_mov_b32 v{x8+4}, 0x3f803f80", nb=e0); epi.add(f"v_mov_b32 v{x8+5}, 0x3f803f80", nb=e0)
rd_cvt(aT + 32, 8, vP_)
KVST(f"buffer_store_dwordx2 {vr(x8+6, 2)}, v{vE+8}, {srd(SWS)}, s{sKVW} offen offset:2048 sc1", 4)
rd_cvt(aT + 40, 8, vP_ + 4)
KVST(f"buffer_store_dwordx4 {vr(vP_)}, v{vL16}, {srd(SWS)}, s{sKVW} offen offset:2560 sc1", 8)
rd_cvt(aT, 8, vQ, scale=f32(CSC))
KVST(f"buffer_store_dwordx4 {vr(vP_+4)}, v{vL16}, {srd(SWS)}, s{sKVW} offen offset:3584 sc1", 8)
rd_cvt(aT + 8, 8, vQ + 4, scale=f32(CSC))
KVST(f"buffer_store_dwordx4 {vr(x8+2)}, v{vVSC}, {srd(SWS)}, s{sKVW} offen offset:3584 sc1", 4)
rd_cvt(aT + 48, 4, vQ + 14, scale=f32(CSC))
epi.add(f"v_mov_b32 v{vQ+13}, 0x3f80", nb=e0)
epi.add(f"v_cndmask_b32_e64 v{vQ+8}, v{vQ+13}, v{vQ+4}, {LO}", nb=e0)
epi.add(f"v_cndmask_b32_e64 v{vQ+4}, v{vQ+4}, v{vQ+14}, {LO}", nb=e0)
epi.add(f"v_cndmask_b32_e64 v{vQ+13}, v{vQ+13}, v{vQ+15}, {LO}", nb=e0)
for k in (9, 10, 11, 12, 14, 15): epi.add(f"v_mov_b32 v{vQ+k}, 0", nb=e0)
hst = {}
hq = Stream('hq')
sHT = 51
def hx_store(k, reg):
    o = [I(f"s_add_u32 s{sHT}, s{sHXW}, {1024*(k & ~3)}")] if (k % 4 == 0 or k == 18) else []
    hst[k] = VM(f"buffer_store_dwordx4 {vr(reg)}, v{vL16}, {srd(SWS)}, s{sHT} offen offset:{1024*(k & 3)} sc1", 8)
    return o + [hst[k]]
for T in range(4):
    g_ = GA_END + 56 + 14*T
    rd_cvt(aT + 64 + 16*T, 16, vH1 + 8*T, relu=True, dl=g_)
    hq.add(hx_store(2*T, vH1 + 8*T), nb=g_, dl=g_ + 6); hq.add(hx_store(2*T + 1, vH1 + 8*T + 4), nb=g_ + 6, dl=g_ + 12)

def publish(count, waits):
    g_ = 'gb' if count == 1 else 'pub'
    return TS(g_, f'pub{count}<') + [WAITVM(*waits)] + TS(g_, f'pub{count}>') + [I(f"s_add_u32 s{sB}, s{sT}, {count}"), I(f"v_mov_b32 v{vFL2}, s{sB}"),
            VM(f"buffer_store_dwordx2 {vr(vFL2, 2)}, v{vFW}, {srd(SWS)}, s{sFW} offen sc1", 1)]
side.add(f"v_mov_b32 v{vFL2+1}, s{sTH}", nb=GA_END + 1)
poi = []
pq = Stream('pq')
if OPT['dp']:
    vPO = vR + 4
    pq.add([f"v_mov_b32 v{vPO+k}, -1" for k in range(4)] + [f"v_accvgpr_read_b32 v{vPO+4}, a{aST+1}"], nb=OPT['pog'], dl=GA_END - 2)
    for u in range(OPT['dpu'], 5):
        for n in range(4 if u < 4 else 2):
            x = VM(f"buffer_store_dwordx4 {vr(vPO)}, v{vPO+4}, {srd(SWS)}, s{sRS} offen offset:{2048*(n&1) + 256*(n>>1)} sc1", 8); poi.append(x)
            pq.add(([I(f"s_add_u32 s{sRS}, s{sPB}, {u*PU}")] if n == 0 else []) + [x], nb=OPT['pog'] + OPT['pod']*len(poi), dl=GA_END - 2)
side.add(publish(1, st + poi), nb=GA_END + OPT['kvpub'])
side.add(poll_load(vFK, 12), nb=GA_END + OPT['kvpoll'])
kvchk = side.add(poll_check('kv', 1, vFK), nb=GA_END + OPT['kvchk'], dl=GA_END + OPT['kvchk'])
KVC.nb = max(KVC.nb, GA_END + OPT['kvchk'])
vKL, vKXL = vVS, vVSC
side.add([f"v_add_u32 v{vKL}, s{sM0K}, v{vL16}", f"v_lshrrev_b32 v{vKXL}, 1, v{vL16}", f"v_add_u32 v{vKXL}, s{sM0K}, v{vKXL}"], nb=GA_END + OPT['kvchk'], dl=BKV)
rld = []
def kread(h, t): return I(f"ds_read_b128 {Kf(h, t)}, v{vKL} offset:{KVB*t + 1024*h}")
for k, t in enumerate(TORD):
    x = I(f"ds_read_b64 {vr(vR + 2*t, 2)}, v{vKXL} offset:{KVB*t + 2048}"); rld.append(x)
    gaps[BKV + k // 2].post += [x]
for k, (h, t) in enumerate(steps):
    gaps[min(BKV + 2 + k, P1[k][0] - 3) if k >= 4 else BKV + k].post += [kread(h, t)]
blk = [f"  s_cmp_ge_u32 s{sI}, 2", "  s_cbranch_scc1 L_nobias", f"  s_lshl_b32 s{sA}, s{sI}, 2", f"  s_add_u32 s{sA}, s{sA}, s{sW}",
       "  s_mov_b32 exec_lo, 0"]
for t in range(8):
    blk += [f"  s_cmp_ge_u32 s{sA}, {8 - t}", f"  s_cbranch_scc1 L_bias_done", f"  v_mov_b32 v{vR+2*t}, 0xf149", f"  v_mov_b32 v{vR+2*t+1}, 0xf149"]
blk += ["L_bias_done:", "  s_mov_b32 exec_lo, -1", "  s_nop 1", "L_nobias:"]
gaps[P1[0][1]].pre += [WAITLG(*rld), RAW("\n".join(blk))]

epi.add([f"v_and_b32 v{vTT}, 31, v{vL}", f"v_lshrrev_b32 v{vTT+1}, 5, v{vL}", f"v_lshlrev_b32 v{vTT+1}, 2, v{vTT+1}",
         f"v_sub_u32 v{vTT}, v{vTT}, v{vTT+1}"], nb=GB_END)
epi.add([f"v_cvt_f32_i32 v{vTT}, v{vTT}", f"v_add_f32 v{vTT}, 0.5, v{vTT}", f"v_mul_f32 v{vTT+1}, {f32(1e30)}, v{vTT}"], nb=GB_END)
for k in range(16):
    cc = 8*(k >> 2) + (k & 3)
    epi.add(f"v_sub_f32 v{vM8+k}, {f32(cc*1e30)}, v{vTT+1}", nb=GB_END, dl=P1[7][0] - 1)
    epi.add(f"v_min_f32 v{vM0+k}, 0, v{vM8+k}", nb=GB_END, dl=P1[7][0] - 1)
    epi.add(f"v_min_f32_e64 v{vM8+k}, 0, -v{vM8+k}", nb=GB_END, dl=P1[7][0] - 1)
for T in range(5):
    g_ = GB_END + 16 + 5*T
    rd_cvt(aG + 16*T, 16, vH2 + 8*T, relu=True, nb=GB_END + 2, tb=vTT, dl=g_)
    hq.add(hx_store(8 + 2*T, vH2 + 8*T), nb=g_, dl=g_ + 6); hq.add(hx_store(9 + 2*T, vH2 + 8*T + 4), nb=g_ + 2, dl=g_ + 8)

for g in range(GA_END, GA_END + 24): gaps[g].budget = OPT['kvbud']
if OPT['hf']:
    for g in range(28): gaps[g].budget = 6
vMX = 16
def max_ops(u, half):
    h, t = steps[u]; S = vSB + 16*(u % 3) + 8*half
    o = []
    for k in range(4):
        acc = vMX + 2*h + (k & 1)
        if TORD.index(t) == 0 and half == 0 and k < 2: o.append(I(f"v_max_f32 v{acc}, v{S+2*k}, v{S+2*k+1}"))
        else: o.append(I(f"v_max3_f32 v{acc}, v{acc}, v{S+2*k}, v{S+2*k+1}"))
    return o
def fin_max(h):
    m = vMX + 2*h
    return [I(f"v_max_f32 v{m}, v{m}, v{m+1}"), I(f"v_mov_b32 v{m+1}, v{m}"), I(f"v_permlane32_swap_b32 v{m}, v{m+1}"),
            I(f"v_max_f32 v{m}, v{m}, v{m+1}"), I(f"v_sub_f32 v{m}, 0, v{m}")]
def cm_ops(h): return [I(f"v_mov_b32 v{vCM+k}, v{vMX+2*h}") for k in range(16)]
for u in range(2, NS):
    gaps[P1[u][0]].post += max_ops(u - 2, 0); gaps[P1[u][1]].post += max_ops(u - 2, 1)
gaps[P1[11][0]].post += fin_max(0)
for k in range(4): gaps[P1[12 + k][0]].post += cm_ops(0)[4*k:4*k+4]
for u in range(2):
    gaps[P2s[u]['qa']].post += max_ops(NS - 2 + u, 0); gaps[P2s[u]['qb']].post += max_ops(NS - 2 + u, 1)
gaps[P2s[2]['pv1']].post += fin_max(1)
for u in range(1, NS + 1):
    S = vSB + 16*((u - 1) % 4)
    ex = [I(f"v_exp_f32 v{S+k}, v{S+k}") for k in range(16)]
    cv = [I(f"v_cvt_pk_bf16_f32 v{S+k}, v{S+2*k}, v{S+2*k+1}") for k in range(8)]
    e = P2s[u]
    if u == 1:
        gaps[e['qa']].post += ex[:8]; gaps[e['qb']].post += ex[8:] + cv
    elif u < NS:
        gaps[e['qa']].post += ex[:5]; gaps[e['qb']].post += ex[5:10]
        gaps[e['pv0']].post += ex[10:14] + cv[:2]; gaps[e['pv1']].post += ex[14:] + cv[2:]
    else:
        gaps[e['pv0']].post += ex[:10]; gaps[e['pv1']].post += ex[10:] + cv
    if u + 1 < NS and steps[u + 1][1] in (0, 8):
        h, t = steps[u + 1]; Sn = vSB + 16*((u + 1) % 4); M = vM0 if t == 0 else vM8
        gaps[e['pv1']].post += [I(f"v_add_f32 v{Sn+k}, v{M+k}, v{vMX+2*h}") for k in range(16)]
gaps[P2s[7]['pv0']].post += cm_ops(1)
for g in range(GB_END, ATT_END): gaps[g].budget = OPT['abud'] if g < P1_END else OPT['a2bud']
onq = Stream('onorm')
def onorm(h, nb, dl, tb):
    O = aO + 16*h; rc = 22
    A = lambda t: onq.add(t, nb=nb, dl=dl)
    A(f"v_accvgpr_read_b32 v{rc}, a{O+12}")
    for k in range(8): A(f"v_accvgpr_read_b32 v{tb+k}, a{O+k}")
    A(f"v_rcp_f32 v{rc}, v{rc}")
    A(f"v_accvgpr_read_b32 v{rc+1}, a{O+8+2*h}")
    for k in range(8): A(f"v_mul_f32 v{tb+k}, v{rc}, v{tb+k}")
    for k in range(4): A(f"v_cvt_pk_bf16_f32 v{vOX+4*h+k}, v{tb+2*k}, v{tb+2*k+1}")
    A(f"v_accvgpr_read_b32 v{tb}, a{O+9+2*h}")
    A(f"v_mul_f32 v{rc+1}, v{rc}, v{rc+1}"); A(f"v_mul_f32 v{tb}, v{rc}, v{tb}")
    A(f"v_cvt_pk_bf16_f32 v{tb}, v{rc+1}, v{tb}")
    A(f"v_cndmask_b32_e64 v{vOX+8+h}, 0, v{tb}, {LO}")
P0 = ATT_END
onorm(0, P2s[11]['pv0'], P2s[16]['qa'], vTT)
hq.add(hx_store(18, vOX), nb=P2s[16]['qa'], dl=P0)
onorm(1, P0 + 2, P0 + 18, vTT)
for k in (19, 20): hq.add(hx_store(k, vOX + 4*(k - 18)), nb=P0 + 18, dl=P0 + 30)
ev = []
PLD = {}
def ploads(ks, g0, d):
    for n, k in enumerate(ks):
        o = [I(f"s_add_u32 s{sRS+1}, s{sHXR}, {1024*(k & ~3)}")] if (k % 4 == 0 or k == 18) else []
        x = VM(f"buffer_load_dwordx4 {ar(aPF(k))}, v{vL16}, {srd(SWS)}, s{sRS+1} offen offset:{1024*(k & 3)} sc1", 8)
        PLD[id(x)] = POS[(0, 1, k)] - 20
        ev.append((g0 + d*n, [o + [x]]))
ev.append((GA_END + 140, [[I(f"s_xor_b32 s{sA}, s{sFW}, 8"), I(f"v_mov_b32 v{vFK}, s{sA}")], publish(2, [hst[k] for k in range(8)])]))
g1 = GB_END + OPT['h1c']
ev.append((g1 - 16, [[poll_load(vFK)]])); ev.append((g1, [poll_check('h1', 2, vFK)])); ploads(range(8), g1 + 1, OPT['h1d'])
ev.append((P1_END + OPT['p3'], [publish(3, [hst[k] for k in range(8, 18)])]))
g2 = P0 + OPT['h2c']
ev.append((g2 - 16, [[poll_load(vFK)]])); ev.append((g2, [poll_check('h2', 3, vFK)])); ploads(range(8, 18), g2 + 1, OPT['h2d'])
ev.append((P0 + OPT['p4'], [publish(4, [hst[k] for k in (18, 19, 20)])]))
g3_ = P0 + OPT['oc']
ev.append((g3_ - 24, [[poll_load(vFK)]])); ev.append((g3_, [poll_check('o', 4, vFK)])); ploads((18, 19, 20), g3_ + 1, 3)
vPW, vPR, vOUT, vOUTS = 16, 17, 18, 19
RXT = [96, 104, 248, 200, 208]
ev.append((P0 + 132, [[I(f"v_accvgpr_read_b32 v{vPW}, a{aST}"), I(f"v_accvgpr_read_b32 v{vPR}, a{aST+1}"), I(f"v_accvgpr_read_b32 v{vOUT}, a{aST+2}")],
                      [I(f"v_accvgpr_read_b32 v{vS2}, a{aST+5}"), I(f"v_lshlrev_b32 v{vOUTS}, 26, v{vL}"), I(f"v_and_b32 v{vOUTS}, {OOB:#x}, v{vOUTS}")],
                      [I(f"v_or_b32 v{vOUTS}, v{vOUTS}, v{vOUT}")]]))
def p2_epi(u):
    A = UACC[u]
    o = [[I(f"s_add_u32 s{sRS}, s{sPB}, {u*PU}")]]
    sts = []
    for q4 in range(4 if u < 4 else 2):
        for k in range(4): o.append([I(f"v_cvt_pk_bf16_f32 v{vPK+4*q4+k}, v{A+8*q4+2*k}, v{A+8*q4+2*k+1}")])
        x = VM(f"buffer_store_dwordx4 {vr(vPK+4*q4)}, v{vPW}, {srd(SWS)}, s{sRS} offen offset:{128*q4} sc1", 8)
        o.append([x]); sts.append(x)
    return o, sts
DPR = {2: 152, 3: 216, 4: 232}
def rdst(u, n): return vr(DPR[u] + 4*n) if (OPT['dp'] and u >= OPT['dpu']) else ar(16*u + 4*n)
def red_loads(u):
    o = [[I(f"s_add_u32 s{sRS+1}, s{sPB}, {u*PU}")]]
    for n in range(4 if u < 4 else 2):
        o.append([VM(f"buffer_load_dwordx4 {rdst(u, n)}, v{vPR}, {srd(SWS)}, s{sRS+1} offen offset:{2048*(n&1) + 256*(n>>1)} sc1", 8)])
    return o
def col(u): return f"s{sUC+u}" if u < 4 else f"s{sSC}"
def x_load(u): return [VM(f"buffer_load_dwordx2 {vr(RXT[u], 2)}, v{vOUT if u < 4 else vOUTS}, {srd(SX)}, {col(u)} offen", 4)]
def red_comp(u):
    x = RXT[u]; C = x + 4
    o = [[I(f"v_lshlrev_b32 v{C}, 16, v{x}")], [I(f"v_and_b32 v{C+1}, 0xffff0000, v{x}")],
         [I(f"v_lshlrev_b32 v{C+2}, 16, v{x+1}")], [I(f"v_and_b32 v{C+3}, 0xffff0000, v{x+1}")]]
    mm = [[I(f"v_mfma_f32_16x16x32_bf16 {vr(C)}, {ar(aSEL if n < 2 else aSEL2)}, {rdst(u, n)}, {vr(C)}")] for n in range(4 if u < 4 else 2)]
    fin = [[I(f"v_cvt_pk_bf16_f32 v{x+2}, v{C}, v{C+1}")], [I(f"v_cvt_pk_bf16_f32 v{x+3}, v{C+2}, v{C+3}")],
           [VM(f"buffer_store_dwordx2 {vr(x+2, 2)}, v{vOUT if u < 4 else vOUTS}, {srd(SOUT)}, {col(u)} offen sc1", 4)]]
    return o, mm, fin
pst = {}
red = Stream('red')
for u in range(4):
    o, pst[u] = p2_epi(u)
    for x in o: epi.add(x, nb=UEND[u] + 3, dl=min(UEND[u] + (60 if u == 1 else 36), NG - 1))
ev.append((UEND[1] + OPT['p6'], [publish(6, pst[0] + pst[1])]))
if not (OPT['dp'] and OPT['dpu'] == 2): ev.append((UEND[2] + OPT['p7'], [publish(7, pst[2])]))
for u in range(5): ev.append((UEND[1] + 64 + 4*u, [x_load(u)]))
ev.append((NG - OPT['rbp'], [[poll_load(vFR)]]))
vDP = 216
if OPT['dp']:
    ev.append((P0 + 150, [[I(f"s_lshl_b32 s{sA}, s{sI}, 9"), I(f"v_lshlrev_b32 v20, 3, v{vL}"), I(f"v_add_u32 v20, s{sA}, v20")], [poll_load(20, 4)]]))
    ev.append((P0 + 190, [poll_check('all', 1, 20)]))
for gp, items in sorted(ev, key=lambda x: x[0]):
    for it in items: side.add(it, nb=gp, dl=min([PLD.get(id(x), 10**9) for x in it]))
pf = Stream('pf')
if OPT['stch']:
    TCH = [[f"s_cmp_eq_u32 s{sW}, 1", f"s_cselect_b32 s3, 0, {OOB:#x}", f"v_min_u32 v20, 35, v{vL}", f"v_mul_u32_u24 v20, 1152, v20"],
           [f"v_or_b32 v20, s3, v20", f"s_and_b32 s3, s2, 3", f"s_mul_i32 s3, s3, {1152*1152}", f"s_lshr_b32 s43, s2, 3"],
           [f"s_mul_i32 s43, s43, {36*1152}", f"s_add_u32 s3, s3, s43", VM(f"buffer_load_dword v20, v20, {srd(S2)}, s3 offen offset:512", 9)]]
for g_ in [int(x) for x in OPT['cpf'].split(',') if x]:
    pf.add([f"s_lshr_b32 s3, s2, 3", f"s_lshl_b32 s3, s3, 2", f"s_add_u32 s3, s3, s{sW}", f"s_lshl_b32 s3, s3, 9"], nb=g_)
    pf.add([f"v_accvgpr_read_b32 v{vFL}, a{aST+6}", VM(f"buffer_load_dword v{vFL}, v{vFL}, {srd(SCODE)}, s3 offen", 1)], nb=g_)

if OPT['stch']:
    q_ = list(pf.q); pf.q.clear()
    for it in q_[:2]: pf.q.append(it)
    for it in TCH: pf.add(it, nb=P1_END + 40)
    for it in q_[2:]: pf.q.append(it)
s8 = stats(8)
c0n = len(chunks[0].items)
def c0_left(): return any(any(x is d for d in chunks[0].dmas for x in it) for it in pend)
k8 = 0
while c0_left():
    E(pend.popleft()); E(s8[k8:k8+4]); k8 += 4
E(s8[k8:])
E(f"v_add_f32 v{vST}, v{vST}, v{vST+1}"); E(f"v_add_f32 v{vST+2}, v{vST+2}, v{vST+3}")
E(f"v_mov_b32 v{vST+1}, v{vST}"); E(f"v_mov_b32 v{vST+3}, v{vST+2}")
if pend: E(pend.popleft())
E(f"v_permlane32_swap_b32 v{vST}, v{vST+1}"); E(f"v_permlane32_swap_b32 v{vST+2}, v{vST+3}")
E(f"v_add_f32 v{vST}, v{vST}, v{vST+1}"); E(f"v_add_f32 v{vST+2}, v{vST+2}, v{vST+3}")
E(f"v_mul_f32 v{vST}, {f32(1/576)}, v{vST}")
E(f"v_mul_f32 v{vST+2}, {f32(1/576)}, v{vST+2}")
E(f"v_fma_f32 v{vST+2}, -v{vST}, v{vST}, v{vST+2}")
E(f"v_max_f32 v{vST+2}, 0, v{vST+2}")
E(f"v_add_f32 v{vST+2}, {f32(1e-5)}, v{vST+2}")
E(f"v_rsq_f32 v{vRS}, v{vST+2}")
if pend: E(pend.popleft())
E(f"v_mul_f32_e64 v{vNB}, -v{vST}, v{vRS}")
n0 = norm_ops(0)
E(n0[:8])
E(TS('pro', 'c0<')); E(WAITVM(*chunks[0].dmas)); E(TS('pro', 'c0w')); E("s_barrier"); E(TS('pro', 'b0'))
for pos_ in sorted(k for k in reads_at if k < 0):
    for g in reads_at[pos_]: E(emit_reads(g))
E(n0[8:])
STAMP("ga0")

for it in pend: dmaq.add(it, nb=0, dl=0)
for c_ in list(SUB)[OPT['qpro']:]:
    for it in SUB[c_].items: dmaq.add(it, nb=0, dl=0)
chunks[1].nb = 0
order = chunks[1:18] + [KVC] + chunks[18:]
for ch in order:
    if ch.n == 18 and ch is not KVC:
        for x_ in p2_scalars(): dmaq.add(x_, nb=0)
        dmaq.add(p2_setup, nb=0)
    if ch.kind == 'p2s' and ch.src == 0: dmaq.add(s_setup, nb=0)
    if ch.n >= 18 and ch is not KVC: ch.nb = max(ch.nb, GB_END + OPT['dmaat'])
    for k_, it in enumerate(ch.items): dmaq.add(it, nb=(ch.nb if not (ch is KVC and k_ < ch.segstart[0]) else GA_END + OPT['kvchk']), dl=(BKV if ch is KVC else min(first_use[o_] for o_ in order[order.index(ch):] if o_ is not KVC) - PD))
marks = {GA_END: 'gb0', GB_END: 'att0', P1_END: 'att2', ATT_END: 'p2_0'}
if 'p2' in OPT['ts'].split(','):
    for k_ in range(1, 9): marks[ATT_END + 42*k_] = f'q{k_}'
fr_list = [g for g in range(NG) if gaps[g].frag is not None]
fr_idx = {g: k for k, g in enumerate(fr_list)}
backlog = 200.0
last_dma = [-99]
issued = {id(x) for x in prog}
lastg = {}
def emit_items(ins, g):
    global backlog
    c = 0
    for x in ins:
        E(x); c += x.cost; issued.add(id(x))
        if id(x) in LINES:
            backlog += LINES[id(x)] * 4 * OPT['lc']; lastg[id(x)] = g
    return c
for g, G in enumerate(gaps):
    if g in marks: STAMP(marks[g])
    for s_ in (norm, lateq, pq, epi, onq, hq, side, red, pf):
        lastdl = max([k for k, (nb, dl, _) in enumerate(s_.q) if dl <= g] + [-1])
        for _ in range(lastdl + 1):
            nb, dl, ins = s_.q.popleft()
            assert nb <= g, (s_.name, nb, dl, g, ins)
            emit_items(ins, g)
    if g in bar_at:
        key = bar_at[g]
        grp_ = 'b' + key.kind[:2]; nm_ = 'KV' if key is KVC else str(key.n)
        while not all(id(d) in issued for d in key.dmas):
            print("late DMA", nm_, g, file=sys.stderr)
            nb, dl, ins = dmaq.q.popleft(); assert nb <= g; emit_items(ins, g)
        E(TS(grp_, f'B{nm_}<')); E(WAITVM(*key.dmas)); E(TS(grp_, f'B{nm_}|')); E("s_barrier")
        if grp_ != 'bp2': E(TS(grp_, f'B{nm_}>'))
    E(G.pre)
    if G.frag is not None:
        k = fr_idx[g]
        wq = OPT['wq']
        if k % wq == 0:
            kk = k + wq - 1
            while kk > k and not (kk < len(fr_list) and gaps[fr_list[kk]].rd and fr_list[kk] - g <= wq): kk -= 1
            if kk > k: E(WAITLG(*gaps[fr_list[kk]].rd))
    E(G.m)
    cost = 0
    for gg in reads_at.get(g, []):
        for x in emit_reads(gg):
            E(x)
            if x.kind != 'dsr': cost += 1
    if not reads_at.get(g): cost -= 2
    for x in G.post: E(x); cost += x.cost
    fixed = cost
    vm_done = False
    urgent_dma = dmaq.q and dmaq.q[0][1] - g < OPT['dmarg']
    for s_ in ((dmaq, norm, pf, side, hq, pq, red, onq, epi, lateq) if (urgent_dma or g < GB_END) else (side, hq, pf, red, onq, epi, dmaq)):
        n_ = 0
        while s_.q and s_.q[0][0] <= g:
            ins = s_.q[0][2]
            isvm = any(id(x) in LINES for x in ins)
            if isvm and s_ is dmaq and g >= GA_END - 40 and g - last_dma[0] < (OPT['attp'] if GB_END <= g < ATT_END else OPT['dsp']) and s_.q[0][1] - g > OPT['dmarg']: break
            if isvm and any(x.kind == 'vst' and LINES[id(x)] >= 4 and id(x) not in URGENT for x in ins) and backlog > OPT['stb']: break
            if isvm and (vm_done or backlog > OPT['tcp']) and not any(id(x) in URGENT for x in ins): break
            lim = max(G.budget, fixed + 1) if s_ in (dmaq, side, hq, pf) else G.budget
            if P1_END <= g < ATT_END and s_ is onq: lim = fixed + 2
            if cost >= lim: break
            s_.q.popleft(); cost += emit_items(ins, g); n_ += 1
            if isvm: vm_done = True
            if isvm and s_ is dmaq: last_dma[0] = g
            if s_ is dmaq: break
    backlog = max(0.0, backlog - max(33.0, 8 + 4.4 * (cost + 2.5)))
assert not dmaq.q and not norm.q and not epi.q and not onq.q, (len(dmaq.q), len(norm.q), len(epi.q))
for _, _, ins in side.q: E(ins)
STAMP('tail0')
def comp(p):
    o, mm, fin = red_comp(p); E(o + mm + fin)
assert not hq.q and not pf.q
o, pst[4] = p2_epi(4)
if OPT['t2'] and not OPT['dp']: E(o[:6]); E(publish(8, pst[3])); E(o[6:])
else: E(o)
E(poll_check('rb', 7 if (OPT['dpu'] == 3 or not OPT['dp']) else 6, vFR))
if not OPT['dp'] and not OPT['t2']:
    E(red_loads(0)); E(red_loads(1))
    E(publish(9, pst[4]))
    STAMP('pub9')
    E(red_loads(2))
    E(poll_load(vFR))
    comp(0); comp(1)
    E(poll_check('r9', 9, vFR))
    STAMP('got9')
    E(red_loads(3)); E(red_loads(4))
    for u in range(2, 5): comp(u)
elif not OPT['dp']:
    E(red_loads(0)); E(red_loads(1))
    E(publish(9, pst[4]))
    STAMP('pub9')
    E(poll_load(vFR))
    E(red_loads(2))
    comp(0)
    E(poll_check('r8', 8, vFR))
    E(red_loads(3))
    E(poll_load(vFR))
    comp(1); comp(2)
    E(poll_check('r9', 9, vFR))
    STAMP('got9')
    E(red_loads(4))
    comp(3); comp(4)
else:
    for u in range(OPT['dpu']): E(red_loads(u))
    E(f"s_mov_b32 s{sC}, 0")
    comp(0)
    STAMP('c0')
    E("L_dp:")
    regs_ = []
    for u in range(OPT['dpu'], 5):
        E(red_loads(u)); regs_ += list(range(DPR[u], DPR[u] + (16 if u < 4 else 8)))
    E(f"v_max_u32 v{vFL}, v{regs_[0]}, v{regs_[1]}")
    for k in range(2, len(regs_), 2): E(f"v_max3_u32 v{vFL}, v{vFL}, v{regs_[k]}, v{regs_[k+1]}")
    E(f"s_add_u32 s{sC}, s{sC}, 1")
    E(f"v_cmp_eq_u32 vcc, -1, v{vFL}")
    E(f"s_cmp_gt_u32 s{sC}, 0x10000")
    E("s_cbranch_scc1 L_dp_done")
    E("s_nop 2")
    E("s_cbranch_vccnz L_dp")
    E("L_dp_done:")
    STAMP('got')
    for u in (1, 2, 3, 4): comp(u)
if OPT['timing']:
    E("s_waitcnt vmcnt(0)"); STAMP("end")
    E(f"s_lshl_b32 s{sA}, s2, 10"); E(f"s_lshl_b32 s{sB}, s{sW}, 8"); E(f"s_add_u32 s{sA}, s{sA}, s{sB}"); E(f"s_add_u32 s{sA}, s{sA}, {DBGW}")
    E(RAW("  s_memrealtime s[98:99]\n  s_waitcnt lgkmcnt(0)\n  v_writelane_b32 v11, s98, 63\n  s_nop 4"))
    E(f"v_lshlrev_b32 v{vT0}, 2, v{vL}")
    E(f"buffer_store_dword v11, v{vT0}, {srd(SWS)}, s{sA} offen")
E("L_end:")
E("s_endpgm")

def hoist_vmem(prog):
    out_ = []
    n_ = 0
    for x in prog:
        if x.kind in ('dma', 'vld', 'vst'):
            k = len(out_)
            while k > 0:
                p = out_[k - 1]
                if p.kind == 'mfma32': break
                if p.kind not in ('dsr', 'valu', 'trans', 'salu') or (p.W & (x.R | x.W)) or (p.R & x.W) or len(out_) - k > 24: k = -1; break
                k -= 1
            if k > 0 and k < len(out_):
                out_.insert(k, x); n_ += 1; continue
        out_.append(x)
    print("hoisted", n_, file=sys.stderr)
    return out_
if OPT['hoist']: prog = hoist_vmem(prog)
seen = set()
for x in prog:
    if x.kind in ('pvm', 'plg'):
        for t in x.target: assert id(t) in seen, ("wait on unissued op", t)
    seen.add(id(x))
wr = set(); pos_of = {id(x): n for n, x in enumerate(prog)}
for x in prog:
    if x.kind in ('mfma32', 'mfma16'):
        for r in x.R: assert r in wr, ("MFMA reads unwritten register", r, x.text)
    wr |= x.W
for x in prog:
    if id(x) in PLD: assert pos_of[id(x)] < pos_of[id(gaps[PLD[id(x)] + 20].m)]
p1 = insert_waits(prog)
p2, nn = insert_nops(p1)
hdr = open('parallel_sum__sliding_block__dense_activation_relu__prompt.s.ref').read().split('\n')
hdr = [l for l in hdr if l.startswith(';') and '@launch' not in l]
txt = "\n".join(hdr) + f"\n; @launch grid=(256,1,1) block=(256,1,1) lds={LDS_TOTAL}\n"
txt += f""".amdgcn_target "amdgcn-amd-amdhsa--gfx950"
.text
.globl {KNAME}
.p2align 8
.type {KNAME},@function
{KNAME}:
"""
txt += render(p2) + "".join(slow_paths) + "L_code_end:\n  s_endpgm\n.fill 64, 4, 0xbf800000\n"
txt += f""".section .rodata,"a"
.p2align 6
.amdhsa_kernel {KNAME}
  .amdhsa_next_free_vgpr 512
  .amdhsa_next_free_sgpr 102
  .amdhsa_accum_offset 256
  .amdhsa_group_segment_fixed_size 0
  .amdhsa_kernarg_size 72
  .amdhsa_user_sgpr_count 2
  .amdhsa_user_sgpr_kernarg_segment_ptr 1
  .amdhsa_system_sgpr_workgroup_id_x 1
.end_amdhsa_kernel
"""
if OPT['timing']: txt += "; stamps: " + " ".join(stamp_names) + "\n"
assert len(stamp_names) <= 62
open(sys.argv[1], 'w').write(txt)
print("instrs", len(p2), "nop states", nn, dict(Counter(x.kind for x in p2)), file=sys.stderr)
print("chunks (n, base, nb, last dma gap, barrier gap)", [(c.n, c.base, getattr(c, 'nb', None), lastg.get(id(c.dmas[-1])), (first_use[c] - PD) if c is not KVC else BKV) for c in chunks + [KVC]], file=sys.stderr)
print("h stores", {k: lastg.get(id(v)) for k, v in hst.items()}, "ploads", sorted(lastg[i_] for i_ in PLD), file=sys.stderr)
print("kv stores at", [lastg[id(x)] - GA_END for x in st], file=sys.stderr)
```

```python
import sys, math, struct
from collections import deque, Counter
from asmlib import *

KNAME = "parallel_sum__sliding_block__dense_activation_relu__prompt_kernel"
OPT = dict(ts='', dbgt=0, timing=0, PD=7, budget=3, tcp=180, lc=2.2, kvpub=52, kvpoll=88, kvchk=110, kvbud=6, abud=9, a2bud=1, pubat=16, pollat=40, chkat=30, dmarg=45, slot0=3, c1pro=1, pf=0, xco=1, dsp=3, stb=35, pre=2, inl=0, osc=1, rt=0, tail=1, wq=4, lates=0, hf=1, rbp=36, dp=0, t2=0, na=4, ntm=0, pad=0, mt='', swp=0, pog=30, pod=20, dpu=3, h1c=20, h1d=4, p3=34, h2c=20, h2d=4, p4=65, oc=120, dmaat=42, p6=85, p7=60, stch=1, x1=5, c0at=99, cpf='330,720,860', ntop=40, hoist=1, in0=4, rj=0, h0=0, qpro=1, kvl=12, attp=4)
for a in sys.argv[2:]:
    k, v = a.split('=')
    OPT[k] = (v if k in ('ts', 'cpf', 'mt') else float(v) if k == 'lc' else int(v))

def f32(x): return "0x%08x" % struct.unpack('<I', struct.pack('<f', x))[0]

FBASE, EBASE, KVBASE, HXBASE, PBASE = 0, 0x20000, 0x40000, 0x600000, 0x1C00000
HXB = 21504
PU = 131072
KVB = 5120
WS_USED = 0x3000000
DBGW = 0x3000000
WS_REC = 0x4000000 if OPT['timing'] else WS_USED
OOB = 0x80000000
THI = 0x5bd1e995
LDS_TOTAL = 163840
XS = 81920
GA_KS, GA_CH = 8576, 34304
GB_KS, GB_CH = 5312, 21248
IMG = 4288
KVL = 102400
P2A, P2B = 20480, 21504
SX, SQ, S1, S2, SO, SOUT, SWS, SDB, SCODE = 4, 8, 12, 16, 20, 24, 28, 32, 36
def srd(b): return f"s[{b}:{b+3}]"
sI, sJ, sW, sROT = 58, 59, 60, 61
sRT = 62
sKV = 71
sM0K = 74
sXB, sQB, sHA, sHB, sSG = 80, 81, 82, 83, 84
sUC, sSC = 62, 66
sW2A, sW2B, sWO5, sWO6, sSA, sSS, sSE = [67, 68], [69, 70], [80, 81], [82, 83], [84, 85], [86, 87], [88, 94]
sHXW, sHXR, sCA = 56, 57, 79
sKVW, sFW, sPB = 89, 90, 91
sT, sTH = 92, 93
sM0X = 94
sLO = 96
sA, sB, sC, sD = 75, 76, 77, 78
sDM = 44
sM0A, sM0B, sM0C, sM0D, sM0E = 46, 47, 48, 49, 50
sCK = 52
sRS = 54
sONE = 3
sTS = 98
vL, vT0, vT1, vT2, vT3_ = 1, 2, 3, 4, 5
vA, vT3, vS, vP0, vP1 = 6, 7, 8, 9, 10
vDQ = 12
vDH = 16
vDS = 20
vL16, vVS, vVSC = 21, 22, 23
vRS, vNB = 24, 25
vFL = 26
vH1 = 28
vQ = 60
vR = 76
vE = 96
XN = 112
vXD, vXR, vST = 28, 32, 36
vH2 = 112
vSB = 152
vM0, vM8 = 216, 232
vTT = 248
aT, aG, aF, aSEL = 0, 128, 208, 252
aK, aO, aRD, aSEL2 = 0, 72, 0, 248
def aPF(k): return 104 + 4*k

prog = []
stamp_names = []
def STAMP(name=''):
    if OPT['timing']:
        k = len(stamp_names); stamp_names.append(name)
        prog.append(I("s_waitcnt lgkmcnt(0)"))
        prog.append(RAW(f"  s_memtime s[{sTS}:{sTS+1}]\n  s_waitcnt lgkmcnt(0)\n  v_writelane_b32 v11, s{sTS}, {k}\n  s_nop 4"))
        if OPT.get('rt'): prog.append(RAW(f"  s_memrealtime s[{sTS}:{sTS+1}]\n  s_waitcnt lgkmcnt(0)\n  v_writelane_b32 v11, s{sTS}, {32+k}\n  s_nop 4"))
def TS(grp, name):
    if OPT['timing'] and grp in OPT['ts'].split(','):
        x = I('s_nop', kind='lazystamp'); x.note = name; x.R = set(); x.W = set(); x.cost = 0
        return [x]
    return []
def E(t):
    if isinstance(t, list):
        for x in t: E(x)
        return
    x = t if isinstance(t, I) else I(t)
    if x.kind == 'lazystamp':
        STAMP(x.note); return x
    prog.append(x); return x
def vr(b, n=4): return f"v[{b}:{b+n-1}]"
def ar(b, n=4): return f"a[{b}:{b+n-1}]"
LINES = {}
def VM(text, lines):
    x = I(text); LINES[id(x)] = lines; return x
slow_paths = []

class Chunk: pass
chunks = []
def add_chunk(kind, c, size):
    ch = Chunk(); ch.kind = kind; ch.c = c; ch.size = size; ch.n = len(chunks); ch.dmas = []; chunks.append(ch); return ch
for c in range(9): add_chunk('ga', c, GA_CH).base = (c % 4) * GA_CH
for c, b in enumerate([34304, 55552, 76800, 98048, 119296, 0, 21248, 42496, 63744]): add_chunk('gb', c, GB_CH).base = b
P2SEQ = [('a', 0, 0), ('b', 0, 0), ('a', 0, 1), ('c', 0, 1), ('a', 1, 0), ('b', 1, 0), ('a', 1, 1), ('c', 1, 1), ('e', 0, 1),
         ('a', 2, 0), ('b', 2, 0), ('a', 2, 1), ('b', 2, 1), ('a', 3, 0), ('b', 3, 0), ('a', 3, 1), ('b', 3, 1), ('s', 4, 0), ('s', 4, 1)]
P2C = {}
pos = 0
for k, (kd_, u, src) in enumerate(P2SEQ):
    sz = dict(a=P2A, b=P2B, c=16384, e=10240, s=21504)[kd_]
    ch = add_chunk('p2' + kd_, u, sz); ch.src = src; P2C[(kd_, u, src)] = ch
    if k == 5: pos = KVL
    if pos + sz > LDS_TOTAL: pos = 0
    if k == 9: pos = 10240
    if k == 10: pos = 78848
    ch.base = pos; pos += sz
KVC = add_chunk('kv', 0, 12*KVB); KVC.base = KVL; KVC.segstart = {}; chunks.pop()

def dma_items(ch):
    c, b = ch.c, ch.base
    it = []
    m_ = OPT['ntm']
    ntf = ' nt' if ((m_ & 2 and ch.n < 2) or (m_ & 4 and ch.n in (9, 10)) or (m_ & 8 and 18 <= ch.n < 22) or (m_ & 16 and ch.kind != 'kv')) else ''
    def grp(m0w, m0c, soff_ins, srdb, voffs, lines, fl=ntf):
        it.append([I(f"s_add_u32 m0, s{m0w}, {m0c}") if m0w else I(f"s_mov_b32 m0, {m0c}")] + [I(s) for s in soff_ins])
        for (v, imm) in voffs:
            d = VM(f"buffer_load_dwordx4 v{v}, {srd(srdb)}, s{sDM} offen offset:{imm}{fl} lds", lines)
            ch.dmas.append(d); it.append([d])
    four = lambda v, st: [(v + n, n * st) for n in range(4)]
    if ch.kind == 'ga':
        grp(sM0A, b, [f"s_mul_i32 s{sDM}, s{sRT+c}, 1728", f"s_add_u32 s{sDM}, s{sDM}, s{sQB}"], SQ, four(vDQ, 1088), 20)
        grp(sM0A, b + IMG, [f"s_mul_i32 s{sDM}, s{sRT+c}, 4608", f"s_add_u32 s{sDM}, s{sDM}, s{sHA}"], S1, four(vDH, 1088), 8)
    elif ch.kind == 'gb':
        grp(sM0B, b, [f"s_mul_i32 s{sDM+1}, s{sRT+c}, 4608", f"s_add_u32 s{sDM}, s{sDM+1}, s{sHB}"], S1, four(vDH, 1088), 8)
        grp(sM0B, b + IMG, [f"s_add_u32 s{sDM}, s{sDM+1}, s{sSG}"], S1, [(vDS, 0)], 16)
    elif ch.kind == 'p2a':
        grp(sM0C, b, [f"s_add_u32 s{sDM}, s{sW2A[ch.src]}, s{sUC+c}"], S2, four(vDQ, 1024), 8)
        grp(sM0C, b + 4096, [f"s_add_u32 s{sDM}, s{sDM}, {32*1152}"], S2, [(vDQ, 0)], 8)
    elif ch.kind == 'p2b':
        grp(None, b + 20480, [f"s_add_u32 s{sDM}, s{sWO6[ch.src]}, s{sUC+c}"], SO, [(vDQ, 0)], 8)
        grp(sM0D, b, [f"s_add_u32 s{sDM}, s{sW2B[ch.src]}, s{sUC+c}"], S2, four(vDQ, 1024), 8)
        grp(sM0E, b + 16384, [f"s_add_u32 s{sDM}, s{sWO5[ch.src]}, s{sUC+c}"], SO, [(vDQ, 0)], 8)
    elif ch.kind == 'p2c':
        grp(sM0D, b, [f"s_add_u32 s{sDM}, s{sW2B[ch.src]}, s{sUC+c}"], S2, four(vDQ, 1024), 8)
    elif ch.kind == 'p2e':
        for u in range(2):
            grp(None, b + 5120*u + 4096, [f"s_add_u32 s{sDM}, s{sWO6[1]}, s{sUC+u}"], SO, [(vDQ, 0)], 8)
            grp(sM0E, b + 5120*u, [f"s_add_u32 s{sDM}, s{sWO5[1]}, s{sUC+u}"], SO, [(vDQ, 0)], 8)
    elif ch.kind == 'p2s':
        grp(sM0D, b, [f"s_add_u32 s{sDM}, s{sSA[ch.src]}, s{sSC}"], S2, four(vDQ, 1024), 16)
        it.append([I(f"s_and_b32 s{sDM+1}, s{sM0E}, 1024")])
        grp(sDM+1, b + 16384, [f"s_add_u32 s{sDM}, s{sSS[ch.src]}, s{sSC}"], S2, [(vDQ, 0)], 16)
        it.append([I(f"s_min_u32 s{sDM+1}, s{sM0E}, 2048")])
        grp(sDM+1, b + 18432, [f"s_add_u32 s{sDM}, s{sSE[ch.src]}, s{sSC}"], SO, [(vDQ, 0)], 16)
    else:
        for m in (2, 0, 1):
            ch.segstart[m] = len(it)
            grp(sM0C, b + 4*KVB*m, [f"s_mov_b32 s{sDM}, s{sKV+m}"], SWS, [(vL16, 1024*n) for n in range(4)], OPT['kvl'], ' sc1')
            grp(sM0C, b + 4*KVB*m + 4096, [f"s_add_u32 s{sDM}, s{sDM}, 4096"], SWS, [(vL16, 0)], OPT['kvl'], ' sc1')
    return it
for ch in chunks + [KVC]: ch.items = dma_items(ch)
if OPT['swp']:
    A0, B0, A1, C1 = P2C[('a', 0, 0)], P2C[('b', 0, 0)], P2C[('a', 0, 1)], P2C[('c', 0, 1)]
    def swapped(ch, oth, m0w, rows, first):
        it = ch.items
        k0 = next(k for k, x in enumerate(it) if f"s{rows[ch.src]}," in " ".join(y.text for y in x))
        it[k0] = [I(f"s_bitcmp1_b32 s{sI}, 2"), I(f"s_cselect_b32 s{sDM}, s{rows[oth.src]}, s{rows[ch.src]}"), I(f"s_cselect_b32 s{sDM+1}, {(oth.base - ch.base) & 0xffffffff:#x}, 0"),
                  I(f"s_add_u32 s{sDM+1}, s{sDM+1}, s{m0w}"), I(f"s_add_u32 s{sDM+1}, s{sDM+1}, {ch.base}"), I(f"s_mov_b32 m0, s{sDM+1}"), I(f"s_add_u32 s{sDM}, s{sDM}, s{sUC}")]
        if ch.kind == 'p2a': it[k0 + 5] = [I(f"s_add_u32 m0, s{sDM+1}, 4096"), I(f"s_add_u32 s{sDM}, s{sDM}, {32*1152}")]
    swapped(A0, A1, sM0C, sW2A, 1); swapped(A1, A0, sM0C, sW2A, 0); swapped(B0, C1, sM0D, sW2B, 1); swapped(C1, B0, sM0D, sW2B, 0)
    alld = A0.dmas + B0.dmas + A1.dmas + C1.dmas
    A0.dmas = alld
SUB = {}
if OPT['hf']:
    for c in range(2):
        ch = chunks[c]
        q = Chunk(); q.kind = 'ga'; q.c = c; q.size = ch.size; q.base = ch.base; q.n = 80 + c
        q.items = ch.items[:5]; q.dmas = ch.dmas[:4]
        ch.items = ch.items[5:]; ch.dmas = ch.dmas[4:]
        SUB[c] = q

E(f"s_cmp_ge_u32 s2, 256")
E(f"s_cbranch_scc1 L_end")
E(f"s_load_dwordx16 s[40:55], s[0:1], 0")
E(f"s_load_dwordx2 s[56:57], s[0:1], 64")
if OPT['timing']:
    E("v_mov_b32 v11, 0"); STAMP("start")
    if OPT['dbgt']: E(RAW("  s_memrealtime s[98:99]\n  s_waitcnt lgkmcnt(0)\n  v_writelane_b32 v11, s98, 62\n  s_nop 4"))
E(f"v_lshrrev_b32 v{vT1}, 6, v0")
E(f"v_and_b32 v{vL}, 63, v0")
E(f"v_readfirstlane_b32 s{sW}, v{vT1}")
E(RAW(f"  s_getpc_b64 s[{SCODE}:{SCODE+1}]\nL_pc:\n  s_mov_b32 s{SCODE+2}, L_code_end-L_pc\n  s_mov_b32 s{SCODE+3}, 0x00020000"))
for x_ in [f"v_lshlrev_b32 v{vT0}, 7, v{vL}", f"v_cmp_lt_u32 vcc, 3, v{vL}", f"v_mov_b32 v{vT2}, {OOB:#x}", f"s_lshr_b32 s101, s2, 3",
           f"v_cndmask_b32 v{vE+1}, v{vT0}, v{vT2}, vcc", f"v_cmp_gt_u32 vcc, {OPT['ntop']}, v0", f"s_lshl_b32 s101, s101, 2", f"s_add_u32 s101, s101, s{sW}",
           f"v_cndmask_b32 v{vT0}, v{vT2}, v{vT0}, vcc", f"s_lshl_b32 s101, s101, 9",
           f"buffer_load_dword v{vE+8}, v{vT0}, {srd(SCODE)}, 0 offen", f"buffer_load_dword v{vE}, v{vE+1}, {srd(SCODE)}, s101 offen",
           f"v_accvgpr_write_b32 a246, v{vE+1}"]: E(x_)
E(f"v_lshrrev_b32 v{vT0}, 3, v{vL}")
E(f"v_lshrrev_b32 v{vT1}, 4, v{vL}")
E(f"v_and_b32 v{vT2}, 7, v{vL}")
E(f"v_xor_b32 v{vT2}, v{vT2}, v{vT1}")
E(f"v_lshlrev_b32 v{vT2}, 4, v{vT2}")
E(f"v_mul_u32_u24 v{vT0}, 1152, v{vT0}")
E(f"v_add_u32 v{vXD}, v{vT0}, v{vT2}")
E(f"v_xor_b32 v{vXD+1}, 64, v{vXD}")
E(f"v_add_u32 v{vXD+2}, {2*8192}, v{vXD}")
E(f"v_add_u32 v{vXD+3}, {3*8192}, v{vXD+1}")
E(f"v_add_u32 v{vXD+1}, 8192, v{vXD+1}")
E(f"s_bfe_u32 s100, s2, 0x10002")
E(f"s_lshl_b32 s100, s100, 3")
E(f"s_lshr_b32 s{sROT}, s2, 5")
E(f"s_add_u32 s{sI}, s100, s{sROT}")
E(f"s_bfe_u32 s101, s2, 0x20003"); E(f"s_lshl_b32 s101, s101, 1"); E(f"s_add_u32 s101, s101, s{sROT}")
if OPT['rj']: E(f"s_and_b32 s100, s2, 1"); E(f"s_add_u32 s101, s101, s100")
E(f"s_sub_u32 s100, s101, 9"); E(f"s_cmp_ge_u32 s101, 9"); E(f"s_cselect_b32 s101, s100, s101"); E(f"s_lshl_b32 s{sRT}, s101, 7")
E(f"s_lshl_b32 s100, s{sI}, 2")
E(f"s_add_u32 s100, s100, s{sW}")
E(f"s_mul_i32 s{sXB}, s100, {32*1152}")
E(f"s_mul_i32 s{sM0X}, s{sW}, 20480")
E(f"s_add_u32 s{sM0X}, s{sM0X}, {XS}")
E(f"s_mov_b32 s{SX+2}, {2048*1152}"); E(f"s_mov_b32 s{SX+3}, 0x00020000")
E("s_waitcnt lgkmcnt(0)")
E(f"s_mov_b32 s{SX}, s40"); E(f"s_mov_b32 s{SX+1}, s41")
E(TS('pro', 'karg'))

su = deque()
def U(t): su.append(t)
def drain(n):
    for _ in range(min(n, len(su))): E(su.popleft())
def mk_srd(b, p, n):
    U(f"s_mov_b32 s{b}, s{p}"); U(f"s_mov_b32 s{b+1}, s{p+1}"); U(f"s_mov_b32 s{b+2}, {n}"); U(f"s_mov_b32 s{b+3}, 0x00020000")
mk_srd(SWS, 56, WS_REC)
U(f"v_mov_b32 v{vFL}, {EBASE}")
U(RAW(f"""  s_or_b32 s101, s2, s{sW}
  s_cmp_lg_u32 s101, 0
  s_cbranch_scc1 L_noep1
  buffer_load_dword v{vFL+1}, v{vFL}, {srd(SWS)}, 0 offen sc1
L_noep1:"""))
mk_srd(SQ, 42, 576*3456); mk_srd(SO, 44, 576*1152); mk_srd(S1, 48, 576*9216); mk_srd(S2, 50, 4608*1152)
mk_srd(SOUT, 52, 2048*1152); mk_srd(SDB, 54, 256)
U(f"s_and_b32 s{sA}, s2, 3"); U(f"s_lshl_b32 s{sA}, s{sA}, 2"); U(f"s_bfe_u32 s{sB}, s2, 0x20003"); U(f"s_add_u32 s{sJ}, s{sA}, s{sB}")
U(f"v_and_b32 v{vT0}, 31, v{vL}"); U(f"v_lshrrev_b32 v{vT1}, 5, v{vL}"); U(f"v_bfe_u32 v{vT2}, v{vL}, 1, 3")
U(f"v_xor_b32 v{vT2}, v{vT2}, v{vT1}"); U(f"v_lshlrev_b32 v{vT2}, 4, v{vT2}"); U(f"v_lshl_add_u32 v{vT2}, v{vT0}, 7, v{vT2}")
for s in range(4):
    U(f"v_xor_b32 v{vXR+s}, {32*s}, v{vT2}"); U(f"v_add_u32 v{vXR+s}, s{sM0X}, v{vXR+s}")
for k in range(8): U(f"v_mov_b32 v{vST+k}, 0")
U(f"v_lshlrev_b32 v{vL16}, 4, v{vL}")
U(f"s_mov_b32 s95, 0xffff0000"); U(f"s_mov_b32 s{sONE}, 0x3f803f80"); U(f"s_mov_b32 s{sLO}, -1"); U(f"s_mov_b32 s{sLO+1}, 0")
U(f"v_lshlrev_b32 v{vT2}, 31, v{vT1}"); U(f"v_add_u32 v{vVSC}, 1024, v{vL16}"); U(f"v_add_u32 v{vVSC}, v{vVSC}, v{vT2}")
U(f"v_bfe_u32 v{vT0}, v{vL}, 2, 2"); U(f"v_bfe_u32 v{vT2}, v{vL}, 4, 1"); U(f"v_and_b32 v{vT3_}, 3, v{vL}")
U(f"v_lshl_add_u32 v{vT3_}, v{vT2}, 2, v{vT3_}")
U(f"v_mul_u32_u24 v{vA}, 1088, v{vT0}"); U(f"v_lshl_add_u32 v{vA}, v{vT1}, 9, v{vA}")
U(f"v_mul_u32_u24 v{vT3}, 40, v{vT3_}"); U(f"v_add3_u32 v{vT3}, v{vT3}, v{vA}, 36"); U(f"v_add_u32 v{vT3}, 36, v{vT3}")
U(f"v_lshl_add_u32 v{vA}, v{vT3_}, 3, v{vA}")
U(f"v_lshl_add_u32 v{vS}, v{vT1}, 3, v{vT0}"); U(f"v_lshlrev_b32 v{vS}, 6, v{vS}"); U(f"v_lshl_add_u32 v{vS}, v{vT3_}, 3, v{vS}")
U(f"v_lshl_add_u32 v{vP0}, v{vT1}, 2, v{vT0}"); U(f"v_lshlrev_b32 v{vP0}, 7, v{vP0}"); U(f"v_lshl_add_u32 v{vP0}, v{vT3_}, 3, v{vP0}")
U(f"v_lshrrev_b32 v{vT2}, 1, v{vT0}"); U(f"v_lshl_add_u32 v{vP0}, v{vT2}, 6, v{vP0}"); U(f"v_xor_b32 v{vP1}, 64, v{vP0}")
U(f"v_lshrrev_b32 v{vT0}, 4, v{vL}"); U(f"v_and_b32 v{vT1}, 15, v{vL}")
U(f"v_mul_u32_u24 v{vT2}, {4*9216}, v{vT0}"); U(f"v_lshl_add_u32 v{vDH}, v{vT1}, 4, v{vT2}")
for n in range(1, 4): U(f"v_add_u32 v{vDH+n}, {n*(9216-1088)}, v{vDH}")
U(f"v_min_u32 v{vT1}, 14, v{vT1}"); U(f"v_mul_u32_u24 v{vT2}, 13, v{vT1}"); U(f"v_lshrrev_b32 v{vT2}, 6, v{vT2}")
U(f"v_mul_u32_u24 v{vT3_}, 5, v{vT2}"); U(f"v_sub_u32 v{vT1}, v{vT1}, v{vT3_}"); U(f"v_lshlrev_b32 v{vT1}, 4, v{vT1}")
U(f"v_min_u32 v{vT1}, 56, v{vT1}"); U(f"v_mul_u32_u24 v{vT3_}, 1152, v{vT2}"); U(f"v_add_u32 v{vT1}, v{vT1}, v{vT3_}")
U(f"s_mul_i32 s{sA}, s{sJ}, 72"); U(f"s_xor_b32 s{sB}, s{sJ}, 1"); U(f"s_mul_i32 s{sC}, s{sB}, 72")
U(f"v_mov_b32 v{vT3_}, s{sC}"); U(f"v_mov_b32 v{vDS}, s{sA}"); U(f"v_cmp_eq_u32 vcc, 0, v{vT2}")
U(f"v_mul_u32_u24 v{vT2}, {4*3456}, v{vT0}"); U(f"v_add_u32 v{vT1}, v{vT1}, v{vT2}")
U(f"v_cndmask_b32 v{vT3_}, v{vT3_}, v{vDS}, vcc"); U(f"v_add_u32 v{vDQ}, v{vT1}, v{vT3_}")
for n in range(1, 4): U(f"v_add_u32 v{vDQ+n}, {n*(3456-1088)}, v{vDQ}")
U(f"v_lshrrev_b32 v{vT0}, 2, v{vL}"); U(f"v_mul_u32_u24 v{vT0}, 9216, v{vT0}"); U(f"v_and_b32 v{vT1}, 3, v{vL}")
U(f"v_lshl_add_u32 v{vDS}, v{vT1}, 4, v{vT0}")
U(f"s_mul_i32 s{sQB}, s{sW}, {16*3456}")
U(f"s_and_b32 s{sA}, s{sJ}, 1"); U(f"s_mul_i32 s{sC}, s{sJ}, 288"); U(f"s_lshl_b32 s{sD}, s{sA}, 5"); U(f"s_add_u32 s{sD}, s{sD}, s{sC}")
U(f"s_xor_b32 s{sA}, s{sA}, 1"); U(f"s_lshl_b32 s{sA}, s{sA}, 8"); U(f"s_add_u32 s{sC}, s{sC}, s{sA}")
U(f"s_mul_i32 s{sA}, s{sW}, {16*9216}"); U(f"s_lshl_b32 s{sHA}, s{sD}, 1"); U(f"s_add_u32 s{sHA}, s{sHA}, s{sA}")
U(f"s_add_u32 s{sHB}, s{sHA}, 256"); U(f"s_lshl_b32 s{sSG}, s{sC}, 1"); U(f"s_add_u32 s{sSG}, s{sSG}, s{sA}")
U(f"s_mul_i32 s{sM0A}, s{sW}, {GA_KS}"); U(f"s_mul_i32 s{sM0B}, s{sW}, {GB_KS}"); U(f"s_mul_i32 s{sM0C}, s{sW}, 5120")
U(f"s_lshl_b32 s{sM0D}, s{sW}, 12"); U(f"s_lshl_b32 s{sM0E}, s{sW}, 10")
NSU = len(su)
for m in range(3):
    U(f"s_add_i32 s{sA}, s{sI}, {m-2}")
    U([I(f"s_cmp_lt_i32 s{sA}, 0"), I(f"s_cselect_b32 s{sA}, s{sI}, s{sA}")])
    U(f"s_lshl_b32 s{sB}, s{sJ}, 4"); U(f"s_add_u32 s{sA}, s{sA}, s{sB}"); U(f"s_lshl_b32 s{sA}, s{sA}, 2"); U(f"s_add_u32 s{sA}, s{sA}, s{sW}")
    U(f"s_mul_i32 s{sA}, s{sA}, {KVB}"); U(f"s_add_u32 s{sKV+m}, s{sA}, {KVBASE}")
U(f"s_xor_b32 s{sA}, s{sJ}, 1"); U(f"s_lshl_b32 s{sA}, s{sA}, 4"); U(f"s_add_u32 s{sA}, s{sA}, s{sI}"); U(f"s_lshl_b32 s{sA}, s{sA}, 2")
U(f"s_add_u32 s{sA}, s{sA}, s{sW}"); U(f"s_mul_i32 s{sA}, s{sA}, {KVB}"); U(f"s_add_u32 s{sKVW}, s{sA}, {KVBASE}")
U(f"s_lshl_b32 s{sA}, s{sI}, 2"); U(f"s_add_u32 s{sA}, s{sA}, s{sW}"); U(f"s_lshl_b32 s{sA}, s{sA}, 4"); U(f"s_add_u32 s{sA}, s{sA}, s{sJ}")
U(f"s_lshl_b32 s{sFW}, s{sA}, 3")
U(f"s_and_b32 s{sB}, s{sJ}, 1"); U(f"s_lshl_b32 s{sC}, s{sI}, 1"); U(f"s_add_u32 s{sC}, s{sC}, s{sB}")
U(f"s_mul_i32 s{sPB}, s{sC}, {5*PU}"); U(f"s_add_u32 s{sPB}, s{sPB}, {PBASE}")
U(f"s_mul_i32 s{sHXW}, s{sA}, {HXB}"); U(f"s_add_u32 s{sHXW}, s{sHXW}, {HXBASE}")
U(f"s_xor_b32 s{sA}, s{sA}, 1"); U(f"s_mul_i32 s{sHXR}, s{sA}, {HXB}"); U(f"s_add_u32 s{sHXR}, s{sHXR}, {HXBASE}")
U(f"v_and_b32 v{vT0}, 15, v{vL}"); U(f"v_and_b32 v{vT1}, 1, v{vL}"); U(f"v_lshlrev_b32 v{vT1}, 4, v{vT1}")
U(f"v_mov_b32 v{vT2}, 0x3f80"); U(f"v_lshlrev_b32 v{vT2}, v{vT1}, v{vT2}"); U(f"v_lshrrev_b32 v{vT0}, 1, v{vT0}")
for d in range(4):
    U([I(f"v_cmp_eq_u32 vcc, {d}, v{vT0}"), I("s_nop 1"), I(f"v_cndmask_b32 v{vT1}, 0, v{vT2}, vcc")])
    U(f"v_accvgpr_write_b32 a{aSEL+d}, v{vT1}")
    U([I(f"v_cmp_eq_u32 vcc, {d+4}, v{vT0}"), I("s_nop 1"), I(f"v_cndmask_b32 v{vT1}, 0, v{vT2}, vcc")])
    U(f"v_accvgpr_write_b32 a{aSEL2+d}, v{vT1}")

vFW, vFK, vFR, vFL2 = 4, 5, 0, 24
vVA, vVBb = 2, 3
aST = 240
vY0, vY1, vY2 = vE + 4, vE + 5, vE + 6
for x_ in [f"v_bfe_u32 v{vY0}, v{vL}, 2, 3", f"v_lshlrev_b32 v{vY0}, 12, v{vY0}", f"v_and_b32 v{vY1}, 3, v{vL}", f"v_lshl_add_u32 v{vY0}, v{vY1}, 5, v{vY0}",
           f"v_lshrrev_b32 v{vY1}, 5, v{vL}", f"v_lshl_add_u32 v{vY0}, v{vY1}, 4, v{vY0}", f"s_lshl_b32 s{sA}, s{sW}, 15", f"s_lshr_b32 s{sC}, s{sJ}, 1",
           f"s_lshl_b32 s{sB}, s{sC}, 9", f"s_add_u32 s{sA}, s{sA}, s{sB}", f"v_add_u32 v{vY0}, s{sA}, v{vY0}", f"v_accvgpr_write_b32 a{aST}, v{vY0}",
           f"v_lshrrev_b32 v{vY0}, 4, v{vL}", f"v_lshlrev_b32 v{vY0}, 9, v{vY0}", f"v_and_b32 v{vY1}, 15, v{vL}", f"v_lshl_add_u32 v{vY0}, v{vY1}, 4, v{vY0}",
           f"s_lshl_b32 s{sA}, s{sC}, 14", f"s_lshl_b32 s{sB}, s{sW}, 12", f"s_add_u32 s{sA}, s{sA}, s{sB}", f"v_add_u32 v{vY0}, s{sA}, v{vY0}",
           f"v_accvgpr_write_b32 a{aST+1}, v{vY0}",
           f"s_lshl_b32 s{sA}, s{sI}, 7", f"s_lshl_b32 s{sD}, s{sC}, 4", f"s_add_u32 s{sA}, s{sA}, s{sD}",
           f"s_lshl_b32 s{sB}, s{sW}, 2", f"s_add_u32 s{sA}, s{sA}, s{sB}", f"s_mul_i32 s{sA}, s{sA}, 1152",
           f"v_bfe_u32 v{vY0}, v{vL}, 1, 2", f"v_mul_u32_u24 v{vY0}, 1152, v{vY0}", f"v_bfe_u32 v{vY1}, v{vL}, 3, 1",
           f"v_lshl_add_u32 v{vY0}, v{vY1}, 5, v{vY0}", f"v_bfe_u32 v{vY1}, v{vL}, 4, 1", f"v_lshl_add_u32 v{vY0}, v{vY1}, 4, v{vY0}", f"v_and_b32 v{vY1}, 1, v{vL}",
           f"v_lshl_add_u32 v{vY0}, v{vY1}, 3, v{vY0}", f"v_lshrrev_b32 v{vY1}, 5, v{vL}", f"v_lshl_add_u32 v{vY0}, v{vY1}, 6, v{vY0}",
           f"v_add_u32 v{vY0}, s{sA}, v{vY0}", f"v_accvgpr_write_b32 a{aST+2}, v{vY0}",
           f"v_lshrrev_b32 v{vY0}, 3, v{vL}", f"v_bfe_u32 v{vY1}, v{vL}, 4, 1", f"v_lshlrev_b32 v{vY1}, 2, v{vY1}",
           f"v_and_b32 v{vY2}, 7, v{vL}", f"v_xor_b32 v{vY2}, v{vY2}, v{vY1}", f"v_mul_u32_u24 v{vY0}, 1152, v{vY0}",
           f"v_lshl_add_u32 v{vY0}, v{vY2}, 4, v{vY0}", f"v_accvgpr_write_b32 a{aST+3}, v{vY0}",
           f"v_lshrrev_b32 v{vY0}, 2, v{vL}", f"v_mul_u32_u24 v{vY0}, 1152, v{vY0}", f"v_and_b32 v{vY1}, 3, v{vL}",
           f"v_lshl_add_u32 v{vY0}, v{vY1}, 4, v{vY0}", f"v_accvgpr_write_b32 a{aST+4}, v{vY0}",
           f"v_lshrrev_b32 v{vY0}, 5, v{vL}", f"v_lshlrev_b32 v{vY0}, 8, v{vY0}", f"v_sub_u32 v{vY0}, v{vS}, v{vY0}", f"v_accvgpr_write_b32 a{aST+5}, v{vY0}"]: U(x_)
for x_ in [f"v_bfe_u32 v{vT0}, v{vL}, 2, 2", f"v_min_u32 v{vT0}, 2, v{vT0}", f"s_sub_u32 s{sA}, s{sI}, 2", f"v_add_u32 v{vT0}, s{sA}, v{vT0}"]: U(x_)
for x_ in [f"v_mov_b32 v{vT1}, s{sI}", f"v_cmp_gt_i32 vcc, 0, v{vT0}", f"s_xor_b32 s{sA}, s{sJ}, 1", f"s_lshl_b32 s{sA}, s{sA}, 3",
          f"v_cndmask_b32 v{vT0}, v{vT0}, v{vT1}, vcc"]: U(x_)
for x_ in [f"v_lshlrev_b32 v{vT0}, 9, v{vT0}", f"v_and_b32 v{vT1}, 3, v{vL}", f"v_lshl_add_u32 v{vT0}, v{vT1}, 7, v{vT0}",
          f"v_add_u32 v{vFK}, s{sA}, v{vT0}"]: U(x_)
for x_ in [f"v_cmp_eq_u32 vcc, 0, v{vL}", f"v_mov_b32 v{vFW}, {OOB:#x}", f"s_nop 0", f"v_cndmask_b32_e64 v{vFW}, v{vFW}, 0, vcc"]: U(x_)
for x_ in [f"s_lshl_b32 s{sA}, s{sI}, 9", f"s_lshr_b32 s{sD}, s{sJ}, 2", f"s_lshl_b32 s{sD}, s{sD}, 7", f"s_add_u32 s{sA}, s{sA}, s{sD}",
           f"s_and_b32 s{sD}, s{sJ}, 1", f"s_lshl_b32 s{sD}, s{sD}, 3", f"s_add_u32 s{sA}, s{sA}, s{sD}",
           f"v_and_b32 v{vT1}, 7, v{vL}", f"v_lshlrev_b32 v{vT1}, 4, v{vT1}", f"v_add_u32 v{vFR}, s{sA}, v{vT1}"]: U(x_)
tabA = bytes([0, 64, 1, 65, 128, 128, 255, 255]); tabB = bytes([192, 129, 193, 254, 128, 128, 255, 255])
lo = lambda b: "0x%08x" % int.from_bytes(b[:4], 'little')
hi = lambda b: "0x%08x" % int.from_bytes(b[4:], 'little')
vX0, vX1 = vR, vR + 1
for x_ in [f"v_bfe_u32 v{vX0}, v{vL}, 4, 1", f"v_and_b32 v{vX1}, 3, v{vL}", f"v_lshl_add_u32 v{vX0}, v{vX0}, 2, v{vX1}",
          f"v_or_b32 v{vX0}, 0x0c0c0c00, v{vX0}"]: U(x_)
for x_ in [f"s_mov_b32 s{sA}, {hi(tabA)}", f"v_mov_b32 v{vX1}, {lo(tabA)}", f"v_perm_b32 v{vVA}, s{sA}, v{vX1}, v{vX0}"]: U(x_)
for x_ in [f"v_mov_b32 v{vX1}, {lo(tabB)}", f"v_perm_b32 v{vVBb}, s{sA}, v{vX1}, v{vX0}", f"v_bfe_u32 v{vX0}, v{vL}, 2, 2", f"v_lshrrev_b32 v{vX1}, 5, v{vL}"]: U(x_)
for x_ in [f"v_lshl_add_u32 v{vX0}, v{vX1}, 2, v{vX0}", f"v_lshlrev_b32 v{vX0}, 4, v{vX0}", f"s_add_u32 s{sM0K}, s{sM0C}, {KVL}",
          f"v_add_u32 v{vX0}, s{sM0K}, v{vX0}"]: U(x_)
for x_ in [f"v_add_u32 v{vX0}, 2560, v{vX0}", f"v_add_u32 v{vX1}, 2, v{vVA}", f"v_cmp_lt_u32 vcc, 0xfd, v{vVA}", f"v_add_u32 v{vR+2}, 2, v{vVBb}"]: U(x_)
for x_ in [f"v_cndmask_b32 v{vVA}, v{vVA}, v{vX1}, vcc", f"v_cmp_lt_u32 vcc, 0xfd, v{vVBb}", f"v_lshl_add_u32 v{vVA}, v{vVA}, 3, v{vX0}",
          f"v_mov_b32 v{vR+18}, 0", f"v_cndmask_b32 v{vVBb}, v{vVBb}, v{vR+2}, vcc"]: U(x_)
for x_ in [f"v_lshl_add_u32 v{vVBb}, v{vVBb}, 3, v{vX0}", f"v_mov_b32 v{vR+19}, 0"]: U(x_)


late = []
if OPT['lates']:
    while len(su) > NSU: late.insert(0, su.pop())
    U(f"v_cmp_eq_u32 vcc, 0, v{vL}"); U(f"v_mov_b32 v{vFW}, {OOB:#x}"); U("s_nop 0"); U(f"v_cndmask_b32_e64 v{vFW}, v{vFW}, 0, vcc")
def rt_next(c): return [I(f"s_add_u32 s{sRT+c}, s{sRT+c-1}, 128"), I(f"s_cmp_eq_u32 s{sRT+c}, 1152"), I(f"s_cselect_b32 s{sRT+c}, 0, s{sRT+c}")]
xh = {}
def x_items(cb):
    it = [(rt_next(cb) if cb else []) + [I(f"s_add_u32 m0, s{sM0X}, {(cb % 5)*4096}"), I(f"s_add_u32 s100, s{sXB}, s{sRT+cb}")]]
    xh[cb] = []
    for g in range(4):
        d = I(f"buffer_load_dwordx4 v{vXD+g}, {srd(SX)}, s100 offen offset:{g*1024}{' nt' if OPT['ntm'] & 1 else ''} lds"); xh[cb].append(d); it.append([d])
    return it
per = (len(su) + 17) // 18
nx = 0
X1 = OPT['x1']
per = (len(su) + 4*X1 - 3) // (4*X1 - 2)
for cb in range(X1):
    if OPT['h0'] == cb and cb:
        last = max(k for k, t in enumerate(su) if isinstance(t, str) and (f"s{sM0A}," in t or f"s{sHA}," in t))
        drain(last + 1)
        E(chunks[0].items); chunks[0].items = []
    for it in x_items(cb):
        E(it)
        if it[0].kind == 'dma':
            nx += 1
            if nx >= 2: drain(per)
drain(999)
E(TS('pro', 'xiss'))
def stats(cb):
    o = []
    for d in range(16):
        x = XN + 16*cb + d
        e_ = (d & 1) + (4 if (OPT['na'] == 4 and d & 2) else 0)
        o += [I(f"v_dot2c_f32_bf16 v{vST + e_}, s94x, v{x}".replace("s94x", f"s{sONE}")), I(f"v_dot2c_f32_bf16 v{vST + 2 + e_}, v{x}, v{x}")]
    return o
pend = deque()
def stats_mix(cb, every):
    o = stats(cb)
    for k in range(0, 32, every):
        E(o[k:k+every])
        if pend:
            E(pend.popleft())
            if pend and prog[-1].kind != 'dma': E(pend.popleft())
for cb in range(9):
    E(TS('pro', f'w{cb}<')); E(WAITVM(*xh[cb])); E(TS('pro', f'w{cb}>'))
    rds = [E(f"ds_read_b128 {vr(XN + 16*cb + 4*s)}, v{vXR+s} offset:{(cb % 5)*4096}") for s in range(4)]
    if X1 < 5 and cb + X1 <= 8: pend.extend(x_items(cb + X1))
    if cb >= 1: stats_mix(cb - 1, 8)
    while pend and cb <= (4 if X1 == 5 else 8 - X1): E(pend.popleft())
    if X1 == 5 and cb + 5 <= 8:
        E(WAITLG(*rds))
        pend.extend(x_items(cb + 5))
    if cb == 1:
        E(RAW(f"""  s_or_b32 s101, s2, s{sW}
  s_cmp_lg_u32 s101, 0
  s_cbranch_scc1 L_noep2
  v_and_b32 v{vFL+1}, -16, v{vFL+1}
  v_add_u32 v{vFL+1}, 16, v{vFL+1}
  buffer_store_dword v{vFL+1}, v{vFL}, {srd(SWS)}, 0 offen sc1
  v_mov_b32 v{vE+2}, 0
  v_or_b32 v{vE+3}, 1, v{vFL+1}
  buffer_store_dword v{vE+3}, v{vE+2}, {srd(SDB)}, 0 offen sc1
  s_nop 1
L_noep2:"""))
    if cb == OPT['c0at'] and X1 < 5:
        E(chunks[0].items); chunks[0].items = []
    if cb == (4 if X1 == 5 else 8 - X1):
        pend.extend(chunks[0].items)
        if OPT['c1pro']: pend.extend(chunks[1].items); chunks[1].items = []
        for c_ in list(SUB)[:OPT['qpro']]: pend.extend(SUB[c_].items)
    last_rd = rds
E(WAITLG(*last_rd))
STAMP("xdone")

class Gap:
    def __init__(s): s.pre = []; s.post = []; s.frag = None; s.chunk = None; s.budget = OPT['budget']; s.rd = None
gaps = []
basecur = {vA: 0, vT3: 0, vS: 0, vP0: 0, vP1: 0}
def add_mfma(text, frag=None, chunk=None):
    g = Gap(); g.text = text; g.frag = frag; g.chunk = chunk; gaps.append(g); return len(gaps) - 1
def mf(D, A, B, C): return f"v_mfma_f32_32x32x16_bf16 {D}, {A}, {B}, {C}"
KS_FIRST = {}
def ga_steps(c, tiles, ch):
    for s in range(4):
        ks = 4*c + s
        KS_FIRST.setdefault(ks, len(gaps))
        for T in tiles:
            off = ch.base + s*GA_KS
            if T < 3: fr = (vA, off + 80*T, 256)
            elif T == 3: fr = (vT3, off, 256)
            else: fr = (vA, off + IMG + 64*(T-4), 256)
            D = ar(aT + 16*T, 16)
            add_mfma(lambda A, D=D, ks=ks: mf(D, A, vr(XN + 4*ks), D if ks else "0"), fr, ch)
if OPT['hf']:
    ga_steps(0, range(4, 8), chunks[0]); ga_steps(1, range(4, 8), chunks[1]); ga_steps(0, range(4), SUB[0]); ga_steps(1, range(4), SUB[1])
for c in range(2 if OPT['hf'] else 0, 9): ga_steps(c, range(8), chunks[c])
GA_END = len(gaps)
for c in range(9):
    ch = chunks[9 + c]
    for s in range(4):
        ks = 4*c + s
        for T in range(5):
            off = ch.base + s*GB_KS
            fr = (vA, off + 64*T, 256) if T < 4 else (vS, off + IMG, 256)
            D = ar(aG + 16*T, 16)
            add_mfma(lambda A, D=D, ks=ks: mf(D, A, vr(XN + 4*ks), D if ks else "0"), fr, ch)
GB_END = len(gaps)
TORD = [1, 2, 3, 4, 5, 6, 7, 0, 8]
steps = [(h, t) for h in range(2) for t in TORD]
def Kf(h, t): return ar(aK + 36*h + 4*t)
def Q1(h): return vr(vQ + 4*h)
def Q2(h): return vr(vQ + 8 + 4*h)
P1 = []
for u, (h, t) in enumerate(steps):
    S = vr(vSB + 16*(u % 3), 16)
    C = vr(vM0, 16) if t == 0 else (vr(vM8, 16) if t == 8 else "0")
    P1.append((add_mfma(mf(S, Kf(h, t), Q1(h), C)), add_mfma(mf(S, vr(vR + 2*t), Q2(h), S))))
P1_END = len(gaps)
vCM = vE
basecur[vVA] = 0; basecur[vVBb] = 0
P2s = []
NS = len(steps)
for u in range(NS + 2):
    ent = {}
    if u < NS:
        h, t = steps[u]
        S = vr(vSB + 16*(u % 4), 16)
        ent['qa'] = add_mfma(mf(S, Kf(h, t), Q1(h), S if t in (0, 8) else vr(vCM, 16)))
        ent['qb'] = add_mfma(mf(S, vr(vR + 2*t), Q2(h), S))
    if u >= 2:
        h, t = steps[u - 2]
        Pb = vSB + 16*((u - 2) % 4)
        O = ar(aO + 16*h, 16)
        first = (TORD.index(t) == 0)
        for s in range(2):
            fr = (vVA if h == 0 else vVBb, KVB*t + 256*s, 128)
            ent['pv%d' % s] = add_mfma(lambda A, O=O, Pb=Pb, s=s, first=first: mf(O, A, vr(Pb + 4*s), "0" if (first and s == 0) else O), fr, KVC)
    P2s.append(ent)
ATT_END = len(gaps)
vOX = vQ
vPK = 76
vS2 = vT3
def hfrag(ks, src):
    if src: return ar(aPF(ks))
    if ks < 8: return vr(vH1 + 4*ks)
    if ks < 18: return vr(vH2 + 4*(ks - 8))
    return vr(vOX + 4*(ks - 18))
UACC = [152, 184, 216, 152, 184]
UEND = {}
POS = {}
def unit_steps(u, src, k0, k1):
    for ks in range(k0, k1):
        POS[(u, src, ks)] = len(gaps)
        first = (src == 0 and ks == 0)
        if u == 4:
            ch = P2C[('s', 4, src)]; D = vr(UACC[u], 16)
            add_mfma(lambda A, D=D, ks=ks, first=first: mf(D, A, hfrag(ks, src), "0" if first else D), ('s2', ch.base + 1024*ks, 512 if ks < 20 else None), ch)
            continue
        if ks < 10: ch = P2C[('a', u, src)]; off = ch.base + 2048*ks
        elif (('b', u, src) in P2C): ch = P2C[('b', u, src)]; off = ch.base + 2048*(ks - 10)
        elif ks < 18: ch = P2C[('c', u, src)]; off = ch.base + 2048*(ks - 10)
        else: ch = P2C[('e', 0, 1)]; off = ch.base + 5120*u + 2048*(ks - 18)
        for T in range(2):
            D = vr(UACC[u] + 16*T, 16)
            add_mfma(lambda A, D=D, ks=ks, first=first: mf(D, A, hfrag(ks, src), "0" if first else D), (vP0 + T, off, 1024 if ks < 20 else None), ch)
    UEND[u] = len(gaps)
for u in range(2): unit_steps(u, 0, 0, 21)
for u in range(2): unit_steps(u, 1, 0, 18)
for u in range(2): unit_steps(u, 1, 18, 21)
for u in range(2, 5): unit_steps(u, 0, 0, 21); unit_steps(u, 1, 0, 21)
basecur['s2'] = 0
NG = len(gaps)

PD = OPT['PD']
first_use, last_use = {}, {}
for g, G in enumerate(gaps):
    if G.chunk is not None:
        first_use.setdefault(G.chunk, g); last_use[G.chunk] = g
bar_at = {}
for ch in chunks[1:] + list(SUB.values()): bar_at[first_use[ch] - PD] = ch
BKV = GB_END - 6
assert BKV not in bar_at
bar_at[BKV] = KVC
REL = Chunk(); REL.kind = 'rel'; REL.n = 99; REL.dmas = []
bar_at[GB_END + 2] = REL
bars = sorted(bar_at)
def release_gap(key): return min(b for b in bars if b > last_use[key])
for ch in chunks[2:] + [KVC]:
    nb = 0
    for o in (chunks[:ch.n] if ch is not KVC else chunks[:18]) + list(SUB.values()):
        if o.base < ch.base + ch.size and ch.base < o.base + o.size: nb = max(nb, release_gap(o))
    if ch.base + ch.size > KVL and ch.kind.startswith('p2'): nb = max(nb, release_gap(KVC))
    ch.nb = nb

fragno = 0
reads_at = {}
for g, G in enumerate(gaps):
    if G.frag is None:
        G.m = I(G.text); continue
    G.fb = aF + 4*(fragno % 8); fragno += 1
    G.m = I(G.text(ar(G.fb)))
    reads_at.setdefault(g - PD, []).append(g)
def emit_reads(g):
    G = gaps[g]; bk, off, d = G.frag
    bv = vS2 if bk == 's2' else bk
    outl = []
    if off < basecur[bk] or off + (d or 0) - basecur[bk] > 65535 - 8:
        nbase = off & ~0x7ff
        outl.append(I(f"v_add_u32 v{bv}, {(nbase - basecur[bk]) & 0xffffffff:#x}, v{bv}"))
        basecur[bk] = nbase
    G.rd = [I(f"ds_read_b64_tr_b16 {ar(G.fb, 2)}, v{bv} offset:{off - basecur[bk]}")]
    if d is not None: G.rd.append(I(f"ds_read_b64_tr_b16 {ar(G.fb + 2, 2)}, v{bv} offset:{off + d - basecur[bk]}"))
    return outl + G.rd

class Stream:
    def __init__(s, name): s.q = deque(); s.name = name
    def add(s, ins, nb=0, dl=10**9):
        ins = [x if isinstance(x, I) else I(x) for x in (ins if isinstance(ins, list) else [ins])]
        s.q.append((nb, dl, ins)); return ins[-1]
lateq = None
norm, epi, side, dmaq = Stream('norm'), Stream('epi'), Stream('side'), Stream('dma')

def norm_ops(ks):
    o = []
    T = lambda d: vE + 2*d
    for d in range(4): o += [f"v_lshlrev_b32 v{T(d)}, 16, v{XN+4*ks+d}", f"v_and_b32 v{T(d)+1}, s95, v{XN+4*ks+d}"]
    for d in range(4): o += [f"v_fma_f32 v{T(d)}, v{T(d)}, v{vRS}, v{vNB}", f"v_fma_f32 v{T(d)+1}, v{T(d)+1}, v{vRS}, v{vNB}"]
    for d in range(4): o += [f"v_cvt_pk_bf16_f32 v{XN+4*ks+d}, v{T(d)}, v{T(d)+1}"]
    return o
for ks in range(1, 36):
    for x in norm_ops(ks): norm.add(x, nb=max(0, KS_FIRST[ks] - 40), dl=KS_FIRST[ks] - 1)

def chk_ops(need, fl):
    return [f"s_add_u32 s{sA}, s{sT}, {need}", f"v_subrev_u32 v{fl}, s{sA}, v{fl}", f"v_cmp_eq_u32 s[{sCK}:{sCK+1}], s{sTH}, v{fl+1}",
            f"v_cmp_ge_u32 vcc, {15 - need}, v{fl}", f"s_and_b64 vcc, vcc, s[{sCK}:{sCK+1}]", f"s_cmp_eq_u64 vcc, -1"]
def poll_load(vaddr, lines=1): return VM(f"buffer_load_dwordx2 {vr(vFL, 2)}, v{vaddr}, {srd(SWS)}, 0 offen sc1", lines)
def poll_check(name, need, vaddr):
    chk = chk_ops(need, vFL)
    slow_paths.append(f"""L_slow_{name}:
  s_mov_b32 s{sD}, 0
L_spin_{name}:
  buffer_load_dwordx2 v[{vFL}:{vFL+1}], v{vaddr}, {srd(SWS)}, 0 offen sc1
  s_waitcnt vmcnt(0)
  """ + "\n  s_nop 1\n  ".join(chk) + f"""
  s_cbranch_scc1 L_back_{name}
  s_add_u32 s{sD}, s{sD}, 1
  s_cmp_lt_u32 s{sD}, 0x40000
  s_cbranch_scc1 L_spin_{name}
  s_branch L_back_{name}
""")
    g_ = 'gb' if name == 'kv' else 'poll'
    return TS(g_, f'poll{name}<') + [I(x) for x in chk] + [I(f"s_cbranch_scc0 L_slow_{name}"), I(f"L_back_{name}:")] + TS(g_, f'poll{name}>')
side.add([VM(f"buffer_load_dword v{vFL}, v{vFW}, {srd(SDB)}, 0 offen sc1", 1)], nb=100)
slow_paths.append(f"""L_slow_tag:
  s_mov_b32 s{sD}, 0
L_spin_tag:
  s_sleep 2
  buffer_load_dword v{vFL}, v{vFW}, {srd(SDB)}, 0 offen sc1
  s_waitcnt vmcnt(0)
  v_readfirstlane_b32 s{sT}, v{vFL}
  s_nop 1
  s_cmp_lg_u32 s{sT}, 0
  s_cbranch_scc1 L_back_tag
  s_add_u32 s{sD}, s{sD}, 1
  s_cmp_lt_u32 s{sD}, 0x40000
  s_cbranch_scc1 L_spin_tag
  s_branch L_back_tag
""")
side.add([f"v_readfirstlane_b32 s{sT}, v{vFL}", f"s_cmp_lg_u32 s{sT}, 0", "s_cbranch_scc0 L_slow_tag", "L_back_tag:",
          f"s_and_b32 s{sT}, s{sT}, -16", f"s_xor_b32 s{sTH}, s{sT}, {THI:#x}"], nb=160)
vFW, vFK, vFR, vFL2 = 4, 5, 0, 24
p2_setup = [f"v_accvgpr_read_b32 v{vDQ}, a{aST+3}"] + [f"v_add_u32 v{vDQ+n}, {n*8192}, v{vDQ}" for n in range(1, 4)]
s_setup = [f"v_accvgpr_read_b32 v{vDQ}, a{aST+4}"] + [f"v_add_u32 v{vDQ+n}, {n*(16*1152-1024)}, v{vDQ}" for n in range(1, 4)]
def p2_scalars():
    t0, t1, t2, t3 = sDM, sDM + 1, 100, 101
    o = [[f"s_and_b32 s{t0}, s{sJ}, 1", f"s_mul_i32 s{sCA}, s{t0}, 640", f"s_lshl_b32 s{t1}, s{t0}, 6", f"s_add_u32 s{sSC}, s{t1}, 512"]]
    for u in range(4):
        o.append([f"s_add_u32 s{t1}, s{sI}, {u}", f"s_and_b32 s{t1}, s{t1}, 3", f"s_lshl_b32 s{t1}, s{t1}, 7", f"s_add_u32 s{sUC+u}, s{t1}, s{sCA}"])
    for src in range(2):
        o.append([f"s_xor_b32 s{t0}, s{sJ}, {src}", f"s_and_b32 s{t1}, s{t0}, 1", f"s_mul_i32 s{t2}, s{t0}, 288", f"s_lshl_b32 s{t3}, s{t1}, 5"])
        o.append([f"s_add_u32 s{t3}, s{t3}, s{t2}", f"s_xor_b32 s{t1}, s{t1}, 1", f"s_lshl_b32 s{t1}, s{t1}, 8", f"s_add_u32 s{t2}, s{t2}, s{t1}"])
        o.append([f"s_mul_i32 s{t1}, s{sW}, 40", f"s_add_u32 s{t1}, s{t1}, s{t3}", f"s_mul_i32 s{sW2A[src]}, s{t1}, 1152", f"s_lshl_b32 s{t1}, s{sW}, 6"])
        o.append([f"s_add_u32 s{t1}, s{t1}, s{t3}", f"s_mul_i32 s{sSA[src]}, s{t1}, 1152", f"s_lshl_b32 s{t1}, s{sW}, 5", f"s_add_u32 s{t1}, s{t1}, s{t3}"])
        o.append([f"s_add_u32 s{t1}, s{t1}, 160", f"s_cmp_eq_u32 s{sW}, 3", f"s_cselect_b32 s{t1}, s{t2}, s{t1}", f"s_mul_i32 s{sW2B[src]}, s{t1}, 1152"])
        o.append([f"s_and_b32 s{t1}, s{sW}, 1", f"s_lshl_b32 s{t1}, s{t1}, 4", f"s_add_u32 s{t1}, s{t1}, s{t2}", f"s_mul_i32 s{sSS[src]}, s{t1}, 1152"])
        o.append([f"s_mul_i32 s{t0}, s{t0}, 36", f"s_lshl_b32 s{t1}, s{sW}, 3", f"s_lshr_b32 s{t2}, s{sW}, 1", f"s_lshl_b32 s{t2}, s{t2}, 2"])
        o.append([f"s_add_u32 s{t1}, s{t1}, s{t2}", f"s_add_u32 s{t1}, s{t1}, s{t0}", f"s_mul_i32 s{sWO5[src]}, s{t1}, 1152", f"s_add_u32 s{t1}, s{t0}, 16"])
        o.append([f"s_mul_i32 s{sWO6[src]}, s{t1}, 1152", f"s_cmp_eq_u32 s{sW}, 1", f"s_cselect_b32 s{t1}, 20, 16", f"s_cmp_eq_u32 s{sW}, 0",
                  f"s_cselect_b32 s{t1}, 0, s{t1}"])
        o.append([f"s_add_u32 s{t1}, s{t1}, s{t0}", f"s_mul_i32 s{sSE[src]}, s{t1}, 1152"])
    return o

lateq = Stream('late')
import re as _re
def _fix(t):
    t = t.text if isinstance(t, I) else t
    for a_, b_ in ((vY0, vR + 8), (vY1, vR + 9), (vY2, vR + 10)): t = _re.sub(rf"\bv{a_}\b", f"v{b_}", t)
    for a_, b_ in ((sA, 40), (sB, 41), (sC, 42), (sD, 43)): t = _re.sub(rf"\bs{a_}\b", f"s{b_}", t)
    return t
skip = 0
lt = []
for x in late:
    xs = x if isinstance(x, list) else [x]
    lt.append([_fix(y) for y in xs])
out_ = []
k = 0
while k < len(lt):
    it = lt[k]
    if it[0].startswith(f"v_cmp_eq_u32 vcc, 0, v{vL}"): k += 4; continue
    out_.append(it); k += 1
seln = next((n for n, it in enumerate(out_) if f"a{aSEL+3}," in it[0]), -1)
for n in range(seln + 1):
    out_[n] = [_re.sub(r"\bv4\b", f"v{vR+13}", _re.sub(r"\bv3\b", f"v{vR+12}", _re.sub(r"\bv2\b", f"v{vR+11}", t))) for t in out_[n]]
n = 0
while n < len(out_):
    it = out_[n]
    if len(it) == 1 and it[0].startswith("v_cmp"):
        m = n
        while "v_cndmask" not in out_[m][0]: m += 1
        it = sum(out_[n:m + 1], []); n = m
    lateq.add(it, nb=0, dl=GA_END - 1); n += 1
e0 = GA_END + 2
CSC = math.log2(math.e) / math.sqrt(18.0)
def rd_cvt(acc, n, dst, scale=None, relu=False, nb=e0, tb=vE, dl=10**9):
    for k0 in range(0, n, 8):
        m = min(8, n - k0)
        for k in range(m): epi.add(f"v_accvgpr_read_b32 v{tb+k}, a{acc+k0+k}", nb=nb, dl=dl)
        if scale:
            for k in range(m): epi.add(f"v_mul_f32 v{tb+k}, {scale}, v{tb+k}", nb=nb, dl=dl)
        for k in range(0, m, 2): epi.add(f"v_cvt_pk_bf16_f32 v{dst+(k0+k)//2}, v{tb+k}, v{tb+k+1}", nb=nb, dl=dl)
        if relu:
            for k in range(0, m, 2): epi.add(f"v_pk_max_i16 v{dst+(k0+k)//2}, v{dst+(k0+k)//2}, 0", nb=nb, dl=dl)
LO = f"s[{sLO}:{sLO+1}]"
kP, x8, vP_ = vH1, vH1 + 8, vH1 + 16
st = []
URGENT = set()
def KVST(text, lines):
    x = VM(text, lines); epi.add(x, nb=e0); st.append(x); URGENT.add(id(x))
rd_cvt(aT + 16, 16, kP)
KVST(f"buffer_store_dwordx4 {vr(kP)}, v{vL16}, {srd(SWS)}, s{sKVW} offen sc1", 8)
rd_cvt(aT + 48 + 4, 8, x8)
epi.add(f"v_cndmask_b32_e64 v{x8+6}, 0, v{kP+4}, {LO}", nb=e0); epi.add(f"v_cndmask_b32_e64 v{x8+7}, 0, v{x8+1}, {LO}", nb=e0)
epi.add(f"v_cndmask_b32_e64 v{kP+4}, v{kP+4}, v{x8}, {LO}", nb=e0)
epi.add(f"v_lshrrev_b32 v{vE+8}, 1, v{vL16}", nb=e0)
KVST(f"buffer_store_dwordx4 {vr(kP+4)}, v{vL16}, {srd(SWS)}, s{sKVW} offen offset:1024 sc1", 8)
epi.add(f"v_mov_b32 v{x8+4}, 0x3f803f80", nb=e0); epi.add(f"v_mov_b32 v{x8+5}, 0x3f803f80", nb=e0)
rd_cvt(aT + 32, 8, vP_)
KVST(f"buffer_store_dwordx2 {vr(x8+6, 2)}, v{vE+8}, {srd(SWS)}, s{sKVW} offen offset:2048 sc1", 4)
rd_cvt(aT + 40, 8, vP_ + 4)
KVST(f"buffer_store_dwordx4 {vr(vP_)}, v{vL16}, {srd(SWS)}, s{sKVW} offen offset:2560 sc1", 8)
rd_cvt(aT, 8, vQ, scale=f32(CSC))
KVST(f"buffer_store_dwordx4 {vr(vP_+4)}, v{vL16}, {srd(SWS)}, s{sKVW} offen offset:3584 sc1", 8)
rd_cvt(aT + 8, 8, vQ + 4, scale=f32(CSC))
KVST(f"buffer_store_dwordx4 {vr(x8+2)}, v{vVSC}, {srd(SWS)}, s{sKVW} offen offset:3584 sc1", 4)
rd_cvt(aT + 48, 4, vQ + 14, scale=f32(CSC))
epi.add(f"v_mov_b32 v{vQ+13}, 0x3f80", nb=e0)
epi.add(f"v_cndmask_b32_e64 v{vQ+8}, v{vQ+13}, v{vQ+4}, {LO}", nb=e0)
epi.add(f"v_cndmask_b32_e64 v{vQ+4}, v{vQ+4}, v{vQ+14}, {LO}", nb=e0)
epi.add(f"v_cndmask_b32_e64 v{vQ+13}, v{vQ+13}, v{vQ+15}, {LO}", nb=e0)
for k in (9, 10, 11, 12, 14, 15): epi.add(f"v_mov_b32 v{vQ+k}, 0", nb=e0)
hst = {}
hq = Stream('hq')
sHT = 51
def hx_store(k, reg):
    o = [I(f"s_add_u32 s{sHT}, s{sHXW}, {1024*(k & ~3)}")] if (k % 4 == 0 or k == 18) else []
    hst[k] = VM(f"buffer_store_dwordx4 {vr(reg)}, v{vL16}, {srd(SWS)}, s{sHT} offen offset:{1024*(k & 3)} sc1", 8)
    return o + [hst[k]]
for T in range(4):
    g_ = GA_END + 56 + 14*T
    rd_cvt(aT + 64 + 16*T, 16, vH1 + 8*T, relu=True, dl=g_)
    hq.add(hx_store(2*T, vH1 + 8*T), nb=g_, dl=g_ + 6); hq.add(hx_store(2*T + 1, vH1 + 8*T + 4), nb=g_ + 6, dl=g_ + 12)

def publish(count, waits):
    g_ = 'gb' if count == 1 else 'pub'
    return TS(g_, f'pub{count}<') + [WAITVM(*waits)] + TS(g_, f'pub{count}>') + [I(f"s_add_u32 s{sB}, s{sT}, {count}"), I(f"v_mov_b32 v{vFL2}, s{sB}"),
            VM(f"buffer_store_dwordx2 {vr(vFL2, 2)}, v{vFW}, {srd(SWS)}, s{sFW} offen sc1", 1)]
side.add(f"v_mov_b32 v{vFL2+1}, s{sTH}", nb=GA_END + 1)
poi = []
pq = Stream('pq')
if OPT['dp']:
    vPO = vR + 4
    pq.add([f"v_mov_b32 v{vPO+k}, -1" for k in range(4)] + [f"v_accvgpr_read_b32 v{vPO+4}, a{aST+1}"], nb=OPT['pog'], dl=GA_END - 2)
    for u in range(OPT['dpu'], 5):
        for n in range(4 if u < 4 else 2):
            x = VM(f"buffer_store_dwordx4 {vr(vPO)}, v{vPO+4}, {srd(SWS)}, s{sRS} offen offset:{2048*(n&1) + 256*(n>>1)} sc1", 8); poi.append(x)
            pq.add(([I(f"s_add_u32 s{sRS}, s{sPB}, {u*PU}")] if n == 0 else []) + [x], nb=OPT['pog'] + OPT['pod']*len(poi), dl=GA_END - 2)
side.add(publish(1, st + poi), nb=GA_END + OPT['kvpub'])
side.add(poll_load(vFK, 12), nb=GA_END + OPT['kvpoll'])
kvchk = side.add(poll_check('kv', 1, vFK), nb=GA_END + OPT['kvchk'], dl=GA_END + OPT['kvchk'])
KVC.nb = max(KVC.nb, GA_END + OPT['kvchk'])
vKL, vKXL = vVS, vVSC
side.add([f"v_add_u32 v{vKL}, s{sM0K}, v{vL16}", f"v_lshrrev_b32 v{vKXL}, 1, v{vL16}", f"v_add_u32 v{vKXL}, s{sM0K}, v{vKXL}"], nb=GA_END + OPT['kvchk'], dl=BKV)
rld = []
def kread(h, t): return I(f"ds_read_b128 {Kf(h, t)}, v{vKL} offset:{KVB*t + 1024*h}")
for k, t in enumerate(TORD):
    x = I(f"ds_read_b64 {vr(vR + 2*t, 2)}, v{vKXL} offset:{KVB*t + 2048}"); rld.append(x)
    gaps[BKV + k // 2].post += [x]
for k, (h, t) in enumerate(steps):
    gaps[min(BKV + 2 + k, P1[k][0] - 3) if k >= 4 else BKV + k].post += [kread(h, t)]
blk = [f"  s_cmp_ge_u32 s{sI}, 2", "  s_cbranch_scc1 L_nobias", f"  s_lshl_b32 s{sA}, s{sI}, 2", f"  s_add_u32 s{sA}, s{sA}, s{sW}",
       "  s_mov_b32 exec_lo, 0"]
for t in range(8):
    blk += [f"  s_cmp_ge_u32 s{sA}, {8 - t}", f"  s_cbranch_scc1 L_bias_done", f"  v_mov_b32 v{vR+2*t}, 0xf149", f"  v_mov_b32 v{vR+2*t+1}, 0xf149"]
blk += ["L_bias_done:", "  s_mov_b32 exec_lo, -1", "  s_nop 1", "L_nobias:"]
gaps[P1[0][1]].pre += [WAITLG(*rld), RAW("\n".join(blk))]

epi.add([f"v_and_b32 v{vTT}, 31, v{vL}", f"v_lshrrev_b32 v{vTT+1}, 5, v{vL}", f"v_lshlrev_b32 v{vTT+1}, 2, v{vTT+1}",
         f"v_sub_u32 v{vTT}, v{vTT}, v{vTT+1}"], nb=GB_END)
epi.add([f"v_cvt_f32_i32 v{vTT}, v{vTT}", f"v_add_f32 v{vTT}, 0.5, v{vTT}", f"v_mul_f32 v{vTT+1}, {f32(1e30)}, v{vTT}"], nb=GB_END)
for k in range(16):
    cc = 8*(k >> 2) + (k & 3)
    epi.add(f"v_sub_f32 v{vM8+k}, {f32(cc*1e30)}, v{vTT+1}", nb=GB_END, dl=P1[7][0] - 1)
    epi.add(f"v_min_f32 v{vM0+k}, 0, v{vM8+k}", nb=GB_END, dl=P1[7][0] - 1)
    epi.add(f"v_min_f32_e64 v{vM8+k}, 0, -v{vM8+k}", nb=GB_END, dl=P1[7][0] - 1)
for T in range(5):
    g_ = GB_END + 16 + 5*T
    rd_cvt(aG + 16*T, 16, vH2 + 8*T, relu=True, nb=GB_END + 2, tb=vTT, dl=g_)
    hq.add(hx_store(8 + 2*T, vH2 + 8*T), nb=g_, dl=g_ + 6); hq.add(hx_store(9 + 2*T, vH2 + 8*T + 4), nb=g_ + 2, dl=g_ + 8)

for g in range(GA_END, GA_END + 24): gaps[g].budget = OPT['kvbud']
if OPT['hf']:
    for g in range(28): gaps[g].budget = 6
vMX = 16
def max_ops(u, half):
    h, t = steps[u]; S = vSB + 16*(u % 3) + 8*half
    o = []
    for k in range(4):
        acc = vMX + 2*h + (k & 1)
        if TORD.index(t) == 0 and half == 0 and k < 2: o.append(I(f"v_max_f32 v{acc}, v{S+2*k}, v{S+2*k+1}"))
        else: o.append(I(f"v_max3_f32 v{acc}, v{acc}, v{S+2*k}, v{S+2*k+1}"))
    return o
def fin_max(h):
    m = vMX + 2*h
    return [I(f"v_max_f32 v{m}, v{m}, v{m+1}"), I(f"v_mov_b32 v{m+1}, v{m}"), I(f"v_permlane32_swap_b32 v{m}, v{m+1}"),
            I(f"v_max_f32 v{m}, v{m}, v{m+1}"), I(f"v_sub_f32 v{m}, 0, v{m}")]
def cm_ops(h): return [I(f"v_mov_b32 v{vCM+k}, v{vMX+2*h}") for k in range(16)]
for u in range(2, NS):
    gaps[P1[u][0]].post += max_ops(u - 2, 0); gaps[P1[u][1]].post += max_ops(u - 2, 1)
gaps[P1[11][0]].post += fin_max(0)
for k in range(4): gaps[P1[12 + k][0]].post += cm_ops(0)[4*k:4*k+4]
for u in range(2):
    gaps[P2s[u]['qa']].post += max_ops(NS - 2 + u, 0); gaps[P2s[u]['qb']].post += max_ops(NS - 2 + u, 1)
gaps[P2s[2]['pv1']].post += fin_max(1)
for u in range(1, NS + 1):
    S = vSB + 16*((u - 1) % 4)
    ex = [I(f"v_exp_f32 v{S+k}, v{S+k}") for k in range(16)]
    cv = [I(f"v_cvt_pk_bf16_f32 v{S+k}, v{S+2*k}, v{S+2*k+1}") for k in range(8)]
    e = P2s[u]
    if u == 1:
        gaps[e['qa']].post += ex[:8]; gaps[e['qb']].post += ex[8:] + cv
    elif u < NS:
        gaps[e['qa']].post += ex[:5]; gaps[e['qb']].post += ex[5:10]
        gaps[e['pv0']].post += ex[10:14] + cv[:2]; gaps[e['pv1']].post += ex[14:] + cv[2:]
    else:
        gaps[e['pv0']].post += ex[:10]; gaps[e['pv1']].post += ex[10:] + cv
    if u + 1 < NS and steps[u + 1][1] in (0, 8):
        h, t = steps[u + 1]; Sn = vSB + 16*((u + 1) % 4); M = vM0 if t == 0 else vM8
        gaps[e['pv1']].post += [I(f"v_add_f32 v{Sn+k}, v{M+k}, v{vMX+2*h}") for k in range(16)]
gaps[P2s[7]['pv0']].post += cm_ops(1)
for g in range(GB_END, ATT_END): gaps[g].budget = OPT['abud'] if g < P1_END else OPT['a2bud']
onq = Stream('onorm')
def onorm(h, nb, dl, tb):
    O = aO + 16*h; rc = 22
    A = lambda t: onq.add(t, nb=nb, dl=dl)
    A(f"v_accvgpr_read_b32 v{rc}, a{O+12}")
    for k in range(8): A(f"v_accvgpr_read_b32 v{tb+k}, a{O+k}")
    A(f"v_rcp_f32 v{rc}, v{rc}")
    A(f"v_accvgpr_read_b32 v{rc+1}, a{O+8+2*h}")
    for k in range(8): A(f"v_mul_f32 v{tb+k}, v{rc}, v{tb+k}")
    for k in range(4): A(f"v_cvt_pk_bf16_f32 v{vOX+4*h+k}, v{tb+2*k}, v{tb+2*k+1}")
    A(f"v_accvgpr_read_b32 v{tb}, a{O+9+2*h}")
    A(f"v_mul_f32 v{rc+1}, v{rc}, v{rc+1}"); A(f"v_mul_f32 v{tb}, v{rc}, v{tb}")
    A(f"v_cvt_pk_bf16_f32 v{tb}, v{rc+1}, v{tb}")
    A(f"v_cndmask_b32_e64 v{vOX+8+h}, 0, v{tb}, {LO}")
P0 = ATT_END
onorm(0, P2s[11]['pv0'], P2s[16]['qa'], vTT)
hq.add(hx_store(18, vOX), nb=P2s[16]['qa'], dl=P0)
onorm(1, P0 + 2, P0 + 18, vTT)
for k in (19, 20): hq.add(hx_store(k, vOX + 4*(k - 18)), nb=P0 + 18, dl=P0 + 30)
ev = []
PLD = {}
def ploads(ks, g0, d):
    for n, k in enumerate(ks):
        o = [I(f"s_add_u32 s{sRS+1}, s{sHXR}, {1024*(k & ~3)}")] if (k % 4 == 0 or k == 18) else []
        x = VM(f"buffer_load_dwordx4 {ar(aPF(k))}, v{vL16}, {srd(SWS)}, s{sRS+1} offen offset:{1024*(k & 3)} sc1", 8)
        PLD[id(x)] = POS[(0, 1, k)] - 20
        ev.append((g0 + d*n, [o + [x]]))
ev.append((GA_END + 140, [[I(f"s_xor_b32 s{sA}, s{sFW}, 8"), I(f"v_mov_b32 v{vFK}, s{sA}")], publish(2, [hst[k] for k in range(8)])]))
g1 = GB_END + OPT['h1c']
ev.append((g1 - 16, [[poll_load(vFK)]])); ev.append((g1, [poll_check('h1', 2, vFK)])); ploads(range(8), g1 + 1, OPT['h1d'])
ev.append((P1_END + OPT['p3'], [publish(3, [hst[k] for k in range(8, 18)])]))
g2 = P0 + OPT['h2c']
ev.append((g2 - 16, [[poll_load(vFK)]])); ev.append((g2, [poll_check('h2', 3, vFK)])); ploads(range(8, 18), g2 + 1, OPT['h2d'])
ev.append((P0 + OPT['p4'], [publish(4, [hst[k] for k in (18, 19, 20)])]))
g3_ = P0 + OPT['oc']
ev.append((g3_ - 24, [[poll_load(vFK)]])); ev.append((g3_, [poll_check('o', 4, vFK)])); ploads((18, 19, 20), g3_ + 1, 3)
vPW, vPR, vOUT, vOUTS = 16, 17, 18, 19
RXT = [96, 104, 248, 200, 208]
ev.append((P0 + 132, [[I(f"v_accvgpr_read_b32 v{vPW}, a{aST}"), I(f"v_accvgpr_read_b32 v{vPR}, a{aST+1}"), I(f"v_accvgpr_read_b32 v{vOUT}, a{aST+2}")],
                      [I(f"v_accvgpr_read_b32 v{vS2}, a{aST+5}"), I(f"v_lshlrev_b32 v{vOUTS}, 26, v{vL}"), I(f"v_and_b32 v{vOUTS}, {OOB:#x}, v{vOUTS}")],
                      [I(f"v_or_b32 v{vOUTS}, v{vOUTS}, v{vOUT}")]]))
def p2_epi(u):
    A = UACC[u]
    o = [[I(f"s_add_u32 s{sRS}, s{sPB}, {u*PU}")]]
    sts = []
    for q4 in range(4 if u < 4 else 2):
        for k in range(4): o.append([I(f"v_cvt_pk_bf16_f32 v{vPK+4*q4+k}, v{A+8*q4+2*k}, v{A+8*q4+2*k+1}")])
        x = VM(f"buffer_store_dwordx4 {vr(vPK+4*q4)}, v{vPW}, {srd(SWS)}, s{sRS} offen offset:{128*q4} sc1", 8)
        o.append([x]); sts.append(x)
    return o, sts
DPR = {2: 152, 3: 216, 4: 232}
def rdst(u, n): return vr(DPR[u] + 4*n) if (OPT['dp'] and u >= OPT['dpu']) else ar(16*u + 4*n)
def red_loads(u):
    o = [[I(f"s_add_u32 s{sRS+1}, s{sPB}, {u*PU}")]]
    for n in range(4 if u < 4 else 2):
        o.append([VM(f"buffer_load_dwordx4 {rdst(u, n)}, v{vPR}, {srd(SWS)}, s{sRS+1} offen offset:{2048*(n&1) + 256*(n>>1)} sc1", 8)])
    return o
def col(u): return f"s{sUC+u}" if u < 4 else f"s{sSC}"
def x_load(u): return [VM(f"buffer_load_dwordx2 {vr(RXT[u], 2)}, v{vOUT if u < 4 else vOUTS}, {srd(SX)}, {col(u)} offen", 4)]
def red_comp(u):
    x = RXT[u]; C = x + 4
    o = [[I(f"v_lshlrev_b32 v{C}, 16, v{x}")], [I(f"v_and_b32 v{C+1}, 0xffff0000, v{x}")],
         [I(f"v_lshlrev_b32 v{C+2}, 16, v{x+1}")], [I(f"v_and_b32 v{C+3}, 0xffff0000, v{x+1}")]]
    mm = [[I(f"v_mfma_f32_16x16x32_bf16 {vr(C)}, {ar(aSEL if n < 2 else aSEL2)}, {rdst(u, n)}, {vr(C)}")] for n in range(4 if u < 4 else 2)]
    fin = [[I(f"v_cvt_pk_bf16_f32 v{x+2}, v{C}, v{C+1}")], [I(f"v_cvt_pk_bf16_f32 v{x+3}, v{C+2}, v{C+3}")],
           [VM(f"buffer_store_dwordx2 {vr(x+2, 2)}, v{vOUT if u < 4 else vOUTS}, {srd(SOUT)}, {col(u)} offen sc1", 4)]]
    return o, mm, fin
pst = {}
red = Stream('red')
for u in range(4):
    o, pst[u] = p2_epi(u)
    for x in o: epi.add(x, nb=UEND[u] + 3, dl=min(UEND[u] + (60 if u == 1 else 36), NG - 1))
ev.append((UEND[1] + OPT['p6'], [publish(6, pst[0] + pst[1])]))
if not (OPT['dp'] and OPT['dpu'] == 2): ev.append((UEND[2] + OPT['p7'], [publish(7, pst[2])]))
for u in range(5): ev.append((UEND[1] + 64 + 4*u, [x_load(u)]))
ev.append((NG - OPT['rbp'], [[poll_load(vFR)]]))
vDP = 216
if OPT['dp']:
    ev.append((P0 + 150, [[I(f"s_lshl_b32 s{sA}, s{sI}, 9"), I(f"v_lshlrev_b32 v20, 3, v{vL}"), I(f"v_add_u32 v20, s{sA}, v20")], [poll_load(20, 4)]]))
    ev.append((P0 + 190, [poll_check('all', 1, 20)]))
for gp, items in sorted(ev, key=lambda x: x[0]):
    for it in items: side.add(it, nb=gp, dl=min([PLD.get(id(x), 10**9) for x in it]))
pf = Stream('pf')
if OPT['stch']:
    TCH = [[f"s_cmp_eq_u32 s{sW}, 1", f"s_cselect_b32 s3, 0, {OOB:#x}", f"v_min_u32 v20, 35, v{vL}", f"v_mul_u32_u24 v20, 1152, v20"],
           [f"v_or_b32 v20, s3, v20", f"s_and_b32 s3, s2, 3", f"s_mul_i32 s3, s3, {1152*1152}", f"s_lshr_b32 s43, s2, 3"],
           [f"s_mul_i32 s43, s43, {36*1152}", f"s_add_u32 s3, s3, s43", VM(f"buffer_load_dword v20, v20, {srd(S2)}, s3 offen offset:512", 9)]]
for g_ in [int(x) for x in OPT['cpf'].split(',') if x]:
    pf.add([f"s_lshr_b32 s3, s2, 3", f"s_lshl_b32 s3, s3, 2", f"s_add_u32 s3, s3, s{sW}", f"s_lshl_b32 s3, s3, 9"], nb=g_)
    pf.add([f"v_accvgpr_read_b32 v{vFL}, a{aST+6}", VM(f"buffer_load_dword v{vFL}, v{vFL}, {srd(SCODE)}, s3 offen", 1)], nb=g_)

if OPT['stch']:
    q_ = list(pf.q); pf.q.clear()
    for it in q_[:2]: pf.q.append(it)
    for it in TCH: pf.add(it, nb=P1_END + 40)
    for it in q_[2:]: pf.q.append(it)
s8 = stats(8)
c0n = len(chunks[0].items)
def c0_left(): return any(any(x is d for d in chunks[0].dmas for x in it) for it in pend)
k8 = 0
while c0_left():
    E(pend.popleft()); E(s8[k8:k8+4]); k8 += 4
E(s8[k8:])
for k in range(4): E(f"v_add_f32 v{vST+k}, v{vST+k}, v{vST+4+k}")
E(f"v_add_f32 v{vST}, v{vST}, v{vST+1}"); E(f"v_add_f32 v{vST+2}, v{vST+2}, v{vST+3}")
E(f"v_mov_b32 v{vST+1}, v{vST}"); E(f"v_mov_b32 v{vST+3}, v{vST+2}")
if pend: E(pend.popleft())
E(f"v_permlane32_swap_b32 v{vST}, v{vST+1}"); E(f"v_permlane32_swap_b32 v{vST+2}, v{vST+3}")
E(f"v_add_f32 v{vST}, v{vST}, v{vST+1}"); E(f"v_add_f32 v{vST+2}, v{vST+2}, v{vST+3}")
E(f"v_mul_f32 v{vST}, {f32(1/576)}, v{vST}")
E(f"v_mul_f32 v{vST+2}, {f32(1/576)}, v{vST+2}")
E(f"v_fma_f32 v{vST+2}, -v{vST}, v{vST}, v{vST+2}")
E(f"v_max_f32 v{vST+2}, 0, v{vST+2}")
E(f"v_add_f32 v{vST+2}, {f32(1e-5)}, v{vST+2}")
E(f"v_rsq_f32 v{vRS}, v{vST+2}")
if pend: E(pend.popleft())
E(f"v_mul_f32_e64 v{vNB}, -v{vST}, v{vRS}")
n0 = norm_ops(0)
E(n0[:8])
E(TS('pro', 'c0<')); E(WAITVM(*chunks[0].dmas)); E(TS('pro', 'c0w')); E("s_barrier"); E(TS('pro', 'b0'))
for pos_ in sorted(k for k in reads_at if k < 0):
    for g in reads_at[pos_]: E(emit_reads(g))
E(n0[8:])
STAMP("ga0")

for it in pend: dmaq.add(it, nb=0, dl=0)
for c_ in list(SUB)[OPT['qpro']:]:
    for it in SUB[c_].items: dmaq.add(it, nb=0, dl=0)
chunks[1].nb = 0
order = chunks[1:18] + [KVC] + chunks[18:]
for ch in order:
    if ch.n == 18 and ch is not KVC:
        for x_ in p2_scalars(): dmaq.add(x_, nb=0)
        dmaq.add(p2_setup, nb=0)
    if ch.kind == 'p2s' and ch.src == 0: dmaq.add(s_setup, nb=0)
    if ch.n >= 18 and ch is not KVC: ch.nb = max(ch.nb, GB_END + OPT['dmaat'])
    for k_, it in enumerate(ch.items): dmaq.add(it, nb=(ch.nb if not (ch is KVC and k_ < ch.segstart[0]) else GA_END + OPT['kvchk']), dl=(BKV if ch is KVC else min(first_use[o_] for o_ in order[order.index(ch):] if o_ is not KVC) - PD))
MT = [int(x) for x in OPT['mt'].split(',') if x]
if MT:
    q_ = list(dmaq.q); dmaq.q.clear()
    for it in q_:
        dmaq.q.append(it)
        for k_, n_ in enumerate(MT):
            if it[2][0] is chunks[n_].dmas[-1]:
                vt = vR + 10
                dmaq.add([f"s_cmp_eq_u32 s{sW}, {k_ % 4}", f"s_cselect_b32 s43, 0, {OOB:#x}", f"v_min_u32 v{vt}, {162 // len(MT) - 1}, v{vL}", f"v_lshlrev_b32 v{vt}, 7, v{vt}"], nb=0, dl=0)
                dmaq.add([f"v_or_b32 v{vt}, s43, v{vt}", f"s_mul_i32 s43, s2, {162*128}", f"s_add_u32 s43, s43, {k_ * (162 // len(MT)) * 128}",
                          VM(f"buffer_load_dword v{vt+1}, v{vt}, {srd(S2)}, s43 offen", 16)], nb=0, dl=0)
marks = {GA_END: 'gb0', GB_END: 'att0', P1_END: 'att2', ATT_END: 'p2_0'}
if 'p2' in OPT['ts'].split(','):
    for k_ in range(1, 9): marks[ATT_END + 42*k_] = f'q{k_}'
fr_list = [g for g in range(NG) if gaps[g].frag is not None]
fr_idx = {g: k for k, g in enumerate(fr_list)}
backlog = 200.0
last_dma = [-99]
issued = {id(x) for x in prog}
lastg = {}
def emit_items(ins, g):
    global backlog
    c = 0
    for x in ins:
        E(x); c += x.cost; issued.add(id(x))
        if id(x) in LINES:
            backlog += LINES[id(x)] * 4 * OPT['lc']; lastg[id(x)] = g
    return c
for g, G in enumerate(gaps):
    if g in marks: STAMP(marks[g])
    if g == GA_END - 4:
        for _ in range(OPT['pad']): E('s_nop 0')
    for s_ in (norm, lateq, pq, epi, onq, hq, side, red, pf):
        lastdl = max([k for k, (nb, dl, _) in enumerate(s_.q) if dl <= g] + [-1])
        for _ in range(lastdl + 1):
            nb, dl, ins = s_.q.popleft()
            assert nb <= g, (s_.name, nb, dl, g, ins)
            emit_items(ins, g)
    if g in bar_at:
        key = bar_at[g]
        grp_ = 'b' + key.kind[:2]; nm_ = 'KV' if key is KVC else str(key.n)
        while not all(id(d) in issued for d in key.dmas):
            print("late DMA", nm_, g, file=sys.stderr)
            nb, dl, ins = dmaq.q.popleft(); assert nb <= g; emit_items(ins, g)
        E(TS(grp_, f'B{nm_}<')); E(WAITVM(*key.dmas)); E(TS(grp_, f'B{nm_}|')); E("s_barrier")
        if grp_ != 'bp2': E(TS(grp_, f'B{nm_}>'))
    E(G.pre)
    if G.frag is not None:
        k = fr_idx[g]
        wq = OPT['wq']
        if k % wq == 0:
            kk = k + wq - 1
            while kk > k and not (kk < len(fr_list) and gaps[fr_list[kk]].rd and fr_list[kk] - g <= wq): kk -= 1
            if kk > k: E(WAITLG(*gaps[fr_list[kk]].rd))
    E(G.m)
    cost = 0
    for gg in reads_at.get(g, []):
        for x in emit_reads(gg):
            E(x)
            if x.kind != 'dsr': cost += 1
    if not reads_at.get(g): cost -= 2
    for x in G.post: E(x); cost += x.cost
    fixed = cost
    vm_done = False
    urgent_dma = dmaq.q and dmaq.q[0][1] - g < OPT['dmarg']
    for s_ in ((dmaq, norm, pf, side, hq, pq, red, onq, epi, lateq) if (urgent_dma or g < GB_END) else (side, hq, pf, red, onq, epi, dmaq)):
        n_ = 0
        while s_.q and s_.q[0][0] <= g:
            ins = s_.q[0][2]
            isvm = any(id(x) in LINES for x in ins)
            if isvm and s_ is dmaq and g >= GA_END - 40 and g - last_dma[0] < (OPT['attp'] if GB_END <= g < ATT_END else OPT['dsp']) and s_.q[0][1] - g > OPT['dmarg']: break
            if isvm and any(x.kind == 'vst' and LINES[id(x)] >= 4 and id(x) not in URGENT for x in ins) and backlog > OPT['stb']: break
            if isvm and (vm_done or backlog > OPT['tcp']) and not any(id(x) in URGENT for x in ins): break
            lim = max(G.budget, fixed + 1) if s_ in (dmaq, side, hq, pf) else G.budget
            if P1_END <= g < ATT_END and s_ is onq: lim = fixed + 2
            if cost >= lim: break
            s_.q.popleft(); cost += emit_items(ins, g); n_ += 1
            if isvm: vm_done = True
            if isvm and s_ is dmaq: last_dma[0] = g
            if s_ is dmaq: break
    backlog = max(0.0, backlog - max(33.0, 8 + 4.4 * (cost + 2.5)))
assert not dmaq.q and not norm.q and not epi.q and not onq.q, (len(dmaq.q), len(norm.q), len(epi.q))
for _, _, ins in side.q: E(ins)
STAMP('tail0')
def comp(p):
    o, mm, fin = red_comp(p); E(o + mm + fin)
assert not hq.q and not pf.q
o, pst[4] = p2_epi(4)
if OPT['t2'] and not OPT['dp']: E(o[:6]); E(publish(8, pst[3])); E(o[6:])
else: E(o)
E(poll_check('rb', 7 if (OPT['dpu'] == 3 or not OPT['dp']) else 6, vFR))
if not OPT['dp'] and not OPT['t2']:
    E(red_loads(0)); E(red_loads(1))
    E(publish(9, pst[4]))
    STAMP('pub9')
    E(red_loads(2))
    E(poll_load(vFR))
    comp(0); comp(1)
    E(poll_check('r9', 9, vFR))
    STAMP('got9')
    E(red_loads(3)); E(red_loads(4))
    for u in range(2, 5): comp(u)
elif not OPT['dp']:
    E(red_loads(0)); E(red_loads(1))
    E(publish(9, pst[4]))
    STAMP('pub9')
    E(poll_load(vFR))
    E(red_loads(2))
    comp(0)
    E(poll_check('r8', 8, vFR))
    E(red_loads(3))
    E(poll_load(vFR))
    comp(1); comp(2)
    E(poll_check('r9', 9, vFR))
    STAMP('got9')
    E(red_loads(4))
    comp(3); comp(4)
else:
    for u in range(OPT['dpu']): E(red_loads(u))
    E(f"s_mov_b32 s{sC}, 0")
    comp(0)
    STAMP('c0')
    E("L_dp:")
    regs_ = []
    for u in range(OPT['dpu'], 5):
        E(red_loads(u)); regs_ += list(range(DPR[u], DPR[u] + (16 if u < 4 else 8)))
    E(f"v_max_u32 v{vFL}, v{regs_[0]}, v{regs_[1]}")
    for k in range(2, len(regs_), 2): E(f"v_max3_u32 v{vFL}, v{vFL}, v{regs_[k]}, v{regs_[k+1]}")
    E(f"s_add_u32 s{sC}, s{sC}, 1")
    E(f"v_cmp_eq_u32 vcc, -1, v{vFL}")
    E(f"s_cmp_gt_u32 s{sC}, 0x10000")
    E("s_cbranch_scc1 L_dp_done")
    E("s_nop 2")
    E("s_cbranch_vccnz L_dp")
    E("L_dp_done:")
    STAMP('got')
    for u in (1, 2, 3, 4): comp(u)
if OPT['timing']:
    E("s_waitcnt vmcnt(0)"); STAMP("end")
    E(f"s_lshl_b32 s{sA}, s2, 10"); E(f"s_lshl_b32 s{sB}, s{sW}, 8"); E(f"s_add_u32 s{sA}, s{sA}, s{sB}"); E(f"s_add_u32 s{sA}, s{sA}, {DBGW}")
    E(RAW("  s_memrealtime s[98:99]\n  s_waitcnt lgkmcnt(0)\n  v_writelane_b32 v11, s98, 63\n  s_nop 4"))
    E(f"v_lshlrev_b32 v{vT0}, 2, v{vL}")
    E(f"buffer_store_dword v11, v{vT0}, {srd(SWS)}, s{sA} offen")
E("L_end:")
E("s_endpgm")

def hoist_vmem(prog):
    out_ = []
    n_ = 0
    for x in prog:
        if x.kind in ('dma', 'vld', 'vst'):
            k = len(out_)
            while k > 0:
                p = out_[k - 1]
                if p.kind == 'mfma32': break
                if p.kind not in ('dsr', 'valu', 'trans', 'salu') or (p.W & (x.R | x.W)) or (p.R & x.W) or len(out_) - k > 24: k = -1; break
                k -= 1
            if k > 0 and k < len(out_):
                out_.insert(k, x); n_ += 1; continue
        out_.append(x)
    print("hoisted", n_, file=sys.stderr)
    return out_
if OPT['hoist']: prog = hoist_vmem(prog)
seen = set()
for x in prog:
    if x.kind in ('pvm', 'plg'):
        for t in x.target: assert id(t) in seen, ("wait on unissued op", t)
    seen.add(id(x))
wr = set(); pos_of = {id(x): n for n, x in enumerate(prog)}
for x in prog:
    if x.kind in ('mfma32', 'mfma16'):
        for r in x.R: assert r in wr, ("MFMA reads unwritten register", r, x.text)
    wr |= x.W
for x in prog:
    if id(x) in PLD: assert pos_of[id(x)] < pos_of[id(gaps[PLD[id(x)] + 20].m)]
p1 = insert_waits(prog)
p2, nn = insert_nops(p1)
hdr = open('parallel_sum__sliding_block__dense_activation_relu__prompt.s.ref').read().split('\n')
hdr = [l for l in hdr if l.startswith(';') and '@launch' not in l]
txt = "\n".join(hdr) + f"\n; @launch grid=(256,1,1) block=(256,1,1) lds={LDS_TOTAL}\n"
txt += f""".amdgcn_target "amdgcn-amd-amdhsa--gfx950"
.text
.globl {KNAME}
.p2align 8
.type {KNAME},@function
{KNAME}:
"""
txt += render(p2) + "".join(slow_paths) + "L_code_end:\n  s_endpgm\n.fill 64, 4, 0xbf800000\n"
txt += f""".section .rodata,"a"
.p2align 6
.amdhsa_kernel {KNAME}
  .amdhsa_next_free_vgpr 512
  .amdhsa_next_free_sgpr 102
  .amdhsa_accum_offset 256
  .amdhsa_group_segment_fixed_size 0
  .amdhsa_kernarg_size 72
  .amdhsa_user_sgpr_count 2
  .amdhsa_user_sgpr_kernarg_segment_ptr 1
  .amdhsa_system_sgpr_workgroup_id_x 1
.end_amdhsa_kernel
"""
if OPT['timing']: txt += "; stamps: " + " ".join(stamp_names) + "\n"
assert len(stamp_names) <= 62
open(sys.argv[1], 'w').write(txt)
print("instrs", len(p2), "nop states", nn, dict(Counter(x.kind for x in p2)), file=sys.stderr)
print("chunks (n, base, nb, last dma gap, barrier gap)", [(c.n, c.base, getattr(c, 'nb', None), lastg.get(id(c.dmas[-1])), (first_use[c] - PD) if c is not KVC else BKV) for c in chunks + [KVC]], file=sys.stderr)
print("h stores", {k: lastg.get(id(v)) for k, v in hst.items()}, "ploads", sorted(lastg[i_] for i_ in PLD), file=sys.stderr)
print("kv stores at", [lastg[id(x)] - GA_END for x in st], file=sys.stderr)
```

```python
import sys, math, struct
from collections import deque, Counter
from asmlib import *

KNAME = "parallel_sum__sliding_block__dense_activation_relu__prompt_kernel"
OPT = dict(ts='', dbgt=0, timing=0, PD=7, budget=3, tcp=180, lc=2.2, kvpub=52, kvpoll=88, kvchk=110, kvbud=6, abud=7, a2bud=1, pubat=16, pollat=40, chkat=30, dmarg=45, slot0=3, c1pro=1, pf=0, xco=1, dsp=3, stb=35, pre=2, inl=0, osc=1, rt=0, tail=1, wq=4, lates=0, hf=1, rbp=36, dp=0, t2=0, h2g='16,20,24,28,32,36,39,42,45,48', mb=1, z3=1, na=4, ntm=0, pad=0, mt='', swp=0, pog=30, pod=20, dpu=3, h1c=20, h1d=4, p3=44, h2c=26, h2d=4, p4=65, oc=120, dmaat=50, p6=85, p7=60, stch=1, x1=5, c0at=99, cpf='330,720,860', ntop=40, hoist=1, in0=4, rj=0, h0=0, qpro=1, kvl=12, attp=4)
for a in sys.argv[2:]:
    k, v = a.split('=')
    OPT[k] = (v if k in ('ts', 'cpf', 'mt', 'h2g') else float(v) if k == 'lc' else int(v))

def f32(x): return "0x%08x" % struct.unpack('<I', struct.pack('<f', x))[0]

FBASE, EBASE, KVBASE, HXBASE, PBASE = 0, 0x20000, 0x40000, 0x600000, 0x1C00000
HXB = 21504
PU = 131072
KVB = 5120
WS_USED = 0x3000000
DBGW = 0x3000000
WS_REC = 0x4000000 if OPT['timing'] else WS_USED
OOB = 0x80000000
THI = 0x5bd1e995
LDS_TOTAL = 163840
XS = 81920
GA_KS, GA_CH = 8576, 34304
GB_KS, GB_CH = 5312, 21248
IMG = 4288
KVL = 102400
P2A, P2B = 20480, 21504
SX, SQ, S1, S2, SO, SOUT, SWS, SDB, SCODE = 4, 8, 12, 16, 20, 24, 28, 32, 36
def srd(b): return f"s[{b}:{b+3}]"
sI, sJ, sW, sROT = 58, 59, 60, 61
sRT = 62
sKV = 71
sM0K = 74
sXB, sQB, sHA, sHB, sSG = 80, 81, 82, 83, 84
sUC, sSC = 62, 66
sW2A, sW2B, sWO5, sWO6, sSA, sSS, sSE = [67, 68], [69, 70], [80, 81], [82, 83], [84, 85], [86, 87], [88, 94]
sHXW, sHXR, sCA = 56, 57, 79
sKVW, sFW, sPB = 89, 90, 91
sT, sTH = 92, 93
sM0X = 94
sLO = 96
sA, sB, sC, sD = 75, 76, 77, 78
sDM = 44
sM0A, sM0B, sM0C, sM0D, sM0E = 46, 47, 48, 49, 50
sCK = 52
sRS = 54
sONE = 3
sTS = 98
vL, vT0, vT1, vT2, vT3_ = 1, 2, 3, 4, 5
vA, vT3, vS, vP0, vP1 = 6, 7, 8, 9, 10
vDQ = 12
vDH = 16
vDS = 20
vL16, vVS, vVSC = 21, 22, 23
vRS, vNB = 24, 25
vFL = 26
vH1 = 28
vQ = 60
vR = 76
vE = 96
XN = 112
vXD, vXR, vST = 28, 32, 36
vH2 = 112
vSB = 152
vM0, vM8 = 216, 232
vTT = 248
aT, aG, aF, aSEL = 0, 128, 208, 252
aK, aO, aRD, aSEL2 = 0, 72, 0, 248
def aPF(k): return 104 + 4*k

prog = []
stamp_names = []
def STAMP(name=''):
    if OPT['timing']:
        k = len(stamp_names); stamp_names.append(name)
        prog.append(I("s_waitcnt lgkmcnt(0)"))
        prog.append(RAW(f"  s_memtime s[{sTS}:{sTS+1}]\n  s_waitcnt lgkmcnt(0)\n  v_writelane_b32 v11, s{sTS}, {k}\n  s_nop 4"))
        if OPT.get('rt'): prog.append(RAW(f"  s_memrealtime s[{sTS}:{sTS+1}]\n  s_waitcnt lgkmcnt(0)\n  v_writelane_b32 v11, s{sTS}, {32+k}\n  s_nop 4"))
def TS(grp, name):
    if OPT['timing'] and grp in OPT['ts'].split(','):
        x = I('s_nop', kind='lazystamp'); x.note = name; x.R = set(); x.W = set(); x.cost = 0
        return [x]
    return []
def E(t):
    if isinstance(t, list):
        for x in t: E(x)
        return
    x = t if isinstance(t, I) else I(t)
    if x.kind == 'lazystamp':
        STAMP(x.note); return x
    prog.append(x); return x
def vr(b, n=4): return f"v[{b}:{b+n-1}]"
def ar(b, n=4): return f"a[{b}:{b+n-1}]"
LINES = {}
def VM(text, lines):
    x = I(text); LINES[id(x)] = lines; return x
slow_paths = []

class Chunk: pass
chunks = []
def add_chunk(kind, c, size):
    ch = Chunk(); ch.kind = kind; ch.c = c; ch.size = size; ch.n = len(chunks); ch.dmas = []; chunks.append(ch); return ch
for c in range(9): add_chunk('ga', c, GA_CH).base = (c % 4) * GA_CH
for c, b in enumerate([34304, 55552, 76800, 98048, 119296, 0, 21248, 42496, 63744]): add_chunk('gb', c, GB_CH).base = b
P2SEQ = [('a', 0, 0), ('b', 0, 0), ('a', 0, 1), ('c', 0, 1), ('a', 1, 0), ('b', 1, 0), ('a', 1, 1), ('c', 1, 1), ('e', 0, 1),
         ('a', 2, 0), ('b', 2, 0), ('a', 2, 1), ('b', 2, 1), ('a', 3, 0), ('b', 3, 0), ('a', 3, 1), ('b', 3, 1), ('s', 4, 0), ('s', 4, 1)]
P2C = {}
pos = 0
for k, (kd_, u, src) in enumerate(P2SEQ):
    sz = dict(a=P2A, b=P2B, c=16384, e=10240, s=21504)[kd_]
    ch = add_chunk('p2' + kd_, u, sz); ch.src = src; P2C[(kd_, u, src)] = ch
    if k == 5: pos = KVL
    if pos + sz > LDS_TOTAL: pos = 0
    if k == 9: pos = 10240
    if k == 10: pos = 78848
    ch.base = pos; pos += sz
KVC = add_chunk('kv', 0, 12*KVB); KVC.base = KVL; KVC.segstart = {}; chunks.pop()

def dma_items(ch):
    c, b = ch.c, ch.base
    it = []
    m_ = OPT['ntm']
    ntf = ' nt' if ((m_ & 2 and ch.n < 2) or (m_ & 4 and ch.n in (9, 10)) or (m_ & 8 and 18 <= ch.n < 22) or (m_ & 16 and ch.kind != 'kv')) else ''
    def grp(m0w, m0c, soff_ins, srdb, voffs, lines, fl=ntf):
        it.append([I(f"s_add_u32 m0, s{m0w}, {m0c}") if m0w else I(f"s_mov_b32 m0, {m0c}")] + [I(s) for s in soff_ins])
        for (v, imm) in voffs:
            d = VM(f"buffer_load_dwordx4 v{v}, {srd(srdb)}, s{sDM} offen offset:{imm}{fl} lds", lines)
            ch.dmas.append(d); it.append([d])
    four = lambda v, st: [(v + n, n * st) for n in range(4)]
    if ch.kind == 'ga':
        grp(sM0A, b, [f"s_mul_i32 s{sDM}, s{sRT+c}, 1728", f"s_add_u32 s{sDM}, s{sDM}, s{sQB}"], SQ, four(vDQ, 1088), 20)
        grp(sM0A, b + IMG, [f"s_mul_i32 s{sDM}, s{sRT+c}, 4608", f"s_add_u32 s{sDM}, s{sDM}, s{sHA}"], S1, four(vDH, 1088), 8)
    elif ch.kind == 'gb':
        grp(sM0B, b, [f"s_mul_i32 s{sDM+1}, s{sRT+c}, 4608", f"s_add_u32 s{sDM}, s{sDM+1}, s{sHB}"], S1, four(vDH, 1088), 8)
        grp(sM0B, b + IMG, [f"s_add_u32 s{sDM}, s{sDM+1}, s{sSG}"], S1, [(vDS, 0)], 16)
    elif ch.kind == 'p2a':
        grp(sM0C, b, [f"s_add_u32 s{sDM}, s{sW2A[ch.src]}, s{sUC+c}"], S2, four(vDQ, 1024), 8)
        grp(sM0C, b + 4096, [f"s_add_u32 s{sDM}, s{sDM}, {32*1152}"], S2, [(vDQ, 0)], 8)
    elif ch.kind == 'p2b':
        grp(None, b + 20480, [f"s_add_u32 s{sDM}, s{sWO6[ch.src]}, s{sUC+c}"], SO, [(vDQ, 0)], 8)
        grp(sM0D, b, [f"s_add_u32 s{sDM}, s{sW2B[ch.src]}, s{sUC+c}"], S2, four(vDQ, 1024), 8)
        grp(sM0E, b + 16384, [f"s_add_u32 s{sDM}, s{sWO5[ch.src]}, s{sUC+c}"], SO, [(vDQ, 0)], 8)
    elif ch.kind == 'p2c':
        grp(sM0D, b, [f"s_add_u32 s{sDM}, s{sW2B[ch.src]}, s{sUC+c}"], S2, four(vDQ, 1024), 8)
    elif ch.kind == 'p2e':
        for u in range(2):
            grp(None, b + 5120*u + 4096, [f"s_add_u32 s{sDM}, s{sWO6[1]}, s{sUC+u}"], SO, [(vDQ, 0)], 8)
            grp(sM0E, b + 5120*u, [f"s_add_u32 s{sDM}, s{sWO5[1]}, s{sUC+u}"], SO, [(vDQ, 0)], 8)
    elif ch.kind == 'p2s':
        grp(sM0D, b, [f"s_add_u32 s{sDM}, s{sSA[ch.src]}, s{sSC}"], S2, four(vDQ, 1024), 16)
        it.append([I(f"s_and_b32 s{sDM+1}, s{sM0E}, 1024")])
        grp(sDM+1, b + 16384, [f"s_add_u32 s{sDM}, s{sSS[ch.src]}, s{sSC}"], S2, [(vDQ, 0)], 16)
        it.append([I(f"s_min_u32 s{sDM+1}, s{sM0E}, 2048")])
        grp(sDM+1, b + 18432, [f"s_add_u32 s{sDM}, s{sSE[ch.src]}, s{sSC}"], SO, [(vDQ, 0)], 16)
    else:
        for m in (2, 0, 1):
            ch.segstart[m] = len(it)
            grp(sM0C, b + 4*KVB*m, [f"s_mov_b32 s{sDM}, s{sKV+m}"], SWS, [(vL16, 1024*n) for n in range(4)], OPT['kvl'], ' sc1')
            grp(sM0C, b + 4*KVB*m + 4096, [f"s_add_u32 s{sDM}, s{sDM}, 4096"], SWS, [(vL16, 0)], OPT['kvl'], ' sc1')
    return it
for ch in chunks + [KVC]: ch.items = dma_items(ch)
if OPT['swp']:
    A0, B0, A1, C1 = P2C[('a', 0, 0)], P2C[('b', 0, 0)], P2C[('a', 0, 1)], P2C[('c', 0, 1)]
    def swapped(ch, oth, m0w, rows, first):
        it = ch.items
        k0 = next(k for k, x in enumerate(it) if f"s{rows[ch.src]}," in " ".join(y.text for y in x))
        it[k0] = [I(f"s_bitcmp1_b32 s{sI}, 2"), I(f"s_cselect_b32 s{sDM}, s{rows[oth.src]}, s{rows[ch.src]}"), I(f"s_cselect_b32 s{sDM+1}, {(oth.base - ch.base) & 0xffffffff:#x}, 0"),
                  I(f"s_add_u32 s{sDM+1}, s{sDM+1}, s{m0w}"), I(f"s_add_u32 s{sDM+1}, s{sDM+1}, {ch.base}"), I(f"s_mov_b32 m0, s{sDM+1}"), I(f"s_add_u32 s{sDM}, s{sDM}, s{sUC}")]
        if ch.kind == 'p2a': it[k0 + 5] = [I(f"s_add_u32 m0, s{sDM+1}, 4096"), I(f"s_add_u32 s{sDM}, s{sDM}, {32*1152}")]
    swapped(A0, A1, sM0C, sW2A, 1); swapped(A1, A0, sM0C, sW2A, 0); swapped(B0, C1, sM0D, sW2B, 1); swapped(C1, B0, sM0D, sW2B, 0)
    alld = A0.dmas + B0.dmas + A1.dmas + C1.dmas
    A0.dmas = alld
SUB = {}
if OPT['hf']:
    for c in range(2):
        ch = chunks[c]
        q = Chunk(); q.kind = 'ga'; q.c = c; q.size = ch.size; q.base = ch.base; q.n = 80 + c
        q.items = ch.items[:5]; q.dmas = ch.dmas[:4]
        ch.items = ch.items[5:]; ch.dmas = ch.dmas[4:]
        SUB[c] = q

E(f"s_cmp_ge_u32 s2, 256")
E(f"s_cbranch_scc1 L_end")
E(f"s_load_dwordx16 s[40:55], s[0:1], 0")
E(f"s_load_dwordx2 s[56:57], s[0:1], 64")
if OPT['timing']:
    E("v_mov_b32 v11, 0"); STAMP("start")
    if OPT['dbgt']: E(RAW("  s_memrealtime s[98:99]\n  s_waitcnt lgkmcnt(0)\n  v_writelane_b32 v11, s98, 62\n  s_nop 4"))
E(f"v_lshrrev_b32 v{vT1}, 6, v0")
E(f"v_and_b32 v{vL}, 63, v0")
E(f"v_readfirstlane_b32 s{sW}, v{vT1}")
E(RAW(f"  s_getpc_b64 s[{SCODE}:{SCODE+1}]\nL_pc:\n  s_mov_b32 s{SCODE+2}, L_code_end-L_pc\n  s_mov_b32 s{SCODE+3}, 0x00020000"))
for x_ in [f"v_lshlrev_b32 v{vT0}, 7, v{vL}", f"v_cmp_lt_u32 vcc, 3, v{vL}", f"v_mov_b32 v{vT2}, {OOB:#x}", f"s_lshr_b32 s101, s2, 3",
           f"v_cndmask_b32 v{vE+1}, v{vT0}, v{vT2}, vcc", f"v_cmp_gt_u32 vcc, {OPT['ntop']}, v0", f"s_lshl_b32 s101, s101, 2", f"s_add_u32 s101, s101, s{sW}",
           f"v_cndmask_b32 v{vT0}, v{vT2}, v{vT0}, vcc", f"s_lshl_b32 s101, s101, 9",
           f"buffer_load_dword v{vE+8}, v{vT0}, {srd(SCODE)}, 0 offen", f"buffer_load_dword v{vE}, v{vE+1}, {srd(SCODE)}, s101 offen",
           f"v_accvgpr_write_b32 a246, v{vE+1}"]: E(x_)
E(f"v_lshrrev_b32 v{vT0}, 3, v{vL}")
E(f"v_lshrrev_b32 v{vT1}, 4, v{vL}")
E(f"v_and_b32 v{vT2}, 7, v{vL}")
E(f"v_xor_b32 v{vT2}, v{vT2}, v{vT1}")
E(f"v_lshlrev_b32 v{vT2}, 4, v{vT2}")
E(f"v_mul_u32_u24 v{vT0}, 1152, v{vT0}")
E(f"v_add_u32 v{vXD}, v{vT0}, v{vT2}")
E(f"v_xor_b32 v{vXD+1}, 64, v{vXD}")
E(f"v_add_u32 v{vXD+2}, {2*8192}, v{vXD}")
E(f"v_add_u32 v{vXD+3}, {3*8192}, v{vXD+1}")
E(f"v_add_u32 v{vXD+1}, 8192, v{vXD+1}")
E(f"s_bfe_u32 s100, s2, 0x10002")
E(f"s_lshl_b32 s100, s100, 3")
E(f"s_lshr_b32 s{sROT}, s2, 5")
E(f"s_add_u32 s{sI}, s100, s{sROT}")
E(f"s_bfe_u32 s101, s2, 0x20003"); E(f"s_lshl_b32 s101, s101, 1"); E(f"s_add_u32 s101, s101, s{sROT}")
if OPT['rj']: E(f"s_and_b32 s100, s2, 1"); E(f"s_add_u32 s101, s101, s100")
E(f"s_sub_u32 s100, s101, 9"); E(f"s_cmp_ge_u32 s101, 9"); E(f"s_cselect_b32 s101, s100, s101"); E(f"s_lshl_b32 s{sRT}, s101, 7")
E(f"s_lshl_b32 s100, s{sI}, 2")
E(f"s_add_u32 s100, s100, s{sW}")
E(f"s_mul_i32 s{sXB}, s100, {32*1152}")
E(f"s_mul_i32 s{sM0X}, s{sW}, 20480")
E(f"s_add_u32 s{sM0X}, s{sM0X}, {XS}")
E(f"s_mov_b32 s{SX+2}, {2048*1152}"); E(f"s_mov_b32 s{SX+3}, 0x00020000")
E("s_waitcnt lgkmcnt(0)")
E(f"s_mov_b32 s{SX}, s40"); E(f"s_mov_b32 s{SX+1}, s41")
E(TS('pro', 'karg'))

su = deque()
def U(t): su.append(t)
def drain(n):
    for _ in range(min(n, len(su))): E(su.popleft())
def mk_srd(b, p, n):
    U(f"s_mov_b32 s{b}, s{p}"); U(f"s_mov_b32 s{b+1}, s{p+1}"); U(f"s_mov_b32 s{b+2}, {n}"); U(f"s_mov_b32 s{b+3}, 0x00020000")
mk_srd(SWS, 56, WS_REC)
U(f"v_mov_b32 v{vFL}, {EBASE}")
U(RAW(f"""  s_or_b32 s101, s2, s{sW}
  s_cmp_lg_u32 s101, 0
  s_cbranch_scc1 L_noep1
  buffer_load_dword v{vFL+1}, v{vFL}, {srd(SWS)}, 0 offen sc1
L_noep1:"""))
mk_srd(SQ, 42, 576*3456); mk_srd(SO, 44, 576*1152); mk_srd(S1, 48, 576*9216); mk_srd(S2, 50, 4608*1152)
mk_srd(SOUT, 52, 2048*1152); mk_srd(SDB, 54, 256)
U(f"s_and_b32 s{sA}, s2, 3"); U(f"s_lshl_b32 s{sA}, s{sA}, 2"); U(f"s_bfe_u32 s{sB}, s2, 0x20003"); U(f"s_add_u32 s{sJ}, s{sA}, s{sB}")
U(f"v_and_b32 v{vT0}, 31, v{vL}"); U(f"v_lshrrev_b32 v{vT1}, 5, v{vL}"); U(f"v_bfe_u32 v{vT2}, v{vL}, 1, 3")
U(f"v_xor_b32 v{vT2}, v{vT2}, v{vT1}"); U(f"v_lshlrev_b32 v{vT2}, 4, v{vT2}"); U(f"v_lshl_add_u32 v{vT2}, v{vT0}, 7, v{vT2}")
for s in range(4):
    U(f"v_xor_b32 v{vXR+s}, {32*s}, v{vT2}"); U(f"v_add_u32 v{vXR+s}, s{sM0X}, v{vXR+s}")
for k in range(8): U(f"v_mov_b32 v{vST+k}, 0")
U(f"v_lshlrev_b32 v{vL16}, 4, v{vL}")
U(f"s_mov_b32 s95, 0xffff0000"); U(f"s_mov_b32 s{sONE}, 0x3f803f80"); U(f"s_mov_b32 s{sLO}, -1"); U(f"s_mov_b32 s{sLO+1}, 0")
U(f"v_lshlrev_b32 v{vT2}, 31, v{vT1}"); U(f"v_add_u32 v{vVSC}, 1024, v{vL16}"); U(f"v_add_u32 v{vVSC}, v{vVSC}, v{vT2}")
U(f"v_bfe_u32 v{vT0}, v{vL}, 2, 2"); U(f"v_bfe_u32 v{vT2}, v{vL}, 4, 1"); U(f"v_and_b32 v{vT3_}, 3, v{vL}")
U(f"v_lshl_add_u32 v{vT3_}, v{vT2}, 2, v{vT3_}")
U(f"v_mul_u32_u24 v{vA}, 1088, v{vT0}"); U(f"v_lshl_add_u32 v{vA}, v{vT1}, 9, v{vA}")
U(f"v_mul_u32_u24 v{vT3}, 40, v{vT3_}")
if OPT['z3']:
    U(f"v_and_b32 v{vS}, 1, v{vT3_}"); U(f"v_lshl_or_b32 v{vS}, v{vS}, 3, v{vT3_}"); U(f"v_mov_b32 v{vP0}, 168")
    U([I(f"v_cmp_lt_u32 vcc, 4, v{vS}"), I("s_nop 1"), I(f"v_cndmask_b32 v{vT3}, v{vT3}, v{vP0}, vcc")])
U(f"v_add3_u32 v{vT3}, v{vT3}, v{vA}, 36"); U(f"v_add_u32 v{vT3}, 36, v{vT3}")
U(f"v_lshl_add_u32 v{vA}, v{vT3_}, 3, v{vA}")
U(f"v_lshl_add_u32 v{vS}, v{vT1}, 3, v{vT0}"); U(f"v_lshlrev_b32 v{vS}, 6, v{vS}"); U(f"v_lshl_add_u32 v{vS}, v{vT3_}, 3, v{vS}")
U(f"v_lshl_add_u32 v{vP0}, v{vT1}, 2, v{vT0}"); U(f"v_lshlrev_b32 v{vP0}, 7, v{vP0}"); U(f"v_lshl_add_u32 v{vP0}, v{vT3_}, 3, v{vP0}")
U(f"v_lshrrev_b32 v{vT2}, 1, v{vT0}"); U(f"v_lshl_add_u32 v{vP0}, v{vT2}, 6, v{vP0}"); U(f"v_xor_b32 v{vP1}, 64, v{vP0}")
U(f"v_lshrrev_b32 v{vT0}, 4, v{vL}"); U(f"v_and_b32 v{vT1}, 15, v{vL}")
U(f"v_mul_u32_u24 v{vT2}, {4*9216}, v{vT0}"); U(f"v_lshl_add_u32 v{vDH}, v{vT1}, 4, v{vT2}")
for n in range(1, 4): U(f"v_add_u32 v{vDH+n}, {n*(9216-1088)}, v{vDH}")
U(f"v_min_u32 v{vT1}, 14, v{vT1}"); U(f"v_mul_u32_u24 v{vT2}, 13, v{vT1}"); U(f"v_lshrrev_b32 v{vT2}, 6, v{vT2}")
U(f"v_mul_u32_u24 v{vT3_}, 5, v{vT2}"); U(f"v_sub_u32 v{vT1}, v{vT1}, v{vT3_}"); U(f"v_lshlrev_b32 v{vT1}, 4, v{vT1}")
U(f"v_min_u32 v{vT1}, 56, v{vT1}"); U(f"v_mul_u32_u24 v{vT3_}, 1152, v{vT2}"); U(f"v_add_u32 v{vT1}, v{vT1}, v{vT3_}")
U(f"s_mul_i32 s{sA}, s{sJ}, 72"); U(f"s_xor_b32 s{sB}, s{sJ}, 1"); U(f"s_mul_i32 s{sC}, s{sB}, 72")
U(f"v_mov_b32 v{vT3_}, s{sC}"); U(f"v_mov_b32 v{vDS}, s{sA}"); U(f"v_cmp_eq_u32 vcc, 0, v{vT2}")
U(f"v_mul_u32_u24 v{vT2}, {4*3456}, v{vT0}"); U(f"v_add_u32 v{vT1}, v{vT1}, v{vT2}")
U(f"v_cndmask_b32 v{vT3_}, v{vT3_}, v{vDS}, vcc"); U(f"v_add_u32 v{vDQ}, v{vT1}, v{vT3_}")
if OPT['z3']:
    U(f"v_and_b32 v{vT1}, 15, v{vL}"); U(f"v_add_u32 v{vT1}, 1, v{vT1}"); U(f"v_lshlrev_b32 v{vT1}, 27, v{vT1}"); U(f"v_and_b32 v{vT1}, {OOB:#x}, v{vT1}")
    U(f"v_or_b32 v{vDQ}, v{vDQ}, v{vT1}")
for n in range(1, 4): U(f"v_add_u32 v{vDQ+n}, {n*(3456-1088)}, v{vDQ}")
U(f"v_lshrrev_b32 v{vT0}, 2, v{vL}"); U(f"v_mul_u32_u24 v{vT0}, 9216, v{vT0}"); U(f"v_and_b32 v{vT1}, 3, v{vL}")
U(f"v_lshl_add_u32 v{vDS}, v{vT1}, 4, v{vT0}")
U(f"s_mul_i32 s{sQB}, s{sW}, {16*3456}")
U(f"s_and_b32 s{sA}, s{sJ}, 1"); U(f"s_mul_i32 s{sC}, s{sJ}, 288"); U(f"s_lshl_b32 s{sD}, s{sA}, 5"); U(f"s_add_u32 s{sD}, s{sD}, s{sC}")
U(f"s_xor_b32 s{sA}, s{sA}, 1"); U(f"s_lshl_b32 s{sA}, s{sA}, 8"); U(f"s_add_u32 s{sC}, s{sC}, s{sA}")
U(f"s_mul_i32 s{sA}, s{sW}, {16*9216}"); U(f"s_lshl_b32 s{sHA}, s{sD}, 1"); U(f"s_add_u32 s{sHA}, s{sHA}, s{sA}")
U(f"s_add_u32 s{sHB}, s{sHA}, 256"); U(f"s_lshl_b32 s{sSG}, s{sC}, 1"); U(f"s_add_u32 s{sSG}, s{sSG}, s{sA}")
U(f"s_mul_i32 s{sM0A}, s{sW}, {GA_KS}"); U(f"s_mul_i32 s{sM0B}, s{sW}, {GB_KS}"); U(f"s_mul_i32 s{sM0C}, s{sW}, 5120")
U(f"s_lshl_b32 s{sM0D}, s{sW}, 12"); U(f"s_lshl_b32 s{sM0E}, s{sW}, 10")
NSU = len(su)
for m in range(3):
    U(f"s_add_i32 s{sA}, s{sI}, {m-2}")
    U([I(f"s_cmp_lt_i32 s{sA}, 0"), I(f"s_cselect_b32 s{sA}, s{sI}, s{sA}")])
    U(f"s_lshl_b32 s{sB}, s{sJ}, 4"); U(f"s_add_u32 s{sA}, s{sA}, s{sB}"); U(f"s_lshl_b32 s{sA}, s{sA}, 2"); U(f"s_add_u32 s{sA}, s{sA}, s{sW}")
    U(f"s_mul_i32 s{sA}, s{sA}, {KVB}"); U(f"s_add_u32 s{sKV+m}, s{sA}, {KVBASE}")
U(f"s_xor_b32 s{sA}, s{sJ}, 1"); U(f"s_lshl_b32 s{sA}, s{sA}, 4"); U(f"s_add_u32 s{sA}, s{sA}, s{sI}"); U(f"s_lshl_b32 s{sA}, s{sA}, 2")
U(f"s_add_u32 s{sA}, s{sA}, s{sW}"); U(f"s_mul_i32 s{sA}, s{sA}, {KVB}"); U(f"s_add_u32 s{sKVW}, s{sA}, {KVBASE}")
U(f"s_lshl_b32 s{sA}, s{sI}, 2"); U(f"s_add_u32 s{sA}, s{sA}, s{sW}"); U(f"s_lshl_b32 s{sA}, s{sA}, 4"); U(f"s_add_u32 s{sA}, s{sA}, s{sJ}")
U(f"s_lshl_b32 s{sFW}, s{sA}, 3")
U(f"s_and_b32 s{sB}, s{sJ}, 1"); U(f"s_lshl_b32 s{sC}, s{sI}, 1"); U(f"s_add_u32 s{sC}, s{sC}, s{sB}")
U(f"s_mul_i32 s{sPB}, s{sC}, {5*PU}"); U(f"s_add_u32 s{sPB}, s{sPB}, {PBASE}")
U(f"s_mul_i32 s{sHXW}, s{sA}, {HXB}"); U(f"s_add_u32 s{sHXW}, s{sHXW}, {HXBASE}")
U(f"s_xor_b32 s{sA}, s{sA}, 1"); U(f"s_mul_i32 s{sHXR}, s{sA}, {HXB}"); U(f"s_add_u32 s{sHXR}, s{sHXR}, {HXBASE}")
U(f"v_and_b32 v{vT0}, 15, v{vL}"); U(f"v_and_b32 v{vT1}, 1, v{vL}"); U(f"v_lshlrev_b32 v{vT1}, 4, v{vT1}")
U(f"v_mov_b32 v{vT2}, 0x3f80"); U(f"v_lshlrev_b32 v{vT2}, v{vT1}, v{vT2}"); U(f"v_lshrrev_b32 v{vT0}, 1, v{vT0}")
for d in range(4):
    U([I(f"v_cmp_eq_u32 vcc, {d}, v{vT0}"), I("s_nop 1"), I(f"v_cndmask_b32 v{vT1}, 0, v{vT2}, vcc")])
    U(f"v_accvgpr_write_b32 a{aSEL+d}, v{vT1}")
    U([I(f"v_cmp_eq_u32 vcc, {d+4}, v{vT0}"), I("s_nop 1"), I(f"v_cndmask_b32 v{vT1}, 0, v{vT2}, vcc")])
    U(f"v_accvgpr_write_b32 a{aSEL2+d}, v{vT1}")

vFW, vFK, vFR, vFL2 = 4, 5, 0, 24
vVA, vVBb = 2, 3
aST = 240
vY0, vY1, vY2 = vE + 4, vE + 5, vE + 6
for x_ in [f"v_bfe_u32 v{vY0}, v{vL}, 2, 3", f"v_lshlrev_b32 v{vY0}, 12, v{vY0}", f"v_and_b32 v{vY1}, 3, v{vL}", f"v_lshl_add_u32 v{vY0}, v{vY1}, 5, v{vY0}",
           f"v_lshrrev_b32 v{vY1}, 5, v{vL}", f"v_lshl_add_u32 v{vY0}, v{vY1}, 4, v{vY0}", f"s_lshl_b32 s{sA}, s{sW}, 15", f"s_lshr_b32 s{sC}, s{sJ}, 1",
           f"s_lshl_b32 s{sB}, s{sC}, 9", f"s_add_u32 s{sA}, s{sA}, s{sB}", f"v_add_u32 v{vY0}, s{sA}, v{vY0}", f"v_accvgpr_write_b32 a{aST}, v{vY0}",
           f"v_lshrrev_b32 v{vY0}, 4, v{vL}", f"v_lshlrev_b32 v{vY0}, 9, v{vY0}", f"v_and_b32 v{vY1}, 15, v{vL}", f"v_lshl_add_u32 v{vY0}, v{vY1}, 4, v{vY0}",
           f"s_lshl_b32 s{sA}, s{sC}, 14", f"s_lshl_b32 s{sB}, s{sW}, 12", f"s_add_u32 s{sA}, s{sA}, s{sB}", f"v_add_u32 v{vY0}, s{sA}, v{vY0}",
           f"v_accvgpr_write_b32 a{aST+1}, v{vY0}",
           f"s_lshl_b32 s{sA}, s{sI}, 7", f"s_lshl_b32 s{sD}, s{sC}, 4", f"s_add_u32 s{sA}, s{sA}, s{sD}",
           f"s_lshl_b32 s{sB}, s{sW}, 2", f"s_add_u32 s{sA}, s{sA}, s{sB}", f"s_mul_i32 s{sA}, s{sA}, 1152",
           f"v_bfe_u32 v{vY0}, v{vL}, 1, 2", f"v_mul_u32_u24 v{vY0}, 1152, v{vY0}", f"v_bfe_u32 v{vY1}, v{vL}, 3, 1",
           f"v_lshl_add_u32 v{vY0}, v{vY1}, 5, v{vY0}", f"v_bfe_u32 v{vY1}, v{vL}, 4, 1", f"v_lshl_add_u32 v{vY0}, v{vY1}, 4, v{vY0}", f"v_and_b32 v{vY1}, 1, v{vL}",
           f"v_lshl_add_u32 v{vY0}, v{vY1}, 3, v{vY0}", f"v_lshrrev_b32 v{vY1}, 5, v{vL}", f"v_lshl_add_u32 v{vY0}, v{vY1}, 6, v{vY0}",
           f"v_add_u32 v{vY0}, s{sA}, v{vY0}", f"v_accvgpr_write_b32 a{aST+2}, v{vY0}",
           f"v_lshrrev_b32 v{vY0}, 3, v{vL}", f"v_bfe_u32 v{vY1}, v{vL}, 4, 1", f"v_lshlrev_b32 v{vY1}, 2, v{vY1}",
           f"v_and_b32 v{vY2}, 7, v{vL}", f"v_xor_b32 v{vY2}, v{vY2}, v{vY1}", f"v_mul_u32_u24 v{vY0}, 1152, v{vY0}",
           f"v_lshl_add_u32 v{vY0}, v{vY2}, 4, v{vY0}", f"v_accvgpr_write_b32 a{aST+3}, v{vY0}",
           f"v_lshrrev_b32 v{vY0}, 2, v{vL}", f"v_mul_u32_u24 v{vY0}, 1152, v{vY0}", f"v_and_b32 v{vY1}, 3, v{vL}",
           f"v_lshl_add_u32 v{vY0}, v{vY1}, 4, v{vY0}", f"v_accvgpr_write_b32 a{aST+4}, v{vY0}",
           f"v_lshrrev_b32 v{vY0}, 5, v{vL}", f"v_lshlrev_b32 v{vY0}, 8, v{vY0}", f"v_sub_u32 v{vY0}, v{vS}, v{vY0}", f"v_accvgpr_write_b32 a{aST+5}, v{vY0}"]: U(x_)
for x_ in [f"v_bfe_u32 v{vT0}, v{vL}, 2, 2", f"v_min_u32 v{vT0}, 2, v{vT0}", f"s_sub_u32 s{sA}, s{sI}, 2", f"v_add_u32 v{vT0}, s{sA}, v{vT0}"]: U(x_)
for x_ in [f"v_mov_b32 v{vT1}, s{sI}", f"v_cmp_gt_i32 vcc, 0, v{vT0}", f"s_xor_b32 s{sA}, s{sJ}, 1", f"s_lshl_b32 s{sA}, s{sA}, 3",
          f"v_cndmask_b32 v{vT0}, v{vT0}, v{vT1}, vcc"]: U(x_)
for x_ in [f"v_lshlrev_b32 v{vT0}, 9, v{vT0}", f"v_and_b32 v{vT1}, 3, v{vL}", f"v_lshl_add_u32 v{vT0}, v{vT1}, 7, v{vT0}",
          f"v_add_u32 v{vFK}, s{sA}, v{vT0}"]: U(x_)
for x_ in [f"v_cmp_eq_u32 vcc, 0, v{vL}", f"v_mov_b32 v{vFW}, {OOB:#x}", f"s_nop 0", f"v_cndmask_b32_e64 v{vFW}, v{vFW}, 0, vcc"]: U(x_)
for x_ in [f"s_lshl_b32 s{sA}, s{sI}, 9", f"s_lshr_b32 s{sD}, s{sJ}, 2", f"s_lshl_b32 s{sD}, s{sD}, 7", f"s_add_u32 s{sA}, s{sA}, s{sD}",
           f"s_and_b32 s{sD}, s{sJ}, 1", f"s_lshl_b32 s{sD}, s{sD}, 3", f"s_add_u32 s{sA}, s{sA}, s{sD}",
           f"v_and_b32 v{vT1}, 7, v{vL}", f"v_lshlrev_b32 v{vT1}, 4, v{vT1}", f"v_add_u32 v{vFR}, s{sA}, v{vT1}"]: U(x_)
tabA = bytes([0, 64, 1, 65, 128, 128, 255, 255]); tabB = bytes([192, 129, 193, 254, 128, 128, 255, 255])
lo = lambda b: "0x%08x" % int.from_bytes(b[:4], 'little')
hi = lambda b: "0x%08x" % int.from_bytes(b[4:], 'little')
vX0, vX1 = vR, vR + 1
for x_ in [f"v_bfe_u32 v{vX0}, v{vL}, 4, 1", f"v_and_b32 v{vX1}, 3, v{vL}", f"v_lshl_add_u32 v{vX0}, v{vX0}, 2, v{vX1}",
          f"v_or_b32 v{vX0}, 0x0c0c0c00, v{vX0}"]: U(x_)
for x_ in [f"s_mov_b32 s{sA}, {hi(tabA)}", f"v_mov_b32 v{vX1}, {lo(tabA)}", f"v_perm_b32 v{vVA}, s{sA}, v{vX1}, v{vX0}"]: U(x_)
for x_ in [f"v_mov_b32 v{vX1}, {lo(tabB)}", f"v_perm_b32 v{vVBb}, s{sA}, v{vX1}, v{vX0}", f"v_bfe_u32 v{vX0}, v{vL}, 2, 2", f"v_lshrrev_b32 v{vX1}, 5, v{vL}"]: U(x_)
for x_ in [f"v_lshl_add_u32 v{vX0}, v{vX1}, 2, v{vX0}", f"v_lshlrev_b32 v{vX0}, 4, v{vX0}", f"s_add_u32 s{sM0K}, s{sM0C}, {KVL}",
          f"v_add_u32 v{vX0}, s{sM0K}, v{vX0}"]: U(x_)
for x_ in [f"v_add_u32 v{vX0}, 2560, v{vX0}", f"v_add_u32 v{vX1}, 2, v{vVA}", f"v_cmp_lt_u32 vcc, 0xfd, v{vVA}", f"v_add_u32 v{vR+2}, 2, v{vVBb}"]: U(x_)
for x_ in [f"v_cndmask_b32 v{vVA}, v{vVA}, v{vX1}, vcc", f"v_cmp_lt_u32 vcc, 0xfd, v{vVBb}", f"v_lshl_add_u32 v{vVA}, v{vVA}, 3, v{vX0}",
          f"v_mov_b32 v{vR+18}, 0", f"v_cndmask_b32 v{vVBb}, v{vVBb}, v{vR+2}, vcc"]: U(x_)
for x_ in [f"v_lshl_add_u32 v{vVBb}, v{vVBb}, 3, v{vX0}", f"v_mov_b32 v{vR+19}, 0"]: U(x_)


late = []
if OPT['lates']:
    while len(su) > NSU: late.insert(0, su.pop())
    U(f"v_cmp_eq_u32 vcc, 0, v{vL}"); U(f"v_mov_b32 v{vFW}, {OOB:#x}"); U("s_nop 0"); U(f"v_cndmask_b32_e64 v{vFW}, v{vFW}, 0, vcc")
def rt_next(c): return [I(f"s_add_u32 s{sRT+c}, s{sRT+c-1}, 128"), I(f"s_cmp_eq_u32 s{sRT+c}, 1152"), I(f"s_cselect_b32 s{sRT+c}, 0, s{sRT+c}")]
xh = {}
def x_items(cb):
    it = [(rt_next(cb) if cb else []) + [I(f"s_add_u32 m0, s{sM0X}, {(cb % 5)*4096}"), I(f"s_add_u32 s100, s{sXB}, s{sRT+cb}")]]
    xh[cb] = []
    for g in range(4):
        d = I(f"buffer_load_dwordx4 v{vXD+g}, {srd(SX)}, s100 offen offset:{g*1024}{' nt' if OPT['ntm'] & 1 else ''} lds"); xh[cb].append(d); it.append([d])
    return it
per = (len(su) + 17) // 18
nx = 0
X1 = OPT['x1']
per = (len(su) + 4*X1 - 3) // (4*X1 - 2)
for cb in range(X1):
    if OPT['h0'] == cb and cb:
        last = max(k for k, t in enumerate(su) if isinstance(t, str) and (f"s{sM0A}," in t or f"s{sHA}," in t))
        drain(last + 1)
        E(chunks[0].items); chunks[0].items = []
    for it in x_items(cb):
        E(it)
        if it[0].kind == 'dma':
            nx += 1
            if nx >= 2: drain(per)
drain(999)
E(TS('pro', 'xiss'))
def stats(cb):
    o = []
    for d in range(16):
        x = XN + 16*cb + d
        e_ = (d & 1) + (4 if (OPT['na'] == 4 and d & 2) else 0)
        o += [I(f"v_dot2c_f32_bf16 v{vST + e_}, s94x, v{x}".replace("s94x", f"s{sONE}")), I(f"v_dot2c_f32_bf16 v{vST + 2 + e_}, v{x}, v{x}")]
    return o
pend = deque()
def stats_mix(cb, every):
    o = stats(cb)
    for k in range(0, 32, every):
        E(o[k:k+every])
        if pend:
            E(pend.popleft())
            if pend and prog[-1].kind != 'dma': E(pend.popleft())
for cb in range(9):
    E(TS('pro', f'w{cb}<')); E(WAITVM(*xh[cb])); E(TS('pro', f'w{cb}>'))
    rds = [E(f"ds_read_b128 {vr(XN + 16*cb + 4*s)}, v{vXR+s} offset:{(cb % 5)*4096}") for s in range(4)]
    if X1 < 5 and cb + X1 <= 8: pend.extend(x_items(cb + X1))
    if cb >= 1: stats_mix(cb - 1, 8)
    while pend and cb <= (4 if X1 == 5 else 8 - X1): E(pend.popleft())
    if X1 == 5 and cb + 5 <= 8:
        E(WAITLG(*rds))
        pend.extend(x_items(cb + 5))
    if cb == 1:
        E(RAW(f"""  s_or_b32 s101, s2, s{sW}
  s_cmp_lg_u32 s101, 0
  s_cbranch_scc1 L_noep2
  v_and_b32 v{vFL+1}, -16, v{vFL+1}
  v_add_u32 v{vFL+1}, 16, v{vFL+1}
  buffer_store_dword v{vFL+1}, v{vFL}, {srd(SWS)}, 0 offen sc1
  v_mov_b32 v{vE+2}, 0
  v_or_b32 v{vE+3}, 1, v{vFL+1}
  buffer_store_dword v{vE+3}, v{vE+2}, {srd(SDB)}, 0 offen sc1
  s_nop 1
L_noep2:"""))
    if cb == OPT['c0at'] and X1 < 5:
        E(chunks[0].items); chunks[0].items = []
    if cb == (4 if X1 == 5 else 8 - X1):
        pend.extend(chunks[0].items)
        if OPT['c1pro']: pend.extend(chunks[1].items); chunks[1].items = []
        for c_ in list(SUB)[:OPT['qpro']]: pend.extend(SUB[c_].items)
    last_rd = rds
E(WAITLG(*last_rd))
STAMP("xdone")

class Gap:
    def __init__(s): s.pre = []; s.post = []; s.frag = None; s.chunk = None; s.budget = OPT['budget']; s.rd = None
gaps = []
basecur = {vA: 0, vT3: 0, vS: 0, vP0: 0, vP1: 0}
def add_mfma(text, frag=None, chunk=None):
    g = Gap(); g.text = text; g.frag = frag; g.chunk = chunk; gaps.append(g); return len(gaps) - 1
def mf(D, A, B, C): return f"v_mfma_f32_32x32x16_bf16 {D}, {A}, {B}, {C}"
KS_FIRST = {}
def ga_steps(c, tiles, ch):
    for s in range(4):
        ks = 4*c + s
        KS_FIRST.setdefault(ks, len(gaps))
        for T in tiles:
            off = ch.base + s*GA_KS
            if T < 3: fr = (vA, off + 80*T, 256)
            elif T == 3: fr = (vT3, off, 256)
            else: fr = (vA, off + IMG + 64*(T-4), 256)
            D = ar(aT + 16*T, 16)
            add_mfma(lambda A, D=D, ks=ks: mf(D, A, vr(XN + 4*ks), D if ks else "0"), fr, ch)
if OPT['hf']:
    ga_steps(0, range(4, 8), chunks[0]); ga_steps(1, range(4, 8), chunks[1]); ga_steps(0, range(4), SUB[0]); ga_steps(1, range(4), SUB[1])
for c in range(2 if OPT['hf'] else 0, 9): ga_steps(c, range(8), chunks[c])
GA_END = len(gaps)
for c in range(9):
    ch = chunks[9 + c]
    for s in range(4):
        ks = 4*c + s
        for T in range(5):
            off = ch.base + s*GB_KS
            fr = (vA, off + 64*T, 256) if T < 4 else (vS, off + IMG, 256)
            D = ar(aG + 16*T, 16)
            add_mfma(lambda A, D=D, ks=ks: mf(D, A, vr(XN + 4*ks), D if ks else "0"), fr, ch)
GB_END = len(gaps)
TORD = [1, 2, 3, 4, 5, 6, 7, 0, 8]
steps = [(h, t) for h in range(2) for t in TORD]
def Kf(h, t): return ar(aK + 36*h + 4*t)
def Q1(h): return vr(vQ + 4*h)
def Q2(h): return vr(vQ + 8 + 4*h)
RS = 4 if OPT['mb'] else 2
def Cm(t): return vr(vM0, 16) if t == 0 else (vr(vM8, 16) if t == 8 else '0')
P1 = []
for u, (h, t) in enumerate(steps):
    S = vr(vSB + 16*(u % 3), 16)
    C = vr(vM0, 16) if t == 0 else (vr(vM8, 16) if t == 8 else "0")
    P1.append((add_mfma(mf(S, Kf(h, t), Q1(h), C)), add_mfma(mf(S, vr(vR + RS*t), Q2(h), S))))
P1_END = len(gaps)
vCM = vE
basecur[vVA] = 0; basecur[vVBb] = 0
P2s = []
NS = len(steps)
for u in range(NS + 2):
    ent = {}
    if u < NS:
        h, t = steps[u]
        S = vr(vSB + 16*(u % 4), 16)
        ent['qa'] = add_mfma(mf(S, Kf(h, t), Q1(h), Cm(t) if OPT['mb'] else (S if t in (0, 8) else vr(vCM, 16))))
        ent['qb'] = add_mfma(mf(S, vr(vR + RS*t), Q2(h), S))
    if u >= 2:
        h, t = steps[u - 2]
        Pb = vSB + 16*((u - 2) % 4)
        O = ar(aO + 16*h, 16)
        first = (TORD.index(t) == 0)
        for s in range(2):
            fr = (vVA if h == 0 else vVBb, KVB*t + 256*s, 128)
            ent['pv%d' % s] = add_mfma(lambda A, O=O, Pb=Pb, s=s, first=first: mf(O, A, vr(Pb + 4*s), "0" if (first and s == 0) else O), fr, KVC)
    P2s.append(ent)
ATT_END = len(gaps)
vOX = vQ
vPK = 76
vS2 = vT3
def hfrag(ks, src):
    if src: return ar(aPF(ks))
    if ks < 8: return vr(vH1 + 4*ks)
    if ks < 18: return vr(vH2 + 4*(ks - 8))
    return vr(vOX + 4*(ks - 18))
UACC = [152, 184, 216, 152, 184]
UEND = {}
POS = {}
def unit_steps(u, src, k0, k1):
    for ks in range(k0, k1):
        POS[(u, src, ks)] = len(gaps)
        first = (src == 0 and ks == 0)
        if u == 4:
            ch = P2C[('s', 4, src)]; D = vr(UACC[u], 16)
            add_mfma(lambda A, D=D, ks=ks, first=first: mf(D, A, hfrag(ks, src), "0" if first else D), ('s2', ch.base + 1024*ks, 512 if ks < 20 else None), ch)
            continue
        if ks < 10: ch = P2C[('a', u, src)]; off = ch.base + 2048*ks
        elif (('b', u, src) in P2C): ch = P2C[('b', u, src)]; off = ch.base + 2048*(ks - 10)
        elif ks < 18: ch = P2C[('c', u, src)]; off = ch.base + 2048*(ks - 10)
        else: ch = P2C[('e', 0, 1)]; off = ch.base + 5120*u + 2048*(ks - 18)
        for T in range(2):
            D = vr(UACC[u] + 16*T, 16)
            add_mfma(lambda A, D=D, ks=ks, first=first: mf(D, A, hfrag(ks, src), "0" if first else D), (vP0 + T, off, 1024 if ks < 20 else None), ch)
    UEND[u] = len(gaps)
for u in range(2): unit_steps(u, 0, 0, 21)
for u in range(2): unit_steps(u, 1, 0, 18)
for u in range(2): unit_steps(u, 1, 18, 21)
for u in range(2, 5): unit_steps(u, 0, 0, 21); unit_steps(u, 1, 0, 21)
basecur['s2'] = 0
NG = len(gaps)

PD = OPT['PD']
first_use, last_use = {}, {}
for g, G in enumerate(gaps):
    if G.chunk is not None:
        first_use.setdefault(G.chunk, g); last_use[G.chunk] = g
bar_at = {}
for ch in chunks[1:] + list(SUB.values()): bar_at[first_use[ch] - PD] = ch
BKV = GB_END - 6
assert BKV not in bar_at
bar_at[BKV] = KVC
REL = Chunk(); REL.kind = 'rel'; REL.n = 99; REL.dmas = []
bar_at[GB_END + 2] = REL
bars = sorted(bar_at)
def release_gap(key): return min(b for b in bars if b > last_use[key])
for ch in chunks[2:] + [KVC]:
    nb = 0
    for o in (chunks[:ch.n] if ch is not KVC else chunks[:18]) + list(SUB.values()):
        if o.base < ch.base + ch.size and ch.base < o.base + o.size: nb = max(nb, release_gap(o))
    if ch.base + ch.size > KVL and ch.kind.startswith('p2'): nb = max(nb, release_gap(KVC))
    ch.nb = nb

fragno = 0
reads_at = {}
for g, G in enumerate(gaps):
    if G.frag is None:
        G.m = I(G.text); continue
    G.fb = aF + 4*(fragno % 8); fragno += 1
    G.m = I(G.text(ar(G.fb)))
    reads_at.setdefault(g - PD, []).append(g)
def emit_reads(g):
    G = gaps[g]; bk, off, d = G.frag
    bv = vS2 if bk == 's2' else bk
    outl = []
    if off < basecur[bk] or off + (d or 0) - basecur[bk] > 65535 - 8:
        nbase = off & ~0x7ff
        outl.append(I(f"v_add_u32 v{bv}, {(nbase - basecur[bk]) & 0xffffffff:#x}, v{bv}"))
        basecur[bk] = nbase
    G.rd = [I(f"ds_read_b64_tr_b16 {ar(G.fb, 2)}, v{bv} offset:{off - basecur[bk]}")]
    if d is not None: G.rd.append(I(f"ds_read_b64_tr_b16 {ar(G.fb + 2, 2)}, v{bv} offset:{off + d - basecur[bk]}"))
    return outl + G.rd

class Stream:
    def __init__(s, name): s.q = deque(); s.name = name
    def add(s, ins, nb=0, dl=10**9):
        ins = [x if isinstance(x, I) else I(x) for x in (ins if isinstance(ins, list) else [ins])]
        s.q.append((nb, dl, ins)); return ins[-1]
lateq = None
norm, epi, side, dmaq = Stream('norm'), Stream('epi'), Stream('side'), Stream('dma')

def norm_ops(ks):
    o = []
    T = lambda d: vE + 2*d
    for d in range(4): o += [f"v_lshlrev_b32 v{T(d)}, 16, v{XN+4*ks+d}", f"v_and_b32 v{T(d)+1}, s95, v{XN+4*ks+d}"]
    for d in range(4): o += [f"v_fma_f32 v{T(d)}, v{T(d)}, v{vRS}, v{vNB}", f"v_fma_f32 v{T(d)+1}, v{T(d)+1}, v{vRS}, v{vNB}"]
    for d in range(4): o += [f"v_cvt_pk_bf16_f32 v{XN+4*ks+d}, v{T(d)}, v{T(d)+1}"]
    return o
for ks in range(1, 36):
    for x in norm_ops(ks): norm.add(x, nb=max(0, KS_FIRST[ks] - 40), dl=KS_FIRST[ks] - 1)

def chk_ops(need, fl):
    return [f"s_add_u32 s{sA}, s{sT}, {need}", f"v_subrev_u32 v{fl}, s{sA}, v{fl}", f"v_cmp_eq_u32 s[{sCK}:{sCK+1}], s{sTH}, v{fl+1}",
            f"v_cmp_ge_u32 vcc, {15 - need}, v{fl}", f"s_and_b64 vcc, vcc, s[{sCK}:{sCK+1}]", f"s_cmp_eq_u64 vcc, -1"]
def poll_load(vaddr, lines=1): return VM(f"buffer_load_dwordx2 {vr(vFL, 2)}, v{vaddr}, {srd(SWS)}, 0 offen sc1", lines)
def poll_check(name, need, vaddr):
    chk = chk_ops(need, vFL)
    slow_paths.append(f"""L_slow_{name}:
  s_mov_b32 s{sD}, 0
L_spin_{name}:
  buffer_load_dwordx2 v[{vFL}:{vFL+1}], v{vaddr}, {srd(SWS)}, 0 offen sc1
  s_waitcnt vmcnt(0)
  """ + "\n  s_nop 1\n  ".join(chk) + f"""
  s_cbranch_scc1 L_back_{name}
  s_add_u32 s{sD}, s{sD}, 1
  s_cmp_lt_u32 s{sD}, 0x40000
  s_cbranch_scc1 L_spin_{name}
  s_branch L_back_{name}
""")
    g_ = 'gb' if name == 'kv' else 'poll'
    return TS(g_, f'poll{name}<') + [I(x) for x in chk] + [I(f"s_cbranch_scc0 L_slow_{name}"), I(f"L_back_{name}:")] + TS(g_, f'poll{name}>')
side.add([VM(f"buffer_load_dword v{vFL}, v{vFW}, {srd(SDB)}, 0 offen sc1", 1)], nb=100)
slow_paths.append(f"""L_slow_tag:
  s_mov_b32 s{sD}, 0
L_spin_tag:
  s_sleep 2
  buffer_load_dword v{vFL}, v{vFW}, {srd(SDB)}, 0 offen sc1
  s_waitcnt vmcnt(0)
  v_readfirstlane_b32 s{sT}, v{vFL}
  s_nop 1
  s_cmp_lg_u32 s{sT}, 0
  s_cbranch_scc1 L_back_tag
  s_add_u32 s{sD}, s{sD}, 1
  s_cmp_lt_u32 s{sD}, 0x40000
  s_cbranch_scc1 L_spin_tag
  s_branch L_back_tag
""")
side.add([f"v_readfirstlane_b32 s{sT}, v{vFL}", f"s_cmp_lg_u32 s{sT}, 0", "s_cbranch_scc0 L_slow_tag", "L_back_tag:",
          f"s_and_b32 s{sT}, s{sT}, -16", f"s_xor_b32 s{sTH}, s{sT}, {THI:#x}"], nb=160)
vFW, vFK, vFR, vFL2 = 4, 5, 0, 24
p2_setup = [f"v_accvgpr_read_b32 v{vDQ}, a{aST+3}"] + [f"v_add_u32 v{vDQ+n}, {n*8192}, v{vDQ}" for n in range(1, 4)]
s_setup = [f"v_accvgpr_read_b32 v{vDQ}, a{aST+4}"] + [f"v_add_u32 v{vDQ+n}, {n*(16*1152-1024)}, v{vDQ}" for n in range(1, 4)]
def p2_scalars():
    t0, t1, t2, t3 = sDM, sDM + 1, 100, 101
    o = [[f"s_and_b32 s{t0}, s{sJ}, 1", f"s_mul_i32 s{sCA}, s{t0}, 640", f"s_lshl_b32 s{t1}, s{t0}, 6", f"s_add_u32 s{sSC}, s{t1}, 512"]]
    for u in range(4):
        o.append([f"s_add_u32 s{t1}, s{sI}, {u}", f"s_and_b32 s{t1}, s{t1}, 3", f"s_lshl_b32 s{t1}, s{t1}, 7", f"s_add_u32 s{sUC+u}, s{t1}, s{sCA}"])
    for src in range(2):
        o.append([f"s_xor_b32 s{t0}, s{sJ}, {src}", f"s_and_b32 s{t1}, s{t0}, 1", f"s_mul_i32 s{t2}, s{t0}, 288", f"s_lshl_b32 s{t3}, s{t1}, 5"])
        o.append([f"s_add_u32 s{t3}, s{t3}, s{t2}", f"s_xor_b32 s{t1}, s{t1}, 1", f"s_lshl_b32 s{t1}, s{t1}, 8", f"s_add_u32 s{t2}, s{t2}, s{t1}"])
        o.append([f"s_mul_i32 s{t1}, s{sW}, 40", f"s_add_u32 s{t1}, s{t1}, s{t3}", f"s_mul_i32 s{sW2A[src]}, s{t1}, 1152", f"s_lshl_b32 s{t1}, s{sW}, 6"])
        o.append([f"s_add_u32 s{t1}, s{t1}, s{t3}", f"s_mul_i32 s{sSA[src]}, s{t1}, 1152", f"s_lshl_b32 s{t1}, s{sW}, 5", f"s_add_u32 s{t1}, s{t1}, s{t3}"])
        o.append([f"s_add_u32 s{t1}, s{t1}, 160", f"s_cmp_eq_u32 s{sW}, 3", f"s_cselect_b32 s{t1}, s{t2}, s{t1}", f"s_mul_i32 s{sW2B[src]}, s{t1}, 1152"])
        o.append([f"s_and_b32 s{t1}, s{sW}, 1", f"s_lshl_b32 s{t1}, s{t1}, 4", f"s_add_u32 s{t1}, s{t1}, s{t2}", f"s_mul_i32 s{sSS[src]}, s{t1}, 1152"])
        o.append([f"s_mul_i32 s{t0}, s{t0}, 36", f"s_lshl_b32 s{t1}, s{sW}, 3", f"s_lshr_b32 s{t2}, s{sW}, 1", f"s_lshl_b32 s{t2}, s{t2}, 2"])
        o.append([f"s_add_u32 s{t1}, s{t1}, s{t2}", f"s_add_u32 s{t1}, s{t1}, s{t0}", f"s_mul_i32 s{sWO5[src]}, s{t1}, 1152", f"s_add_u32 s{t1}, s{t0}, 16"])
        o.append([f"s_mul_i32 s{sWO6[src]}, s{t1}, 1152", f"s_cmp_eq_u32 s{sW}, 1", f"s_cselect_b32 s{t1}, 20, 16", f"s_cmp_eq_u32 s{sW}, 0",
                  f"s_cselect_b32 s{t1}, 0, s{t1}"])
        o.append([f"s_add_u32 s{t1}, s{t1}, s{t0}", f"s_mul_i32 s{sSE[src]}, s{t1}, 1152"])
    return o

lateq = Stream('late')
import re as _re
def _fix(t):
    t = t.text if isinstance(t, I) else t
    for a_, b_ in ((vY0, vR + 8), (vY1, vR + 9), (vY2, vR + 10)): t = _re.sub(rf"\bv{a_}\b", f"v{b_}", t)
    for a_, b_ in ((sA, 40), (sB, 41), (sC, 42), (sD, 43)): t = _re.sub(rf"\bs{a_}\b", f"s{b_}", t)
    return t
skip = 0
lt = []
for x in late:
    xs = x if isinstance(x, list) else [x]
    lt.append([_fix(y) for y in xs])
out_ = []
k = 0
while k < len(lt):
    it = lt[k]
    if it[0].startswith(f"v_cmp_eq_u32 vcc, 0, v{vL}"): k += 4; continue
    out_.append(it); k += 1
seln = next((n for n, it in enumerate(out_) if f"a{aSEL+3}," in it[0]), -1)
for n in range(seln + 1):
    out_[n] = [_re.sub(r"\bv4\b", f"v{vR+13}", _re.sub(r"\bv3\b", f"v{vR+12}", _re.sub(r"\bv2\b", f"v{vR+11}", t))) for t in out_[n]]
n = 0
while n < len(out_):
    it = out_[n]
    if len(it) == 1 and it[0].startswith("v_cmp"):
        m = n
        while "v_cndmask" not in out_[m][0]: m += 1
        it = sum(out_[n:m + 1], []); n = m
    lateq.add(it, nb=0, dl=GA_END - 1); n += 1
e0 = GA_END + 2
CSC = math.log2(math.e) / math.sqrt(18.0)
def rd_cvt(acc, n, dst, scale=None, relu=False, nb=e0, tb=vE, dl=10**9):
    for k0 in range(0, n, 8):
        m = min(8, n - k0)
        for k in range(m): epi.add(f"v_accvgpr_read_b32 v{tb+k}, a{acc+k0+k}", nb=nb, dl=dl)
        if scale:
            for k in range(m): epi.add(f"v_mul_f32 v{tb+k}, {scale}, v{tb+k}", nb=nb, dl=dl)
        for k in range(0, m, 2): epi.add(f"v_cvt_pk_bf16_f32 v{dst+(k0+k)//2}, v{tb+k}, v{tb+k+1}", nb=nb, dl=dl)
        if relu:
            for k in range(0, m, 2): epi.add(f"v_pk_max_i16 v{dst+(k0+k)//2}, v{dst+(k0+k)//2}, 0", nb=nb, dl=dl)
LO = f"s[{sLO}:{sLO+1}]"
kP, x8, vP_ = vH1, vH1 + 8, vH1 + 16
st = []
URGENT = set()
def KVST(text, lines):
    x = VM(text, lines); epi.add(x, nb=e0); st.append(x); URGENT.add(id(x))
rd_cvt(aT + 16, 16, kP)
KVST(f"buffer_store_dwordx4 {vr(kP)}, v{vL16}, {srd(SWS)}, s{sKVW} offen sc1", 8)
rd_cvt(aT + 48 + 4, 8, x8)
epi.add(f"v_cndmask_b32_e64 v{x8+6}, 0, v{kP+4}, {LO}", nb=e0); epi.add(f"v_cndmask_b32_e64 v{x8+7}, 0, v{x8+1}, {LO}", nb=e0)
epi.add(f"v_cndmask_b32_e64 v{kP+4}, v{kP+4}, v{x8}, {LO}", nb=e0)
epi.add(f"v_lshrrev_b32 v{vE+8}, 1, v{vL16}", nb=e0)
KVST(f"buffer_store_dwordx4 {vr(kP+4)}, v{vL16}, {srd(SWS)}, s{sKVW} offen offset:1024 sc1", 8)
epi.add(f"v_mov_b32 v{x8+4}, 0x3f803f80", nb=e0); epi.add(f"v_mov_b32 v{x8+5}, 0x3f803f80", nb=e0)
rd_cvt(aT + 32, 8, vP_)
KVST(f"buffer_store_dwordx2 {vr(x8+6, 2)}, v{vE+8}, {srd(SWS)}, s{sKVW} offen offset:2048 sc1", 4)
rd_cvt(aT + 40, 8, vP_ + 4)
KVST(f"buffer_store_dwordx4 {vr(vP_)}, v{vL16}, {srd(SWS)}, s{sKVW} offen offset:2560 sc1", 8)
rd_cvt(aT, 8, vQ, scale=f32(CSC))
KVST(f"buffer_store_dwordx4 {vr(vP_+4)}, v{vL16}, {srd(SWS)}, s{sKVW} offen offset:3584 sc1", 8)
rd_cvt(aT + 8, 8, vQ + 4, scale=f32(CSC))
KVST(f"buffer_store_dwordx4 {vr(x8+2)}, v{vVSC}, {srd(SWS)}, s{sKVW} offen offset:3584 sc1", 4)
rd_cvt(aT + 48, 4, vQ + 14, scale=f32(CSC))
epi.add(f"v_mov_b32 v{vQ+13}, 0x3f80", nb=e0)
epi.add(f"v_cndmask_b32_e64 v{vQ+8}, v{vQ+13}, v{vQ+4}, {LO}", nb=e0)
epi.add(f"v_cndmask_b32_e64 v{vQ+4}, v{vQ+4}, v{vQ+14}, {LO}", nb=e0)
epi.add(f"v_cndmask_b32_e64 v{vQ+13}, v{vQ+13}, v{vQ+15}, {LO}", nb=e0)
for k in (9, 10, 11, 12, 14, 15): epi.add(f"v_mov_b32 v{vQ+k}, 0", nb=e0)
hst = {}
hq = Stream('hq')
sHT = 51
def hx_store(k, reg):
    o = [I(f"s_add_u32 s{sHT}, s{sHXW}, {1024*(k & ~3)}")] if (k % 4 == 0 or k == 18) else []
    hst[k] = VM(f"buffer_store_dwordx4 {vr(reg)}, v{vL16}, {srd(SWS)}, s{sHT} offen offset:{1024*(k & 3)} sc1", 8)
    return o + [hst[k]]
for T in range(4):
    g_ = GA_END + 56 + 14*T
    rd_cvt(aT + 64 + 16*T, 16, vH1 + 8*T, relu=True, dl=g_)
    hq.add(hx_store(2*T, vH1 + 8*T), nb=g_, dl=g_ + 6); hq.add(hx_store(2*T + 1, vH1 + 8*T + 4), nb=g_ + 6, dl=g_ + 12)

def publish(count, waits):
    g_ = 'gb' if count == 1 else 'pub'
    return TS(g_, f'pub{count}<') + [WAITVM(*waits)] + TS(g_, f'pub{count}>') + [I(f"s_add_u32 s{sB}, s{sT}, {count}"), I(f"v_mov_b32 v{vFL2}, s{sB}"),
            VM(f"buffer_store_dwordx2 {vr(vFL2, 2)}, v{vFW}, {srd(SWS)}, s{sFW} offen sc1", 1)]
side.add(f"v_mov_b32 v{vFL2+1}, s{sTH}", nb=GA_END + 1)
poi = []
pq = Stream('pq')
side.add(publish(1, st + poi), nb=GA_END + OPT['kvpub'])
side.add(poll_load(vFK, 12), nb=GA_END + OPT['kvpoll'])
kvchk = side.add(poll_check('kv', 1, vFK), nb=GA_END + OPT['kvchk'], dl=GA_END + OPT['kvchk'])
KVC.nb = max(KVC.nb, GA_END + OPT['kvchk'])
vKL, vKXL = vVS, vVSC
side.add([f"v_add_u32 v{vKL}, s{sM0K}, v{vL16}", f"v_lshrrev_b32 v{vKXL}, 1, v{vL16}", f"v_add_u32 v{vKXL}, s{sM0K}, v{vKXL}"], nb=GA_END + OPT['kvchk'], dl=BKV)
if OPT['mb']:
    for t in range(9):
        epi.add(f"v_mov_b32 v{vR+4*t+2}, 0x3f803f80", nb=GA_END + 112, dl=BKV); epi.add(f"v_mov_b32 v{vR+4*t+3}, 0", nb=GA_END + 112, dl=BKV)
rld = []
def kread(h, t): return I(f"ds_read_b128 {Kf(h, t)}, v{vKL} offset:{KVB*t + 1024*h}")
for k, t in enumerate(TORD):
    x = I(f"ds_read_b64 {vr(vR + RS*t, 2)}, v{vKXL} offset:{KVB*t + 2048}"); rld.append(x)
    gaps[BKV + k // 2].post += [x]
for k, (h, t) in enumerate(steps):
    gaps[min(BKV + 2 + k, P1[k][0] - 3) if k >= 4 else BKV + k].post += [kread(h, t)]
blk = [f"  s_cmp_ge_u32 s{sI}, 2", "  s_cbranch_scc1 L_nobias", f"  s_lshl_b32 s{sA}, s{sI}, 2", f"  s_add_u32 s{sA}, s{sA}, s{sW}",
       "  s_mov_b32 exec_lo, 0"]
for t in range(8):
    blk += [f"  s_cmp_ge_u32 s{sA}, {8 - t}", f"  s_cbranch_scc1 L_bias_done", f"  v_mov_b32 v{vR+RS*t}, 0xf149", f"  v_mov_b32 v{vR+RS*t+1}, 0xf149"]
blk += ["L_bias_done:", "  s_mov_b32 exec_lo, -1", "  s_nop 1", "L_nobias:"]
gaps[P1[0][1]].pre += [WAITLG(*rld), RAW("\n".join(blk))]

epi.add([f"v_and_b32 v{vTT}, 31, v{vL}", f"v_lshrrev_b32 v{vTT+1}, 5, v{vL}", f"v_lshlrev_b32 v{vTT+1}, 2, v{vTT+1}",
         f"v_sub_u32 v{vTT}, v{vTT}, v{vTT+1}"], nb=GB_END)
epi.add([f"v_cvt_f32_i32 v{vTT}, v{vTT}", f"v_add_f32 v{vTT}, 0.5, v{vTT}", f"v_mul_f32 v{vTT+1}, {f32(1e30)}, v{vTT}"], nb=GB_END)
for k in range(16):
    cc = 8*(k >> 2) + (k & 3)
    epi.add(f"v_sub_f32 v{vM8+k}, {f32(cc*1e30)}, v{vTT+1}", nb=GB_END, dl=P1[7][0] - 1)
    epi.add(f"v_min_f32 v{vM0+k}, 0, v{vM8+k}", nb=GB_END, dl=P1[7][0] - 1)
    epi.add(f"v_min_f32_e64 v{vM8+k}, 0, -v{vM8+k}", nb=GB_END, dl=P1[7][0] - 1)
for T in range(5):
    g_ = [GB_END + int(x) for x in OPT['h2g'].split(',')][2*T:2*T+2]
    rd_cvt(aG + 16*T, 16, vH2 + 8*T, relu=True, nb=GB_END + 2, tb=vTT, dl=g_[0])
    hq.add(hx_store(8 + 2*T, vH2 + 8*T), nb=g_[0], dl=g_[0] + 2); hq.add(hx_store(9 + 2*T, vH2 + 8*T + 4), nb=g_[1], dl=g_[1] + 2)

for g in range(GA_END, GA_END + 24): gaps[g].budget = OPT['kvbud']
if OPT['hf']:
    for g in range(28): gaps[g].budget = 6
vMX = 16
def max_ops(u, half):
    h, t = steps[u]; S = vSB + 16*(u % 3) + 8*half
    o = []
    for k in range(4):
        acc = vMX + 2*h + (k & 1)
        if TORD.index(t) == 0 and half == 0 and k < 2: o.append(I(f"v_max_f32 v{acc}, v{S+2*k}, v{S+2*k+1}"))
        else: o.append(I(f"v_max3_f32 v{acc}, v{acc}, v{S+2*k}, v{S+2*k+1}"))
    return o
def fin_max(h):
    m = vMX + 2*h
    return [I(f"v_max_f32 v{m}, v{m}, v{m+1}"), I(f"v_mov_b32 v{m+1}, v{m}"), I(f"v_permlane32_swap_b32 v{m}, v{m+1}"),
            I(f"v_max_f32 v{m}, v{m}, v{m+1}"), I(f"v_sub_f32 v{m}, 0, v{m}")] + ([] if not OPT['mb'] else
           [I(f"v_cvt_pk_bf16_f32 v{m+1}, v{m}, v{m}"), I(f"v_lshlrev_b32 v{m+1}, 16, v{m+1}"), I(f"v_sub_f32 v{m}, v{m}, v{m+1}"),
            I(f"v_cvt_pk_bf16_f32 v{m}, v{m+1}, v{m}"), I(f"v_cndmask_b32_e64 v{vQ+10+4*h}, 0, v{m}, {LO}")])
def cm_ops(h): return [I(f"v_mov_b32 v{vCM+k}, v{vMX+2*h}") for k in range(16)]
for u in range(2, NS):
    gaps[P1[u][0]].post += max_ops(u - 2, 0); gaps[P1[u][1]].post += max_ops(u - 2, 1)
gaps[P1[11][0]].post += fin_max(0)
for k in range(4 if not OPT['mb'] else 0): gaps[P1[12 + k][0]].post += cm_ops(0)[4*k:4*k+4]
for u in range(2):
    gaps[P2s[u]['qa']].post += max_ops(NS - 2 + u, 0); gaps[P2s[u]['qb']].post += max_ops(NS - 2 + u, 1)
gaps[P2s[2]['pv1']].post += fin_max(1)
for u in range(1, NS + 1):
    S = vSB + 16*((u - 1) % 4)
    ex = [I(f"v_exp_f32 v{S+k}, v{S+k}") for k in range(16)]
    cv = [I(f"v_cvt_pk_bf16_f32 v{S+k}, v{S+2*k}, v{S+2*k+1}") for k in range(8)]
    e = P2s[u]
    if u == 1:
        gaps[e['qa']].post += ex[:8]; gaps[e['qb']].post += ex[8:] + cv
    elif u < NS:
        gaps[e['qa']].post += ex[:5]; gaps[e['qb']].post += ex[5:10]
        gaps[e['pv0']].post += ex[10:14] + cv[:2]; gaps[e['pv1']].post += ex[14:] + cv[2:]
    else:
        gaps[e['pv0']].post += ex[:10]; gaps[e['pv1']].post += ex[10:] + cv
    if u + 1 < NS and steps[u + 1][1] in (0, 8) and not OPT['mb']:
        h, t = steps[u + 1]; Sn = vSB + 16*((u + 1) % 4); M = vM0 if t == 0 else vM8
        gaps[e['pv1']].post += [I(f"v_add_f32 v{Sn+k}, v{M+k}, v{vMX+2*h}") for k in range(16)]
if not OPT['mb']: gaps[P2s[7]['pv0']].post += cm_ops(1)
for g in range(GB_END, ATT_END): gaps[g].budget = OPT['abud'] if g < P1_END else OPT['a2bud']
onq = Stream('onorm')
def onorm(h, nb, dl, tb):
    O = aO + 16*h; rc = 22
    A = lambda t: onq.add(t, nb=nb, dl=dl)
    A(f"v_accvgpr_read_b32 v{rc}, a{O+12}")
    for k in range(8): A(f"v_accvgpr_read_b32 v{tb+k}, a{O+k}")
    A(f"v_rcp_f32 v{rc}, v{rc}")
    A(f"v_accvgpr_read_b32 v{rc+1}, a{O+8+2*h}")
    for k in range(8): A(f"v_mul_f32 v{tb+k}, v{rc}, v{tb+k}")
    for k in range(4): A(f"v_cvt_pk_bf16_f32 v{vOX+4*h+k}, v{tb+2*k}, v{tb+2*k+1}")
    A(f"v_accvgpr_read_b32 v{tb}, a{O+9+2*h}")
    A(f"v_mul_f32 v{rc+1}, v{rc}, v{rc+1}"); A(f"v_mul_f32 v{tb}, v{rc}, v{tb}")
    A(f"v_cvt_pk_bf16_f32 v{tb}, v{rc+1}, v{tb}")
    A(f"v_cndmask_b32_e64 v{vOX+8+h}, 0, v{tb}, {LO}")
    if h == 0 and OPT['mb']: A(f"v_mov_b32 v{vOX+10}, 0")
P0 = ATT_END
onorm(0, P2s[11]['pv0'], P2s[16]['qa'], vTT)
hq.add(hx_store(18, vOX), nb=P2s[16]['qa'], dl=P0)
onorm(1, P0 + 2, P0 + 18, vTT)
for k in (19, 20): hq.add(hx_store(k, vOX + 4*(k - 18)), nb=P0 + 18, dl=P0 + 30)
ev = []
PLD = {}
def ploads(ks, g0, d):
    for n, k in enumerate(ks):
        o = [I(f"s_add_u32 s{sRS+1}, s{sHXR}, {1024*(k & ~3)}")] if (k % 4 == 0 or k == 18) else []
        x = VM(f"buffer_load_dwordx4 {ar(aPF(k))}, v{vL16}, {srd(SWS)}, s{sRS+1} offen offset:{1024*(k & 3)} sc1", 8)
        PLD[id(x)] = POS[(0, 1, k)] - 20
        ev.append((g0 + d*n, [o + [x]]))
ev.append((GA_END + 140, [[I(f"s_xor_b32 s{sA}, s{sFW}, 8"), I(f"v_mov_b32 v{vFK}, s{sA}")], publish(2, [hst[k] for k in range(8)])]))
g1 = GB_END + OPT['h1c']
ev.append((g1 - 16, [[poll_load(vFK)]])); ev.append((g1, [poll_check('h1', 2, vFK)])); ploads(range(8), g1 + 1, OPT['h1d'])
ev.append((P1_END + OPT['p3'], [publish(3, [hst[k] for k in range(8, 18)])]))
g2 = P0 + OPT['h2c']
ev.append((g2 - 16, [[poll_load(vFK)]])); ev.append((g2, [poll_check('h2', 3, vFK)])); ploads(range(8, 18), g2 + 1, OPT['h2d'])
ev.append((P0 + OPT['p4'], [publish(4, [hst[k] for k in (18, 19, 20)])]))
g3_ = P0 + OPT['oc']
ev.append((g3_ - 24, [[poll_load(vFK)]])); ev.append((g3_, [poll_check('o', 4, vFK)])); ploads((18, 19, 20), g3_ + 1, 3)
vPW, vPR, vOUT, vOUTS = 16, 17, 18, 19
RXT = [96, 104, 248, 200, 208]
ev.append((P0 + 132, [[I(f"v_accvgpr_read_b32 v{vPW}, a{aST}"), I(f"v_accvgpr_read_b32 v{vPR}, a{aST+1}"), I(f"v_accvgpr_read_b32 v{vOUT}, a{aST+2}")],
                      [I(f"v_accvgpr_read_b32 v{vS2}, a{aST+5}"), I(f"v_lshlrev_b32 v{vOUTS}, 26, v{vL}"), I(f"v_and_b32 v{vOUTS}, {OOB:#x}, v{vOUTS}")],
                      [I(f"v_or_b32 v{vOUTS}, v{vOUTS}, v{vOUT}")]]))
def p2_epi(u):
    A = UACC[u]
    o = [[I(f"s_add_u32 s{sRS}, s{sPB}, {u*PU}")]]
    sts = []
    for q4 in range(4 if u < 4 else 2):
        for k in range(4): o.append([I(f"v_cvt_pk_bf16_f32 v{vPK+4*q4+k}, v{A+8*q4+2*k}, v{A+8*q4+2*k+1}")])
        x = VM(f"buffer_store_dwordx4 {vr(vPK+4*q4)}, v{vPW}, {srd(SWS)}, s{sRS} offen offset:{128*q4} sc1", 8)
        o.append([x]); sts.append(x)
    return o, sts
DPR = {2: 152, 3: 216, 4: 232}
def rdst(u, n): return vr(DPR[u] + 4*n) if (OPT['dp'] and u >= OPT['dpu']) else ar(16*u + 4*n)
def red_loads(u):
    o = [[I(f"s_add_u32 s{sRS+1}, s{sPB}, {u*PU}")]]
    for n in range(4 if u < 4 else 2):
        o.append([VM(f"buffer_load_dwordx4 {rdst(u, n)}, v{vPR}, {srd(SWS)}, s{sRS+1} offen offset:{2048*(n&1) + 256*(n>>1)} sc1", 8)])
    return o
def col(u): return f"s{sUC+u}" if u < 4 else f"s{sSC}"
def x_load(u): return [VM(f"buffer_load_dwordx2 {vr(RXT[u], 2)}, v{vOUT if u < 4 else vOUTS}, {srd(SX)}, {col(u)} offen", 4)]
def red_comp(u):
    x = RXT[u]; C = x + 4
    o = [[I(f"v_lshlrev_b32 v{C}, 16, v{x}")], [I(f"v_and_b32 v{C+1}, 0xffff0000, v{x}")],
         [I(f"v_lshlrev_b32 v{C+2}, 16, v{x+1}")], [I(f"v_and_b32 v{C+3}, 0xffff0000, v{x+1}")]]
    mm = [[I(f"v_mfma_f32_16x16x32_bf16 {vr(C)}, {ar(aSEL if n < 2 else aSEL2)}, {rdst(u, n)}, {vr(C)}")] for n in range(4 if u < 4 else 2)]
    fin = [[I(f"v_cvt_pk_bf16_f32 v{x+2}, v{C}, v{C+1}")], [I(f"v_cvt_pk_bf16_f32 v{x+3}, v{C+2}, v{C+3}")],
           [VM(f"buffer_store_dwordx2 {vr(x+2, 2)}, v{vOUT if u < 4 else vOUTS}, {srd(SOUT)}, {col(u)} offen sc1", 4)]]
    return o, mm, fin
pst = {}
red = Stream('red')
for u in range(4):
    o, pst[u] = p2_epi(u)
    for x in o: epi.add(x, nb=UEND[u] + 3, dl=min(UEND[u] + (60 if u == 1 else 36), NG - 1))
ev.append((UEND[1] + OPT['p6'], [publish(6, pst[0] + pst[1])]))
if not (OPT['dp'] and OPT['dpu'] == 2): ev.append((UEND[2] + OPT['p7'], [publish(7, pst[2])]))
for u in range(5): ev.append((UEND[1] + 64 + 4*u, [x_load(u)]))
ev.append((NG - OPT['rbp'], [[poll_load(vFR)]]))
vDP = 216
if OPT['dp']:
    ev.append((P0 + 134, [[I(f"v_mov_b32 v{92+k}, -1") for k in range(4)]]))
    for u in range(OPT['dpu'], 5):
        for n in range(4 if u < 4 else 2):
            x = VM(f"buffer_store_dwordx4 {vr(92)}, v{vPR}, {srd(SWS)}, s{sRS+1} offen offset:{2048*(n&1) + 256*(n>>1)} sc1", 8); poi.append(x)
            ev.append((P0 + 134 + 5*len(poi), [([I(f"s_add_u32 s{sRS+1}, s{sPB}, {u*PU}")] if n == 0 else []) + [x]]))
    ev.append((P0 + 205, [publish(5, poi)]))
    ev.append((P0 + 262, [[I(f"s_lshl_b32 s{sA}, s{sI}, 9"), I(f"v_lshlrev_b32 v20, 3, v{vL}"), I(f"v_add_u32 v20, s{sA}, v20")], [poll_load(20, 4)]]))
    ev.append((P0 + 296, [poll_check('all', 5, 20)]))
for gp, items in sorted(ev, key=lambda x: x[0]):
    for it in items: side.add(it, nb=gp, dl=min([PLD.get(id(x), 10**9) for x in it]))
pf = Stream('pf')
if OPT['stch']:
    TCH = [[f"s_cmp_eq_u32 s{sW}, 1", f"s_cselect_b32 s3, 0, {OOB:#x}", f"v_min_u32 v20, 35, v{vL}", f"v_mul_u32_u24 v20, 1152, v20"],
           [f"v_or_b32 v20, s3, v20", f"s_and_b32 s3, s2, 3", f"s_mul_i32 s3, s3, {1152*1152}", f"s_lshr_b32 s43, s2, 3"],
           [f"s_mul_i32 s43, s43, {36*1152}", f"s_add_u32 s3, s3, s43", VM(f"buffer_load_dword v20, v20, {srd(S2)}, s3 offen offset:512", 9)]]
for g_ in [int(x) for x in OPT['cpf'].split(',') if x]:
    pf.add([f"s_lshr_b32 s3, s2, 3", f"s_lshl_b32 s3, s3, 2", f"s_add_u32 s3, s3, s{sW}", f"s_lshl_b32 s3, s3, 9"], nb=g_)
    pf.add([f"v_accvgpr_read_b32 v{vFL}, a{aST+6}", VM(f"buffer_load_dword v{vFL}, v{vFL}, {srd(SCODE)}, s3 offen", 1)], nb=g_)

if OPT['stch']:
    q_ = list(pf.q); pf.q.clear()
    for it in q_[:2]: pf.q.append(it)
    for it in TCH: pf.add(it, nb=P1_END + 40)
    for it in q_[2:]: pf.q.append(it)
s8 = stats(8)
c0n = len(chunks[0].items)
def c0_left(): return any(any(x is d for d in chunks[0].dmas for x in it) for it in pend)
k8 = 0
while c0_left():
    E(pend.popleft()); E(s8[k8:k8+4]); k8 += 4
E(s8[k8:])
for k in range(4): E(f"v_add_f32 v{vST+k}, v{vST+k}, v{vST+4+k}")
E(f"v_add_f32 v{vST}, v{vST}, v{vST+1}"); E(f"v_add_f32 v{vST+2}, v{vST+2}, v{vST+3}")
E(f"v_mov_b32 v{vST+1}, v{vST}"); E(f"v_mov_b32 v{vST+3}, v{vST+2}")
if pend: E(pend.popleft())
E(f"v_permlane32_swap_b32 v{vST}, v{vST+1}"); E(f"v_permlane32_swap_b32 v{vST+2}, v{vST+3}")
E(f"v_add_f32 v{vST}, v{vST}, v{vST+1}"); E(f"v_add_f32 v{vST+2}, v{vST+2}, v{vST+3}")
E(f"v_mul_f32 v{vST}, {f32(1/576)}, v{vST}")
E(f"v_mul_f32 v{vST+2}, {f32(1/576)}, v{vST+2}")
E(f"v_fma_f32 v{vST+2}, -v{vST}, v{vST}, v{vST+2}")
E(f"v_max_f32 v{vST+2}, 0, v{vST+2}")
E(f"v_add_f32 v{vST+2}, {f32(1e-5)}, v{vST+2}")
E(f"v_rsq_f32 v{vRS}, v{vST+2}")
if pend: E(pend.popleft())
E(f"v_mul_f32_e64 v{vNB}, -v{vST}, v{vRS}")
n0 = norm_ops(0)
E(n0[:8])
E(TS('pro', 'c0<')); E(WAITVM(*chunks[0].dmas)); E(TS('pro', 'c0w')); E("s_barrier"); E(TS('pro', 'b0'))
for pos_ in sorted(k for k in reads_at if k < 0):
    for g in reads_at[pos_]: E(emit_reads(g))
E(n0[8:])
STAMP("ga0")

for it in pend: dmaq.add(it, nb=0, dl=0)
for c_ in list(SUB)[OPT['qpro']:]:
    for it in SUB[c_].items: dmaq.add(it, nb=0, dl=0)
chunks[1].nb = 0
order = chunks[1:18] + [KVC] + chunks[18:]
for ch in order:
    if ch.n == 18 and ch is not KVC:
        for x_ in p2_scalars(): dmaq.add(x_, nb=0)
        dmaq.add(p2_setup, nb=0)
    if ch.kind == 'p2s' and ch.src == 0: dmaq.add(s_setup, nb=0)
    if ch.n >= 18 and ch is not KVC: ch.nb = max(ch.nb, GB_END + OPT['dmaat'])
    for k_, it in enumerate(ch.items): dmaq.add(it, nb=(ch.nb if not (ch is KVC and k_ < ch.segstart[0]) else GA_END + OPT['kvchk']), dl=(BKV if ch is KVC else min(first_use[o_] for o_ in order[order.index(ch):] if o_ is not KVC) - PD))
MT = [int(x) for x in OPT['mt'].split(',') if x]
if MT:
    q_ = list(dmaq.q); dmaq.q.clear()
    for it in q_:
        dmaq.q.append(it)
        for k_, n_ in enumerate(MT):
            if it[2][0] is chunks[n_].dmas[-1]:
                vt = vR + 10
                dmaq.add([f"s_cmp_eq_u32 s{sW}, {k_ % 4}", f"s_cselect_b32 s43, 0, {OOB:#x}", f"v_min_u32 v{vt}, {162 // len(MT) - 1}, v{vL}", f"v_lshlrev_b32 v{vt}, 7, v{vt}"], nb=0, dl=0)
                dmaq.add([f"v_or_b32 v{vt}, s43, v{vt}", f"s_mul_i32 s43, s2, {162*128}", f"s_add_u32 s43, s43, {k_ * (162 // len(MT)) * 128}",
                          VM(f"buffer_load_dword v{vt+1}, v{vt}, {srd(S2)}, s43 offen", 16)], nb=0, dl=0)
marks = {GA_END: 'gb0', GB_END: 'att0', P1_END: 'att2', ATT_END: 'p2_0'}
if 'p2' in OPT['ts'].split(','):
    for k_ in range(1, 9): marks[ATT_END + 42*k_] = f'q{k_}'
fr_list = [g for g in range(NG) if gaps[g].frag is not None]
fr_idx = {g: k for k, g in enumerate(fr_list)}
backlog = 200.0
last_dma = [-99]
issued = {id(x) for x in prog}
lastg = {}
def emit_items(ins, g):
    global backlog
    c = 0
    for x in ins:
        E(x); c += x.cost; issued.add(id(x))
        if id(x) in LINES:
            backlog += LINES[id(x)] * 4 * OPT['lc']; lastg[id(x)] = g
    return c
for g, G in enumerate(gaps):
    if g in marks: STAMP(marks[g])
    if g == GA_END - 4:
        for _ in range(OPT['pad']): E('s_nop 0')
    for s_ in (norm, lateq, pq, epi, onq, hq, side, red, pf):
        lastdl = max([k for k, (nb, dl, _) in enumerate(s_.q) if dl <= g] + [-1])
        for _ in range(lastdl + 1):
            nb, dl, ins = s_.q.popleft()
            assert nb <= g, (s_.name, nb, dl, g, ins)
            emit_items(ins, g)
    if g in bar_at:
        key = bar_at[g]
        grp_ = 'b' + key.kind[:2]; nm_ = 'KV' if key is KVC else str(key.n)
        while not all(id(d) in issued for d in key.dmas):
            print("late DMA", nm_, g, file=sys.stderr)
            nb, dl, ins = dmaq.q.popleft(); assert nb <= g; emit_items(ins, g)
        E(TS(grp_, f'B{nm_}<')); E(WAITVM(*key.dmas)); E(TS(grp_, f'B{nm_}|')); E("s_barrier")
        if grp_ != 'bp2': E(TS(grp_, f'B{nm_}>'))
    E(G.pre)
    if G.frag is not None:
        k = fr_idx[g]
        wq = OPT['wq']
        if k % wq == 0:
            kk = k + wq - 1
            while kk > k and not (kk < len(fr_list) and gaps[fr_list[kk]].rd and fr_list[kk] - g <= wq): kk -= 1
            if kk > k: E(WAITLG(*gaps[fr_list[kk]].rd))
    E(G.m)
    cost = 0
    for gg in reads_at.get(g, []):
        for x in emit_reads(gg):
            E(x)
            if x.kind != 'dsr': cost += 1
    if not reads_at.get(g): cost -= 2
    for x in G.post: E(x); cost += x.cost
    fixed = cost
    vm_done = False
    urgent_dma = dmaq.q and dmaq.q[0][1] - g < OPT['dmarg']
    for s_ in ((dmaq, norm, pf, side, hq, pq, red, onq, epi, lateq) if (urgent_dma or g < GB_END) else (side, hq, pf, red, onq, epi, dmaq)):
        n_ = 0
        while s_.q and s_.q[0][0] <= g:
            ins = s_.q[0][2]
            isvm = any(id(x) in LINES for x in ins)
            if isvm and s_ is dmaq and g >= GA_END - 40 and g - last_dma[0] < (OPT['attp'] if GB_END <= g < ATT_END else OPT['dsp']) and s_.q[0][1] - g > OPT['dmarg']: break
            if isvm and any(x.kind == 'vst' and LINES[id(x)] >= 4 and id(x) not in URGENT for x in ins) and backlog > OPT['stb']: break
            if isvm and (vm_done or backlog > OPT['tcp']) and not any(id(x) in URGENT for x in ins): break
            lim = max(G.budget, fixed + 1) if s_ in (dmaq, side, hq, pf) else G.budget
            if P1_END <= g < ATT_END and s_ is onq: lim = fixed + 2
            if cost >= lim: break
            s_.q.popleft(); cost += emit_items(ins, g); n_ += 1
            if isvm: vm_done = True
            if isvm and s_ is dmaq: last_dma[0] = g
            if s_ is dmaq: break
    backlog = max(0.0, backlog - max(33.0, 8 + 4.4 * (cost + 2.5)))
assert not dmaq.q and not norm.q and not epi.q and not onq.q, (len(dmaq.q), len(norm.q), len(epi.q))
for _, _, ins in side.q: E(ins)
STAMP('tail0')
def comp(p):
    o, mm, fin = red_comp(p); E(o + mm + fin)
assert not hq.q and not pf.q
o, pst[4] = p2_epi(4)
if OPT['t2'] and not OPT['dp']: E(o[:6]); E(publish(8, pst[3])); E(o[6:])
else: E(o)
E(poll_check('rb', 7 if (OPT['dpu'] == 3 or not OPT['dp']) else 6, vFR))
if not OPT['dp'] and not OPT['t2']:
    E(red_loads(0)); E(red_loads(1))
    E(publish(9, pst[4]))
    STAMP('pub9')
    E(red_loads(2))
    E(poll_load(vFR))
    comp(0); comp(1)
    E(poll_check('r9', 9, vFR))
    STAMP('got9')
    E(red_loads(3)); E(red_loads(4))
    for u in range(2, 5): comp(u)
elif not OPT['dp']:
    E(red_loads(0)); E(red_loads(1))
    E(publish(9, pst[4]))
    STAMP('pub9')
    E(poll_load(vFR))
    E(red_loads(2))
    comp(0)
    E(poll_check('r8', 8, vFR))
    E(red_loads(3))
    E(poll_load(vFR))
    comp(1); comp(2)
    E(poll_check('r9', 9, vFR))
    STAMP('got9')
    E(red_loads(4))
    comp(3); comp(4)
else:
    for u in range(OPT['dpu']): E(red_loads(u))
    E(f"s_mov_b32 s{sC}, 0")
    comp(0)
    STAMP('c0')
    E("L_dp:")
    regs_ = []
    for u in range(OPT['dpu'], 5):
        E(red_loads(u)); regs_ += list(range(DPR[u], DPR[u] + (16 if u < 4 else 8)))
    E(f"v_max_u32 v{vFL}, v{regs_[0]}, v{regs_[1]}")
    for k in range(2, len(regs_), 2): E(f"v_max3_u32 v{vFL}, v{vFL}, v{regs_[k]}, v{regs_[k+1]}")
    E(f"s_add_u32 s{sC}, s{sC}, 1")
    E(f"v_cmp_eq_u32 vcc, -1, v{vFL}")
    E(f"s_cmp_gt_u32 s{sC}, 0x10000")
    E("s_cbranch_scc1 L_dp_done")
    E("s_nop 2")
    E("s_cbranch_vccnz L_dp")
    E("L_dp_done:")
    STAMP('got')
    for u in (1, 2, 3, 4): comp(u)
if OPT['timing']:
    E("s_waitcnt vmcnt(0)"); STAMP("end")
    E(f"s_lshl_b32 s{sA}, s2, 10"); E(f"s_lshl_b32 s{sB}, s{sW}, 8"); E(f"s_add_u32 s{sA}, s{sA}, s{sB}"); E(f"s_add_u32 s{sA}, s{sA}, {DBGW}")
    E(RAW("  s_memrealtime s[98:99]\n  s_waitcnt lgkmcnt(0)\n  v_writelane_b32 v11, s98, 63\n  s_nop 4"))
    E(f"v_lshlrev_b32 v{vT0}, 2, v{vL}")
    E(f"buffer_store_dword v11, v{vT0}, {srd(SWS)}, s{sA} offen")
E("L_end:")
E("s_endpgm")

def hoist_vmem(prog):
    out_ = []
    n_ = 0
    for x in prog:
        if x.kind in ('dma', 'vld', 'vst'):
            k = len(out_)
            while k > 0:
                p = out_[k - 1]
                if p.kind == 'mfma32': break
                if p.kind not in ('dsr', 'valu', 'trans', 'salu') or (p.W & (x.R | x.W)) or (p.R & x.W) or len(out_) - k > 24: k = -1; break
                k -= 1
            if k > 0 and k < len(out_):
                out_.insert(k, x); n_ += 1; continue
        out_.append(x)
    print("hoisted", n_, file=sys.stderr)
    return out_
if OPT['hoist']: prog = hoist_vmem(prog)
seen = set()
for x in prog:
    if x.kind in ('pvm', 'plg'):
        for t in x.target: assert id(t) in seen, ("wait on unissued op", t)
    seen.add(id(x))
wr = set(); pos_of = {id(x): n for n, x in enumerate(prog)}
for x in prog:
    if x.kind in ('mfma32', 'mfma16'):
        for r in x.R: assert r in wr, ("MFMA reads unwritten register", r, x.text)
    wr |= x.W
for x in prog:
    if id(x) in PLD: assert pos_of[id(x)] < pos_of[id(gaps[PLD[id(x)] + 20].m)]
p1 = insert_waits(prog)
p2, nn = insert_nops(p1)
hdr = open('parallel_sum__sliding_block__dense_activation_relu__prompt.s.ref').read().split('\n')
hdr = [l for l in hdr if l.startswith(';') and '@launch' not in l]
txt = "\n".join(hdr) + f"\n; @launch grid=(256,1,1) block=(256,1,1) lds={LDS_TOTAL}\n"
txt += """; Generated by a hand-written scheduling script (own work).  One workgroup per CU: (token tile i of 128 rows, split j of 16).
;   1. x tile -> LDS -> registers, LayerNorm statistics, normalised bf16 B fragments
;   2. transposed GEMMs W^T * xn^T (weights HBM/L2 -> LDS by DMA, transposing LDS reads): q,k,v of one head pair, 288 hidden units
;   5. [h | o] * [W2 ; Wo] for half of the output columns over two splits, bf16 partial sums to d_ws
"""
txt += f""".amdgcn_target "amdgcn-amd-amdhsa--gfx950"
.text
.globl {KNAME}
.p2align 8
.type {KNAME},@function
{KNAME}:
"""
txt += render(p2) + "".join(slow_paths) + "L_code_end:\n  s_endpgm\n.fill 64, 4, 0xbf800000\n"
txt += f""".section .rodata,"a"
.p2align 6
.amdhsa_kernel {KNAME}
  .amdhsa_next_free_vgpr 512
  .amdhsa_next_free_sgpr 102
  .amdhsa_accum_offset 256
  .amdhsa_group_segment_fixed_size 0
  .amdhsa_kernarg_size 72
  .amdhsa_user_sgpr_count 2
  .amdhsa_user_sgpr_kernarg_segment_ptr 1
  .amdhsa_system_sgpr_workgroup_id_x 1
.end_amdhsa_kernel
"""
if OPT['timing']: txt += "; stamps: " + " ".join(stamp_names) + "\n"
assert len(stamp_names) <= 62
open(sys.argv[1], 'w').write(txt)
print("instrs", len(p2), "nop states", nn, dict(Counter(x.kind for x in p2)), file=sys.stderr)
print("chunks (n, base, nb, last dma gap, barrier gap)", [(c.n, c.base, getattr(c, 'nb', None), lastg.get(id(c.dmas[-1])), (first_use[c] - PD) if c is not KVC else BKV) for c in chunks + [KVC]], file=sys.stderr)
print("h stores", {k: lastg.get(id(v)) for k, v in hst.items()}, "ploads", sorted(lastg[i_] for i_ in PLD), file=sys.stderr)
print("kv stores at", [lastg[id(x)] - GA_END for x in st], file=sys.stderr)
```

```python
import sys, math, struct
from collections import deque, Counter
from asmlib import *

KNAME = "parallel_sum__sliding_block__dense_activation_relu__prompt_kernel"
OPT = dict(ts='', dbgt=0, timing=0, PD=7, budget=3, tcp=180, lc=2.2, kvpub=52, kvpoll=88, kvchk=110, kvbud=6, abud=7, a2bud=1, pubat=16, pollat=40, chkat=30, dmarg=45, slot0=3, c1pro=1, pf=0, xco=1, dsp=3, stb=35, pre=2, inl=0, osc=1, rt=0, tail=1, wq=4, lates=0, hf=1, rbp=24, dp=0, t2=0, qv=0, tl='B,L0,P,L1,L2,C0,Q,C1,K,L3,L4,C2,C3,C4', h2g='16,20,24,28,32,36,39,42,45,48', mb=1, z3=1, na=4, ntm=0, pad=0, mt='', swp=0, pog=30, pod=20, dpu=3, h1c=20, h1d=4, p3=44, h2c=26, h2d=4, p4=60, oc=130, dmaat=50, p6=85, p7=40, stch=1, x1=5, c0at=99, cpf='330,720,860', ntop=40, hoist=1, in0=4, rj=0, h0=0, qpro=1, kvl=12, attp=4)
for a in sys.argv[2:]:
    k, v = a.split('=')
    OPT[k] = (v if k in ('ts', 'cpf', 'mt', 'h2g', 'tl') else float(v) if k == 'lc' else int(v))

def f32(x): return "0x%08x" % struct.unpack('<I', struct.pack('<f', x))[0]

FBASE, EBASE, KVBASE, HXBASE, PBASE = 0, 0x20000, 0x40000, 0x600000, 0x1C00000
HXB = 21504
PU = 131072
KVB = 5120
WS_USED = 0x3000000
DBGW = 0x3000000
WS_REC = 0x4000000 if OPT['timing'] else WS_USED
OOB = 0x80000000
THI = 0x5bd1e995
LDS_TOTAL = 163840
XS = 81920
GA_KS, GA_CH = 8576, 34304
GB_KS, GB_CH = 5312, 21248
IMG = 4288
KVL = 102400
P2A, P2B = 20480, 21504
SX, SQ, S1, S2, SO, SOUT, SWS, SDB, SCODE = 4, 8, 12, 16, 20, 24, 28, 32, 36
def srd(b): return f"s[{b}:{b+3}]"
sI, sJ, sW, sROT = 58, 59, 60, 61
sRT = 62
sKV = 71
sM0K = 74
sXB, sQB, sHA, sHB, sSG = 80, 81, 82, 83, 84
sUC, sSC = 62, 66
sW2A, sW2B, sWO5, sWO6, sSA, sSS, sSE = [67, 68], [69, 70], [80, 81], [82, 83], [84, 85], [86, 87], [88, 94]
sHXW, sHXR, sCA = 56, 57, 79
sKVW, sFW, sPB = 89, 90, 91
sT, sTH = 92, 93
sM0X = 94
sLO = 96
sA, sB, sC, sD = 75, 76, 77, 78
sDM = 44
sM0A, sM0B, sM0C, sM0D, sM0E = 46, 47, 48, 49, 50
sCK = 52
sRS = 54
sONE = 3
sTS = 98
vL, vT0, vT1, vT2, vT3_ = 1, 2, 3, 4, 5
vA, vT3, vS, vP0, vP1 = 6, 7, 8, 9, 10
vDQ = 12
vDH = 16
vDS = 20
vL16, vVS, vVSC = 21, 22, 23
vRS, vNB = 24, 25
vFL = 26
vH1 = 28
vQ = 60
vR = 76
vE = 96
XN = 112
vXD, vXR, vST = 28, 32, 36
vH2 = 112
vSB = 152
vM0, vM8 = 216, 232
vTT = 248
aT, aG, aF, aSEL = 0, 128, 208, 252
aK, aO, aRD, aSEL2 = 0, 72, 0, 248
def aPF(k): return 104 + 4*k

prog = []
stamp_names = []
def STAMP(name=''):
    if OPT['timing']:
        k = len(stamp_names); stamp_names.append(name)
        prog.append(I("s_waitcnt lgkmcnt(0)"))
        prog.append(RAW(f"  s_memtime s[{sTS}:{sTS+1}]\n  s_waitcnt lgkmcnt(0)\n  v_writelane_b32 v11, s{sTS}, {k}\n  s_nop 4"))
        if OPT.get('rt'): prog.append(RAW(f"  s_memrealtime s[{sTS}:{sTS+1}]\n  s_waitcnt lgkmcnt(0)\n  v_writelane_b32 v11, s{sTS}, {32+k}\n  s_nop 4"))
def TS(grp, name):
    if OPT['timing'] and grp in OPT['ts'].split(','):
        x = I('s_nop', kind='lazystamp'); x.note = name; x.R = set(); x.W = set(); x.cost = 0
        return [x]
    return []
def E(t):
    if isinstance(t, list):
        for x in t: E(x)
        return
    x = t if isinstance(t, I) else I(t)
    if x.kind == 'lazystamp':
        STAMP(x.note); return x
    prog.append(x); return x
def vr(b, n=4): return f"v[{b}:{b+n-1}]"
def ar(b, n=4): return f"a[{b}:{b+n-1}]"
LINES = {}
def VM(text, lines):
    x = I(text); LINES[id(x)] = lines; return x
slow_paths = []

class Chunk: pass
chunks = []
def add_chunk(kind, c, size):
    ch = Chunk(); ch.kind = kind; ch.c = c; ch.size = size; ch.n = len(chunks); ch.dmas = []; chunks.append(ch); return ch
for c in range(9): add_chunk('ga', c, GA_CH).base = (c % 4) * GA_CH
for c, b in enumerate([34304, 55552, 76800, 98048, 119296, 0, 21248, 42496, 63744]): add_chunk('gb', c, GB_CH).base = b
P2SEQ = [('a', 0, 0), ('b', 0, 0), ('a', 0, 1), ('c', 0, 1), ('a', 1, 0), ('b', 1, 0), ('a', 1, 1), ('c', 1, 1), ('e', 0, 1),
         ('a', 2, 0), ('b', 2, 0), ('a', 2, 1), ('b', 2, 1), ('a', 3, 0), ('b', 3, 0), ('a', 3, 1), ('b', 3, 1), ('s', 4, 0), ('s', 4, 1)]
P2C = {}
pos = 0
for k, (kd_, u, src) in enumerate(P2SEQ):
    sz = dict(a=P2A, b=P2B, c=16384, e=10240, s=21504)[kd_]
    ch = add_chunk('p2' + kd_, u, sz); ch.src = src; P2C[(kd_, u, src)] = ch
    if k == 5: pos = KVL
    if pos + sz > LDS_TOTAL: pos = 0
    if k == 9: pos = 10240
    if k == 10: pos = 78848
    ch.base = pos; pos += sz
KVC = add_chunk('kv', 0, 12*KVB); KVC.base = KVL; KVC.segstart = {}; chunks.pop()

def dma_items(ch):
    c, b = ch.c, ch.base
    it = []
    m_ = OPT['ntm']
    ntf = ' nt' if ((m_ & 2 and ch.n < 2) or (m_ & 4 and ch.n in (9, 10)) or (m_ & 8 and 18 <= ch.n < 22) or (m_ & 16 and ch.kind != 'kv')) else ''
    def grp(m0w, m0c, soff_ins, srdb, voffs, lines, fl=ntf):
        it.append([I(f"s_add_u32 m0, s{m0w}, {m0c}") if m0w else I(f"s_mov_b32 m0, {m0c}")] + [I(s) for s in soff_ins])
        for (v, imm) in voffs:
            d = VM(f"buffer_load_dwordx4 v{v}, {srd(srdb)}, s{sDM} offen offset:{imm}{fl} lds", lines)
            ch.dmas.append(d); it.append([d])
    four = lambda v, st: [(v + n, n * st) for n in range(4)]
    if ch.kind == 'ga':
        grp(sM0A, b, [f"s_mul_i32 s{sDM}, s{sRT+c}, 1728", f"s_add_u32 s{sDM}, s{sDM}, s{sQB}"], SQ, four(vDQ, 1088), 20)
        grp(sM0A, b + IMG, [f"s_mul_i32 s{sDM}, s{sRT+c}, 4608", f"s_add_u32 s{sDM}, s{sDM}, s{sHA}"], S1, four(vDH, 1088), 8)
    elif ch.kind == 'gb':
        grp(sM0B, b, [f"s_mul_i32 s{sDM+1}, s{sRT+c}, 4608", f"s_add_u32 s{sDM}, s{sDM+1}, s{sHB}"], S1, four(vDH, 1088), 8)
        grp(sM0B, b + IMG, [f"s_add_u32 s{sDM}, s{sDM+1}, s{sSG}"], S1, [(vDS, 0)], 16)
    elif ch.kind == 'p2a':
        grp(sM0C, b, [f"s_add_u32 s{sDM}, s{sW2A[ch.src]}, s{sUC+c}"], S2, four(vDQ, 1024), 8)
        grp(sM0C, b + 4096, [f"s_add_u32 s{sDM}, s{sDM}, {32*1152}"], S2, [(vDQ, 0)], 8)
    elif ch.kind == 'p2b':
        grp(None, b + 20480, [f"s_add_u32 s{sDM}, s{sWO6[ch.src]}, s{sUC+c}"], SO, [(vDQ, 0)], 8)
        grp(sM0D, b, [f"s_add_u32 s{sDM}, s{sW2B[ch.src]}, s{sUC+c}"], S2, four(vDQ, 1024), 8)
        grp(sM0E, b + 16384, [f"s_add_u32 s{sDM}, s{sWO5[ch.src]}, s{sUC+c}"], SO, [(vDQ, 0)], 8)
    elif ch.kind == 'p2c':
        grp(sM0D, b, [f"s_add_u32 s{sDM}, s{sW2B[ch.src]}, s{sUC+c}"], S2, four(vDQ, 1024), 8)
    elif ch.kind == 'p2e':
        for u in range(2):
            grp(None, b + 5120*u + 4096, [f"s_add_u32 s{sDM}, s{sWO6[1]}, s{sUC+u}"], SO, [(vDQ, 0)], 8)
            grp(sM0E, b + 5120*u, [f"s_add_u32 s{sDM}, s{sWO5[1]}, s{sUC+u}"], SO, [(vDQ, 0)], 8)
    elif ch.kind == 'p2s':
        grp(sM0D, b, [f"s_add_u32 s{sDM}, s{sSA[ch.src]}, s{sSC}"], S2, four(vDQ, 1024), 16)
        it.append([I(f"s_and_b32 s{sDM+1}, s{sM0E}, 1024")])
        grp(sDM+1, b + 16384, [f"s_add_u32 s{sDM}, s{sSS[ch.src]}, s{sSC}"], S2, [(vDQ, 0)], 16)
        it.append([I(f"s_min_u32 s{sDM+1}, s{sM0E}, 2048")])
        grp(sDM+1, b + 18432, [f"s_add_u32 s{sDM}, s{sSE[ch.src]}, s{sSC}"], SO, [(vDQ, 0)], 16)
    else:
        for m in (2, 0, 1):
            ch.segstart[m] = len(it)
            grp(sM0C, b + 4*KVB*m, [f"s_mov_b32 s{sDM}, s{sKV+m}"], SWS, [(vL16, 1024*n) for n in range(4)], OPT['kvl'], ' sc1')
            grp(sM0C, b + 4*KVB*m + 4096, [f"s_add_u32 s{sDM}, s{sDM}, 4096"], SWS, [(vL16, 0)], OPT['kvl'], ' sc1')
    return it
for ch in chunks + [KVC]: ch.items = dma_items(ch)
if OPT['swp']:
    A0, B0, A1, C1 = P2C[('a', 0, 0)], P2C[('b', 0, 0)], P2C[('a', 0, 1)], P2C[('c', 0, 1)]
    def swapped(ch, oth, m0w, rows, first):
        it = ch.items
        k0 = next(k for k, x in enumerate(it) if f"s{rows[ch.src]}," in " ".join(y.text for y in x))
        it[k0] = [I(f"s_bitcmp1_b32 s{sI}, 2"), I(f"s_cselect_b32 s{sDM}, s{rows[oth.src]}, s{rows[ch.src]}"), I(f"s_cselect_b32 s{sDM+1}, {(oth.base - ch.base) & 0xffffffff:#x}, 0"),
                  I(f"s_add_u32 s{sDM+1}, s{sDM+1}, s{m0w}"), I(f"s_add_u32 s{sDM+1}, s{sDM+1}, {ch.base}"), I(f"s_mov_b32 m0, s{sDM+1}"), I(f"s_add_u32 s{sDM}, s{sDM}, s{sUC}")]
        if ch.kind == 'p2a': it[k0 + 5] = [I(f"s_add_u32 m0, s{sDM+1}, 4096"), I(f"s_add_u32 s{sDM}, s{sDM}, {32*1152}")]
    swapped(A0, A1, sM0C, sW2A, 1); swapped(A1, A0, sM0C, sW2A, 0); swapped(B0, C1, sM0D, sW2B, 1); swapped(C1, B0, sM0D, sW2B, 0)
    alld = A0.dmas + B0.dmas + A1.dmas + C1.dmas
    A0.dmas = alld
SUB = {}
if OPT['hf']:
    for c in range(2):
        ch = chunks[c]
        q = Chunk(); q.kind = 'ga'; q.c = c; q.size = ch.size; q.base = ch.base; q.n = 80 + c
        q.items = ch.items[:5]; q.dmas = ch.dmas[:4]
        ch.items = ch.items[5:]; ch.dmas = ch.dmas[4:]
        SUB[c] = q

E(f"s_cmp_ge_u32 s2, 256")
E(f"s_cbranch_scc1 L_end")
E(f"s_load_dwordx16 s[40:55], s[0:1], 0")
E(f"s_load_dwordx2 s[56:57], s[0:1], 64")
if OPT['timing']:
    E("v_mov_b32 v11, 0"); STAMP("start")
    if OPT['dbgt']: E(RAW("  s_memrealtime s[98:99]\n  s_waitcnt lgkmcnt(0)\n  v_writelane_b32 v11, s98, 62\n  s_nop 4"))
E(f"v_lshrrev_b32 v{vT1}, 6, v0")
E(f"v_and_b32 v{vL}, 63, v0")
E(f"v_readfirstlane_b32 s{sW}, v{vT1}")
E(RAW(f"  s_getpc_b64 s[{SCODE}:{SCODE+1}]\nL_pc:\n  s_mov_b32 s{SCODE+2}, L_code_end-L_pc\n  s_mov_b32 s{SCODE+3}, 0x00020000"))
for x_ in [f"v_lshlrev_b32 v{vT0}, 7, v{vL}", f"v_cmp_lt_u32 vcc, 3, v{vL}", f"v_mov_b32 v{vT2}, {OOB:#x}", f"s_lshr_b32 s101, s2, 3",
           f"v_cndmask_b32 v{vE+1}, v{vT0}, v{vT2}, vcc", f"v_cmp_gt_u32 vcc, {OPT['ntop']}, v0", f"s_lshl_b32 s101, s101, 2", f"s_add_u32 s101, s101, s{sW}",
           f"v_cndmask_b32 v{vT0}, v{vT2}, v{vT0}, vcc", f"s_lshl_b32 s101, s101, 9",
           f"buffer_load_dword v{vE+8}, v{vT0}, {srd(SCODE)}, 0 offen", f"buffer_load_dword v{vE}, v{vE+1}, {srd(SCODE)}, s101 offen",
           f"v_accvgpr_write_b32 a246, v{vE+1}"]: E(x_)
E(f"v_lshrrev_b32 v{vT0}, 3, v{vL}")
E(f"v_lshrrev_b32 v{vT1}, 4, v{vL}")
E(f"v_and_b32 v{vT2}, 7, v{vL}")
E(f"v_xor_b32 v{vT2}, v{vT2}, v{vT1}")
E(f"v_lshlrev_b32 v{vT2}, 4, v{vT2}")
E(f"v_mul_u32_u24 v{vT0}, 1152, v{vT0}")
E(f"v_add_u32 v{vXD}, v{vT0}, v{vT2}")
E(f"v_xor_b32 v{vXD+1}, 64, v{vXD}")
E(f"v_add_u32 v{vXD+2}, {2*8192}, v{vXD}")
E(f"v_add_u32 v{vXD+3}, {3*8192}, v{vXD+1}")
E(f"v_add_u32 v{vXD+1}, 8192, v{vXD+1}")
E(f"s_bfe_u32 s100, s2, 0x10002")
E(f"s_lshl_b32 s100, s100, 3")
E(f"s_lshr_b32 s{sROT}, s2, 5")
E(f"s_add_u32 s{sI}, s100, s{sROT}")
E(f"s_bfe_u32 s101, s2, 0x20003"); E(f"s_lshl_b32 s101, s101, 1"); E(f"s_add_u32 s101, s101, s{sROT}")
if OPT['rj']: E(f"s_and_b32 s100, s2, 1"); E(f"s_add_u32 s101, s101, s100")
E(f"s_sub_u32 s100, s101, 9"); E(f"s_cmp_ge_u32 s101, 9"); E(f"s_cselect_b32 s101, s100, s101"); E(f"s_lshl_b32 s{sRT}, s101, 7")
E(f"s_lshl_b32 s100, s{sI}, 2")
E(f"s_add_u32 s100, s100, s{sW}")
E(f"s_mul_i32 s{sXB}, s100, {32*1152}")
E(f"s_mul_i32 s{sM0X}, s{sW}, 20480")
E(f"s_add_u32 s{sM0X}, s{sM0X}, {XS}")
E(f"s_mov_b32 s{SX+2}, {2048*1152}"); E(f"s_mov_b32 s{SX+3}, 0x00020000")
E("s_waitcnt lgkmcnt(0)")
E(f"s_mov_b32 s{SX}, s40"); E(f"s_mov_b32 s{SX+1}, s41")
E(TS('pro', 'karg'))

su = deque()
def U(t): su.append(t)
def drain(n):
    for _ in range(min(n, len(su))): E(su.popleft())
def mk_srd(b, p, n):
    U(f"s_mov_b32 s{b}, s{p}"); U(f"s_mov_b32 s{b+1}, s{p+1}"); U(f"s_mov_b32 s{b+2}, {n}"); U(f"s_mov_b32 s{b+3}, 0x00020000")
mk_srd(SWS, 56, WS_REC)
U(f"v_mov_b32 v{vFL}, {EBASE}")
U(RAW(f"""  s_or_b32 s101, s2, s{sW}
  s_cmp_lg_u32 s101, 0
  s_cbranch_scc1 L_noep1
  buffer_load_dword v{vFL+1}, v{vFL}, {srd(SWS)}, 0 offen sc1
L_noep1:"""))
mk_srd(SQ, 42, 576*3456); mk_srd(SO, 44, 576*1152); mk_srd(S1, 48, 576*9216); mk_srd(S2, 50, 4608*1152)
mk_srd(SOUT, 52, 2048*1152); mk_srd(SDB, 54, 256)
U(f"s_and_b32 s{sA}, s2, 3"); U(f"s_lshl_b32 s{sA}, s{sA}, 2"); U(f"s_bfe_u32 s{sB}, s2, 0x20003"); U(f"s_add_u32 s{sJ}, s{sA}, s{sB}")
U(f"v_and_b32 v{vT0}, 31, v{vL}"); U(f"v_lshrrev_b32 v{vT1}, 5, v{vL}"); U(f"v_bfe_u32 v{vT2}, v{vL}, 1, 3")
U(f"v_xor_b32 v{vT2}, v{vT2}, v{vT1}"); U(f"v_lshlrev_b32 v{vT2}, 4, v{vT2}"); U(f"v_lshl_add_u32 v{vT2}, v{vT0}, 7, v{vT2}")
for s in range(4):
    U(f"v_xor_b32 v{vXR+s}, {32*s}, v{vT2}"); U(f"v_add_u32 v{vXR+s}, s{sM0X}, v{vXR+s}")
for k in range(8): U(f"v_mov_b32 v{vST+k}, 0")
U(f"v_lshlrev_b32 v{vL16}, 4, v{vL}")
U(f"s_mov_b32 s95, 0xffff0000"); U(f"s_mov_b32 s{sONE}, 0x3f803f80"); U(f"s_mov_b32 s{sLO}, -1"); U(f"s_mov_b32 s{sLO+1}, 0")
U(f"v_lshlrev_b32 v{vT2}, 31, v{vT1}"); U(f"v_add_u32 v{vVSC}, 1024, v{vL16}"); U(f"v_add_u32 v{vVSC}, v{vVSC}, v{vT2}")
U(f"v_bfe_u32 v{vT0}, v{vL}, 2, 2"); U(f"v_bfe_u32 v{vT2}, v{vL}, 4, 1"); U(f"v_and_b32 v{vT3_}, 3, v{vL}")
U(f"v_lshl_add_u32 v{vT3_}, v{vT2}, 2, v{vT3_}")
U(f"v_mul_u32_u24 v{vA}, 1088, v{vT0}"); U(f"v_lshl_add_u32 v{vA}, v{vT1}, 9, v{vA}")
U(f"v_mul_u32_u24 v{vT3}, 40, v{vT3_}")
if OPT['z3']:
    U(f"v_and_b32 v{vS}, 1, v{vT3_}"); U(f"v_lshl_or_b32 v{vS}, v{vS}, 3, v{vT3_}"); U(f"v_mov_b32 v{vP0}, 168")
    U([I(f"v_cmp_lt_u32 vcc, 4, v{vS}"), I("s_nop 1"), I(f"v_cndmask_b32 v{vT3}, v{vT3}, v{vP0}, vcc")])
U(f"v_add3_u32 v{vT3}, v{vT3}, v{vA}, 36"); U(f"v_add_u32 v{vT3}, 36, v{vT3}")
U(f"v_lshl_add_u32 v{vA}, v{vT3_}, 3, v{vA}")
U(f"v_lshl_add_u32 v{vS}, v{vT1}, 3, v{vT0}"); U(f"v_lshlrev_b32 v{vS}, 6, v{vS}"); U(f"v_lshl_add_u32 v{vS}, v{vT3_}, 3, v{vS}")
U(f"v_lshl_add_u32 v{vP0}, v{vT1}, 2, v{vT0}"); U(f"v_lshlrev_b32 v{vP0}, 7, v{vP0}"); U(f"v_lshl_add_u32 v{vP0}, v{vT3_}, 3, v{vP0}")
U(f"v_lshrrev_b32 v{vT2}, 1, v{vT0}"); U(f"v_lshl_add_u32 v{vP0}, v{vT2}, 6, v{vP0}"); U(f"v_xor_b32 v{vP1}, 64, v{vP0}")
U(f"v_lshrrev_b32 v{vT0}, 4, v{vL}"); U(f"v_and_b32 v{vT1}, 15, v{vL}")
U(f"v_mul_u32_u24 v{vT2}, {4*9216}, v{vT0}"); U(f"v_lshl_add_u32 v{vDH}, v{vT1}, 4, v{vT2}")
for n in range(1, 4): U(f"v_add_u32 v{vDH+n}, {n*(9216-1088)}, v{vDH}")
U(f"v_min_u32 v{vT1}, 14, v{vT1}"); U(f"v_mul_u32_u24 v{vT2}, 13, v{vT1}"); U(f"v_lshrrev_b32 v{vT2}, 6, v{vT2}")
U(f"v_mul_u32_u24 v{vT3_}, 5, v{vT2}"); U(f"v_sub_u32 v{vT1}, v{vT1}, v{vT3_}"); U(f"v_lshlrev_b32 v{vT1}, 4, v{vT1}")
U(f"v_min_u32 v{vT1}, 56, v{vT1}"); U(f"v_mul_u32_u24 v{vT3_}, 1152, v{vT2}"); U(f"v_add_u32 v{vT1}, v{vT1}, v{vT3_}")
U(f"s_mul_i32 s{sA}, s{sJ}, 72"); U(f"s_xor_b32 s{sB}, s{sJ}, 1"); U(f"s_mul_i32 s{sC}, s{sB}, 72")
U(f"v_mov_b32 v{vT3_}, s{sC}"); U(f"v_mov_b32 v{vDS}, s{sA}"); U(f"v_cmp_eq_u32 vcc, 0, v{vT2}")
U(f"v_mul_u32_u24 v{vT2}, {4*3456}, v{vT0}"); U(f"v_add_u32 v{vT1}, v{vT1}, v{vT2}")
U(f"v_cndmask_b32 v{vT3_}, v{vT3_}, v{vDS}, vcc"); U(f"v_add_u32 v{vDQ}, v{vT1}, v{vT3_}")
if OPT['z3']:
    U(f"v_and_b32 v{vT1}, 15, v{vL}"); U(f"v_add_u32 v{vT1}, 1, v{vT1}"); U(f"v_lshlrev_b32 v{vT1}, 27, v{vT1}"); U(f"v_and_b32 v{vT1}, {OOB:#x}, v{vT1}")
    U(f"v_or_b32 v{vDQ}, v{vDQ}, v{vT1}")
for n in range(1, 4): U(f"v_add_u32 v{vDQ+n}, {n*(3456-1088)}, v{vDQ}")
U(f"v_lshrrev_b32 v{vT0}, 2, v{vL}"); U(f"v_mul_u32_u24 v{vT0}, 9216, v{vT0}"); U(f"v_and_b32 v{vT1}, 3, v{vL}")
U(f"v_lshl_add_u32 v{vDS}, v{vT1}, 4, v{vT0}")
U(f"s_mul_i32 s{sQB}, s{sW}, {16*3456}")
U(f"s_and_b32 s{sA}, s{sJ}, 1"); U(f"s_mul_i32 s{sC}, s{sJ}, 288"); U(f"s_lshl_b32 s{sD}, s{sA}, 5"); U(f"s_add_u32 s{sD}, s{sD}, s{sC}")
U(f"s_xor_b32 s{sA}, s{sA}, 1"); U(f"s_lshl_b32 s{sA}, s{sA}, 8"); U(f"s_add_u32 s{sC}, s{sC}, s{sA}")
U(f"s_mul_i32 s{sA}, s{sW}, {16*9216}"); U(f"s_lshl_b32 s{sHA}, s{sD}, 1"); U(f"s_add_u32 s{sHA}, s{sHA}, s{sA}")
U(f"s_add_u32 s{sHB}, s{sHA}, 256"); U(f"s_lshl_b32 s{sSG}, s{sC}, 1"); U(f"s_add_u32 s{sSG}, s{sSG}, s{sA}")
U(f"s_mul_i32 s{sM0A}, s{sW}, {GA_KS}"); U(f"s_mul_i32 s{sM0B}, s{sW}, {GB_KS}"); U(f"s_mul_i32 s{sM0C}, s{sW}, 5120")
U(f"s_lshl_b32 s{sM0D}, s{sW}, 12"); U(f"s_lshl_b32 s{sM0E}, s{sW}, 10")
NSU = len(su)
for m in range(3):
    U(f"s_add_i32 s{sA}, s{sI}, {m-2}")
    U([I(f"s_cmp_lt_i32 s{sA}, 0"), I(f"s_cselect_b32 s{sA}, s{sI}, s{sA}")])
    U(f"s_lshl_b32 s{sB}, s{sJ}, 4"); U(f"s_add_u32 s{sA}, s{sA}, s{sB}"); U(f"s_lshl_b32 s{sA}, s{sA}, 2"); U(f"s_add_u32 s{sA}, s{sA}, s{sW}")
    U(f"s_mul_i32 s{sA}, s{sA}, {KVB}"); U(f"s_add_u32 s{sKV+m}, s{sA}, {KVBASE}")
U(f"s_xor_b32 s{sA}, s{sJ}, 1"); U(f"s_lshl_b32 s{sA}, s{sA}, 4"); U(f"s_add_u32 s{sA}, s{sA}, s{sI}"); U(f"s_lshl_b32 s{sA}, s{sA}, 2")
U(f"s_add_u32 s{sA}, s{sA}, s{sW}"); U(f"s_mul_i32 s{sA}, s{sA}, {KVB}"); U(f"s_add_u32 s{sKVW}, s{sA}, {KVBASE}")
U(f"s_lshl_b32 s{sA}, s{sI}, 2"); U(f"s_add_u32 s{sA}, s{sA}, s{sW}"); U(f"s_lshl_b32 s{sA}, s{sA}, 4"); U(f"s_add_u32 s{sA}, s{sA}, s{sJ}")
U(f"s_lshl_b32 s{sFW}, s{sA}, 3")
U(f"s_and_b32 s{sB}, s{sJ}, 1"); U(f"s_lshl_b32 s{sC}, s{sI}, 1"); U(f"s_add_u32 s{sC}, s{sC}, s{sB}")
U(f"s_mul_i32 s{sPB}, s{sC}, {5*PU}"); U(f"s_add_u32 s{sPB}, s{sPB}, {PBASE}")
U(f"s_mul_i32 s{sHXW}, s{sA}, {HXB}"); U(f"s_add_u32 s{sHXW}, s{sHXW}, {HXBASE}")
U(f"s_xor_b32 s{sA}, s{sA}, 1"); U(f"s_mul_i32 s{sHXR}, s{sA}, {HXB}"); U(f"s_add_u32 s{sHXR}, s{sHXR}, {HXBASE}")
U(f"v_and_b32 v{vT0}, 15, v{vL}"); U(f"v_and_b32 v{vT1}, 1, v{vL}"); U(f"v_lshlrev_b32 v{vT1}, 4, v{vT1}")
U(f"v_mov_b32 v{vT2}, 0x3f80"); U(f"v_lshlrev_b32 v{vT2}, v{vT1}, v{vT2}"); U(f"v_lshrrev_b32 v{vT0}, 1, v{vT0}")
for d in range(4):
    U([I(f"v_cmp_eq_u32 vcc, {d}, v{vT0}"), I("s_nop 1"), I(f"v_cndmask_b32 v{vT1}, 0, v{vT2}, vcc")])
    U(f"v_accvgpr_write_b32 a{aSEL+d}, v{vT1}")
    U([I(f"v_cmp_eq_u32 vcc, {d+4}, v{vT0}"), I("s_nop 1"), I(f"v_cndmask_b32 v{vT1}, 0, v{vT2}, vcc")])
    U(f"v_accvgpr_write_b32 a{aSEL2+d}, v{vT1}")

vFW, vFK, vFR, vFL2 = 4, 5, 0, 24
vVA, vVBb = 2, 3
aST = 240
vY0, vY1, vY2 = vE + 4, vE + 5, vE + 6
for x_ in [f"v_bfe_u32 v{vY0}, v{vL}, 2, 3", f"v_lshlrev_b32 v{vY0}, 12, v{vY0}", f"v_and_b32 v{vY1}, 3, v{vL}", f"v_lshl_add_u32 v{vY0}, v{vY1}, 5, v{vY0}",
           f"v_lshrrev_b32 v{vY1}, 5, v{vL}", f"v_lshl_add_u32 v{vY0}, v{vY1}, 4, v{vY0}", f"s_lshl_b32 s{sA}, s{sW}, 15", f"s_lshr_b32 s{sC}, s{sJ}, 1",
           f"s_lshl_b32 s{sB}, s{sC}, 9", f"s_add_u32 s{sA}, s{sA}, s{sB}", f"v_add_u32 v{vY0}, s{sA}, v{vY0}", f"v_accvgpr_write_b32 a{aST}, v{vY0}",
           f"v_lshrrev_b32 v{vY0}, 4, v{vL}", f"v_lshlrev_b32 v{vY0}, 9, v{vY0}", f"v_and_b32 v{vY1}, 15, v{vL}", f"v_lshl_add_u32 v{vY0}, v{vY1}, 4, v{vY0}",
           f"s_lshl_b32 s{sA}, s{sC}, 14", f"s_lshl_b32 s{sB}, s{sW}, 12", f"s_add_u32 s{sA}, s{sA}, s{sB}", f"v_add_u32 v{vY0}, s{sA}, v{vY0}",
           f"v_accvgpr_write_b32 a{aST+1}, v{vY0}",
           f"s_lshl_b32 s{sA}, s{sI}, 7", f"s_lshl_b32 s{sD}, s{sC}, 4", f"s_add_u32 s{sA}, s{sA}, s{sD}",
           f"s_lshl_b32 s{sB}, s{sW}, 2", f"s_add_u32 s{sA}, s{sA}, s{sB}", f"s_mul_i32 s{sA}, s{sA}, 1152",
           f"v_bfe_u32 v{vY0}, v{vL}, 1, 2", f"v_mul_u32_u24 v{vY0}, 1152, v{vY0}", f"v_bfe_u32 v{vY1}, v{vL}, 3, 1",
           f"v_lshl_add_u32 v{vY0}, v{vY1}, 5, v{vY0}", f"v_bfe_u32 v{vY1}, v{vL}, 4, 1", f"v_lshl_add_u32 v{vY0}, v{vY1}, 4, v{vY0}", f"v_and_b32 v{vY1}, 1, v{vL}",
           f"v_lshl_add_u32 v{vY0}, v{vY1}, 3, v{vY0}", f"v_lshrrev_b32 v{vY1}, 5, v{vL}", f"v_lshl_add_u32 v{vY0}, v{vY1}, 6, v{vY0}",
           f"v_add_u32 v{vY0}, s{sA}, v{vY0}", f"v_accvgpr_write_b32 a{aST+2}, v{vY0}",
           f"v_lshrrev_b32 v{vY0}, 3, v{vL}", f"v_bfe_u32 v{vY1}, v{vL}, 4, 1", f"v_lshlrev_b32 v{vY1}, 2, v{vY1}",
           f"v_and_b32 v{vY2}, 7, v{vL}", f"v_xor_b32 v{vY2}, v{vY2}, v{vY1}", f"v_mul_u32_u24 v{vY0}, 1152, v{vY0}",
           f"v_lshl_add_u32 v{vY0}, v{vY2}, 4, v{vY0}", f"v_accvgpr_write_b32 a{aST+3}, v{vY0}",
           f"v_lshrrev_b32 v{vY0}, 2, v{vL}", f"v_mul_u32_u24 v{vY0}, 1152, v{vY0}", f"v_and_b32 v{vY1}, 3, v{vL}",
           f"v_lshl_add_u32 v{vY0}, v{vY1}, 4, v{vY0}", f"v_accvgpr_write_b32 a{aST+4}, v{vY0}",
           f"v_lshrrev_b32 v{vY0}, 5, v{vL}", f"v_lshlrev_b32 v{vY0}, 8, v{vY0}", f"v_sub_u32 v{vY0}, v{vS}, v{vY0}", f"v_accvgpr_write_b32 a{aST+5}, v{vY0}"]: U(x_)
for x_ in [f"v_bfe_u32 v{vT0}, v{vL}, 2, 2", f"v_min_u32 v{vT0}, 2, v{vT0}", f"s_sub_u32 s{sA}, s{sI}, 2", f"v_add_u32 v{vT0}, s{sA}, v{vT0}"]: U(x_)
for x_ in [f"v_mov_b32 v{vT1}, s{sI}", f"v_cmp_gt_i32 vcc, 0, v{vT0}", f"s_xor_b32 s{sA}, s{sJ}, 1", f"s_lshl_b32 s{sA}, s{sA}, 3",
          f"v_cndmask_b32 v{vT0}, v{vT0}, v{vT1}, vcc"]: U(x_)
for x_ in [f"v_lshlrev_b32 v{vT0}, 9, v{vT0}", f"v_and_b32 v{vT1}, 3, v{vL}", f"v_lshl_add_u32 v{vT0}, v{vT1}, 7, v{vT0}",
          f"v_add_u32 v{vFK}, s{sA}, v{vT0}"]: U(x_)
for x_ in [f"v_cmp_eq_u32 vcc, 0, v{vL}", f"v_mov_b32 v{vFW}, {OOB:#x}", f"s_nop 0", f"v_cndmask_b32_e64 v{vFW}, v{vFW}, 0, vcc"]: U(x_)
for x_ in [f"s_lshl_b32 s{sA}, s{sI}, 9", f"s_lshr_b32 s{sD}, s{sJ}, 2", f"s_lshl_b32 s{sD}, s{sD}, 7", f"s_add_u32 s{sA}, s{sA}, s{sD}",
           f"s_and_b32 s{sD}, s{sJ}, 1", f"s_lshl_b32 s{sD}, s{sD}, 3", f"s_add_u32 s{sA}, s{sA}, s{sD}",
           f"v_and_b32 v{vT1}, 7, v{vL}", f"v_lshlrev_b32 v{vT1}, 4, v{vT1}", f"v_add_u32 v{vFR}, s{sA}, v{vT1}"]: U(x_)
tabA = bytes([0, 64, 1, 65, 128, 128, 255, 255]); tabB = bytes([192, 129, 193, 254, 128, 128, 255, 255])
lo = lambda b: "0x%08x" % int.from_bytes(b[:4], 'little')
hi = lambda b: "0x%08x" % int.from_bytes(b[4:], 'little')
vX0, vX1 = vR, vR + 1
for x_ in [f"v_bfe_u32 v{vX0}, v{vL}, 4, 1", f"v_and_b32 v{vX1}, 3, v{vL}", f"v_lshl_add_u32 v{vX0}, v{vX0}, 2, v{vX1}",
          f"v_or_b32 v{vX0}, 0x0c0c0c00, v{vX0}"]: U(x_)
for x_ in [f"s_mov_b32 s{sA}, {hi(tabA)}", f"v_mov_b32 v{vX1}, {lo(tabA)}", f"v_perm_b32 v{vVA}, s{sA}, v{vX1}, v{vX0}"]: U(x_)
for x_ in [f"v_mov_b32 v{vX1}, {lo(tabB)}", f"v_perm_b32 v{vVBb}, s{sA}, v{vX1}, v{vX0}", f"v_bfe_u32 v{vX0}, v{vL}, 2, 2", f"v_lshrrev_b32 v{vX1}, 5, v{vL}"]: U(x_)
for x_ in [f"v_lshl_add_u32 v{vX0}, v{vX1}, 2, v{vX0}", f"v_lshlrev_b32 v{vX0}, 4, v{vX0}", f"s_add_u32 s{sM0K}, s{sM0C}, {KVL}",
          f"v_add_u32 v{vX0}, s{sM0K}, v{vX0}"]: U(x_)
for x_ in [f"v_add_u32 v{vX0}, 2560, v{vX0}", f"v_add_u32 v{vX1}, 2, v{vVA}", f"v_cmp_lt_u32 vcc, 0xfd, v{vVA}", f"v_add_u32 v{vR+2}, 2, v{vVBb}"]: U(x_)
for x_ in [f"v_cndmask_b32 v{vVA}, v{vVA}, v{vX1}, vcc", f"v_cmp_lt_u32 vcc, 0xfd, v{vVBb}", f"v_lshl_add_u32 v{vVA}, v{vVA}, 3, v{vX0}",
          f"v_mov_b32 v{vR+18}, 0", f"v_cndmask_b32 v{vVBb}, v{vVBb}, v{vR+2}, vcc"]: U(x_)
for x_ in [f"v_lshl_add_u32 v{vVBb}, v{vVBb}, 3, v{vX0}", f"v_mov_b32 v{vR+19}, 0"]: U(x_)


late = []
if OPT['lates']:
    while len(su) > NSU: late.insert(0, su.pop())
    U(f"v_cmp_eq_u32 vcc, 0, v{vL}"); U(f"v_mov_b32 v{vFW}, {OOB:#x}"); U("s_nop 0"); U(f"v_cndmask_b32_e64 v{vFW}, v{vFW}, 0, vcc")
def rt_next(c): return [I(f"s_add_u32 s{sRT+c}, s{sRT+c-1}, 128"), I(f"s_cmp_eq_u32 s{sRT+c}, 1152"), I(f"s_cselect_b32 s{sRT+c}, 0, s{sRT+c}")]
xh = {}
def x_items(cb):
    it = [(rt_next(cb) if cb else []) + [I(f"s_add_u32 m0, s{sM0X}, {(cb % 5)*4096}"), I(f"s_add_u32 s100, s{sXB}, s{sRT+cb}")]]
    xh[cb] = []
    for g in range(4):
        d = I(f"buffer_load_dwordx4 v{vXD+g}, {srd(SX)}, s100 offen offset:{g*1024}{' nt' if OPT['ntm'] & 1 else ''} lds"); xh[cb].append(d); it.append([d])
    return it
per = (len(su) + 17) // 18
nx = 0
X1 = OPT['x1']
per = (len(su) + 4*X1 - 3) // (4*X1 - 2)
for cb in range(X1):
    if OPT['h0'] == cb and cb:
        last = max(k for k, t in enumerate(su) if isinstance(t, str) and (f"s{sM0A}," in t or f"s{sHA}," in t))
        drain(last + 1)
        E(chunks[0].items); chunks[0].items = []
    for it in x_items(cb):
        E(it)
        if it[0].kind == 'dma':
            nx += 1
            if nx >= 2: drain(per)
drain(999)
E(TS('pro', 'xiss'))
def stats(cb):
    o = []
    for d in range(16):
        x = XN + 16*cb + d
        e_ = (d & 1) + (4 if (OPT['na'] == 4 and d & 2) else 0)
        o += [I(f"v_dot2c_f32_bf16 v{vST + e_}, s94x, v{x}".replace("s94x", f"s{sONE}")), I(f"v_dot2c_f32_bf16 v{vST + 2 + e_}, v{x}, v{x}")]
    return o
pend = deque()
def stats_mix(cb, every):
    o = stats(cb)
    for k in range(0, 32, every):
        E(o[k:k+every])
        if pend:
            E(pend.popleft())
            if pend and prog[-1].kind != 'dma': E(pend.popleft())
for cb in range(9):
    E(TS('pro', f'w{cb}<')); E(WAITVM(*xh[cb])); E(TS('pro', f'w{cb}>'))
    rds = [E(f"ds_read_b128 {vr(XN + 16*cb + 4*s)}, v{vXR+s} offset:{(cb % 5)*4096}") for s in range(4)]
    if X1 < 5 and cb + X1 <= 8: pend.extend(x_items(cb + X1))
    if cb >= 1: stats_mix(cb - 1, 8)
    while pend and cb <= (4 if X1 == 5 else 8 - X1): E(pend.popleft())
    if X1 == 5 and cb + 5 <= 8:
        E(WAITLG(*rds))
        pend.extend(x_items(cb + 5))
    if cb == 1:
        E(RAW(f"""  s_or_b32 s101, s2, s{sW}
  s_cmp_lg_u32 s101, 0
  s_cbranch_scc1 L_noep2
  v_and_b32 v{vFL+1}, -16, v{vFL+1}
  v_add_u32 v{vFL+1}, 16, v{vFL+1}
  buffer_store_dword v{vFL+1}, v{vFL}, {srd(SWS)}, 0 offen sc1
  v_mov_b32 v{vE+2}, 0
  v_or_b32 v{vE+3}, 1, v{vFL+1}
  buffer_store_dword v{vE+3}, v{vE+2}, {srd(SDB)}, 0 offen sc1
  s_nop 1
L_noep2:"""))
    if cb == OPT['c0at'] and X1 < 5:
        E(chunks[0].items); chunks[0].items = []
    if cb == (4 if X1 == 5 else 8 - X1):
        pend.extend(chunks[0].items)
        if OPT['c1pro']: pend.extend(chunks[1].items); chunks[1].items = []
        for c_ in list(SUB)[:OPT['qpro']]: pend.extend(SUB[c_].items)
    last_rd = rds
E(WAITLG(*last_rd))
STAMP("xdone")

class Gap:
    def __init__(s): s.pre = []; s.post = []; s.frag = None; s.chunk = None; s.budget = OPT['budget']; s.rd = None
gaps = []
basecur = {vA: 0, vT3: 0, vS: 0, vP0: 0, vP1: 0}
def add_mfma(text, frag=None, chunk=None):
    g = Gap(); g.text = text; g.frag = frag; g.chunk = chunk; gaps.append(g); return len(gaps) - 1
def mf(D, A, B, C): return f"v_mfma_f32_32x32x16_bf16 {D}, {A}, {B}, {C}"
KS_FIRST = {}
QACC = [76, 28, 60, 44]
def ga_steps(c, tiles, ch):
    for s in range(4):
        ks = 4*c + s
        KS_FIRST.setdefault(ks, len(gaps))
        for T in tiles:
            off = ch.base + s*GA_KS
            if T < 3: fr = (vA, off + 80*T, 256)
            elif T == 3: fr = (vT3, off, 256)
            else: fr = (vA, off + IMG + 64*(T-4), 256)
            D = vr(QACC[T], 16) if (OPT['qv'] and T < 4) else ar(aT + 16*T, 16)
            add_mfma(lambda A, D=D, ks=ks: mf(D, A, vr(XN + 4*ks), D if ks else "0"), fr, ch)
if OPT['hf']:
    ga_steps(0, range(4, 8), chunks[0]); ga_steps(1, range(4, 8), chunks[1]); ga_steps(0, range(4), SUB[0]); ga_steps(1, range(4), SUB[1])
for c in range(2 if OPT['hf'] else 0, 9): ga_steps(c, range(8), chunks[c])
GA_END = len(gaps)
for c in range(9):
    ch = chunks[9 + c]
    for s in range(4):
        ks = 4*c + s
        for T in range(5):
            off = ch.base + s*GB_KS
            fr = (vA, off + 64*T, 256) if T < 4 else (vS, off + IMG, 256)
            D = ar(aG + 16*T, 16)
            add_mfma(lambda A, D=D, ks=ks: mf(D, A, vr(XN + 4*ks), D if ks else "0"), fr, ch)
GB_END = len(gaps)
TORD = [1, 2, 3, 4, 5, 6, 7, 0, 8]
steps = [(h, t) for h in range(2) for t in TORD]
def Kf(h, t): return ar(aK + 36*h + 4*t)
def Q1(h): return vr(vQ + 4*h)
def Q2(h): return vr(vQ + 8 + 4*h)
RS = 4 if OPT['mb'] else 2
def Cm(t): return vr(vM0, 16) if t == 0 else (vr(vM8, 16) if t == 8 else '0')
P1 = []
for u, (h, t) in enumerate(steps):
    S = vr(vSB + 16*(u % 3), 16)
    C = vr(vM0, 16) if t == 0 else (vr(vM8, 16) if t == 8 else "0")
    P1.append((add_mfma(mf(S, Kf(h, t), Q1(h), C)), add_mfma(mf(S, vr(vR + RS*t), Q2(h), S))))
P1_END = len(gaps)
vCM = vE
basecur[vVA] = 0; basecur[vVBb] = 0
P2s = []
NS = len(steps)
for u in range(NS + 2):
    ent = {}
    if u < NS:
        h, t = steps[u]
        S = vr(vSB + 16*(u % 4), 16)
        ent['qa'] = add_mfma(mf(S, Kf(h, t), Q1(h), Cm(t) if OPT['mb'] else (S if t in (0, 8) else vr(vCM, 16))))
        ent['qb'] = add_mfma(mf(S, vr(vR + RS*t), Q2(h), S))
    if u >= 2:
        h, t = steps[u - 2]
        Pb = vSB + 16*((u - 2) % 4)
        O = ar(aO + 16*h, 16)
        first = (TORD.index(t) == 0)
        for s in range(2):
            fr = (vVA if h == 0 else vVBb, KVB*t + 256*s, 128)
            ent['pv%d' % s] = add_mfma(lambda A, O=O, Pb=Pb, s=s, first=first: mf(O, A, vr(Pb + 4*s), "0" if (first and s == 0) else O), fr, KVC)
    P2s.append(ent)
ATT_END = len(gaps)
vOX = vQ
vPK = 76
vS2 = vT3
def hfrag(ks, src):
    if src: return ar(aPF(ks))
    if ks < 8: return vr(vH1 + 4*ks)
    if ks < 18: return vr(vH2 + 4*(ks - 8))
    return vr(vOX + 4*(ks - 18))
UACC = [152, 184, 216, 152, 184]
UEND = {}
POS = {}
def unit_steps(u, src, k0, k1):
    for ks in range(k0, k1):
        POS[(u, src, ks)] = len(gaps)
        first = (src == 0 and ks == 0)
        if u == 4:
            ch = P2C[('s', 4, src)]; D = vr(UACC[u], 16)
            add_mfma(lambda A, D=D, ks=ks, first=first: mf(D, A, hfrag(ks, src), "0" if first else D), ('s2', ch.base + 1024*ks, 512 if ks < 20 else None), ch)
            continue
        if ks < 10: ch = P2C[('a', u, src)]; off = ch.base + 2048*ks
        elif (('b', u, src) in P2C): ch = P2C[('b', u, src)]; off = ch.base + 2048*(ks - 10)
        elif ks < 18: ch = P2C[('c', u, src)]; off = ch.base + 2048*(ks - 10)
        else: ch = P2C[('e', 0, 1)]; off = ch.base + 5120*u + 2048*(ks - 18)
        for T in range(2):
            D = vr(UACC[u] + 16*T, 16)
            add_mfma(lambda A, D=D, ks=ks, first=first: mf(D, A, hfrag(ks, src), "0" if first else D), (vP0 + T, off, 1024 if ks < 20 else None), ch)
    UEND[u] = len(gaps)
for u in range(2): unit_steps(u, 0, 0, 21)
for u in range(2): unit_steps(u, 1, 0, 18)
for u in range(2): unit_steps(u, 1, 18, 21)
for u in range(2, 5): unit_steps(u, 0, 0, 21); unit_steps(u, 1, 0, 21)
basecur['s2'] = 0
NG = len(gaps)

PD = OPT['PD']
first_use, last_use = {}, {}
for g, G in enumerate(gaps):
    if G.chunk is not None:
        first_use.setdefault(G.chunk, g); last_use[G.chunk] = g
bar_at = {}
for ch in chunks[1:] + list(SUB.values()): bar_at[first_use[ch] - PD] = ch
BKV = GB_END - 6
assert BKV not in bar_at
bar_at[BKV] = KVC
REL = Chunk(); REL.kind = 'rel'; REL.n = 99; REL.dmas = []
bar_at[GB_END + 2] = REL
bars = sorted(bar_at)
def release_gap(key): return min(b for b in bars if b > last_use[key])
for ch in chunks[2:] + [KVC]:
    nb = 0
    for o in (chunks[:ch.n] if ch is not KVC else chunks[:18]) + list(SUB.values()):
        if o.base < ch.base + ch.size and ch.base < o.base + o.size: nb = max(nb, release_gap(o))
    if ch.base + ch.size > KVL and ch.kind.startswith('p2'): nb = max(nb, release_gap(KVC))
    ch.nb = nb

fragno = 0
reads_at = {}
for g, G in enumerate(gaps):
    if G.frag is None:
        G.m = I(G.text); continue
    G.fb = aF + 4*(fragno % 8); fragno += 1
    G.m = I(G.text(ar(G.fb)))
    reads_at.setdefault(g - PD, []).append(g)
def emit_reads(g):
    G = gaps[g]; bk, off, d = G.frag
    bv = vS2 if bk == 's2' else bk
    outl = []
    if off < basecur[bk] or off + (d or 0) - basecur[bk] > 65535 - 8:
        nbase = off & ~0x7ff
        outl.append(I(f"v_add_u32 v{bv}, {(nbase - basecur[bk]) & 0xffffffff:#x}, v{bv}"))
        basecur[bk] = nbase
    G.rd = [I(f"ds_read_b64_tr_b16 {ar(G.fb, 2)}, v{bv} offset:{off - basecur[bk]}")]
    if d is not None: G.rd.append(I(f"ds_read_b64_tr_b16 {ar(G.fb + 2, 2)}, v{bv} offset:{off + d - basecur[bk]}"))
    return outl + G.rd

class Stream:
    def __init__(s, name): s.q = deque(); s.name = name
    def add(s, ins, nb=0, dl=10**9):
        ins = [x if isinstance(x, I) else I(x) for x in (ins if isinstance(ins, list) else [ins])]
        s.q.append((nb, dl, ins)); return ins[-1]
lateq = None
norm, epi, side, dmaq = Stream('norm'), Stream('epi'), Stream('side'), Stream('dma')

def norm_ops(ks):
    o = []
    T = lambda d: vE + 2*d
    for d in range(4): o += [f"v_lshlrev_b32 v{T(d)}, 16, v{XN+4*ks+d}", f"v_and_b32 v{T(d)+1}, s95, v{XN+4*ks+d}"]
    for d in range(4): o += [f"v_fma_f32 v{T(d)}, v{T(d)}, v{vRS}, v{vNB}", f"v_fma_f32 v{T(d)+1}, v{T(d)+1}, v{vRS}, v{vNB}"]
    for d in range(4): o += [f"v_cvt_pk_bf16_f32 v{XN+4*ks+d}, v{T(d)}, v{T(d)+1}"]
    return o
for ks in range(1, 36):
    for x in norm_ops(ks): norm.add(x, nb=max(0, KS_FIRST[ks] - 40), dl=KS_FIRST[ks] - 1)

def chk_ops(need, fl):
    return [f"s_add_u32 s{sA}, s{sT}, {need}", f"v_subrev_u32 v{fl}, s{sA}, v{fl}", f"v_cmp_eq_u32 s[{sCK}:{sCK+1}], s{sTH}, v{fl+1}",
            f"v_cmp_ge_u32 vcc, {15 - need}, v{fl}", f"s_and_b64 vcc, vcc, s[{sCK}:{sCK+1}]", f"s_cmp_eq_u64 vcc, -1"]
def poll_load(vaddr, lines=1): return VM(f"buffer_load_dwordx2 {vr(vFL, 2)}, v{vaddr}, {srd(SWS)}, 0 offen sc1", lines)
def poll_check(name, need, vaddr):
    chk = chk_ops(need, vFL)
    slow_paths.append(f"""L_slow_{name}:
  s_mov_b32 s{sD}, 0
L_spin_{name}:
  buffer_load_dwordx2 v[{vFL}:{vFL+1}], v{vaddr}, {srd(SWS)}, 0 offen sc1
  s_waitcnt vmcnt(0)
  """ + "\n  s_nop 1\n  ".join(chk) + f"""
  s_cbranch_scc1 L_back_{name}
  s_add_u32 s{sD}, s{sD}, 1
  s_cmp_lt_u32 s{sD}, 0x40000
  s_cbranch_scc1 L_spin_{name}
  s_branch L_back_{name}
""")
    g_ = 'gb' if name == 'kv' else 'poll'
    return TS(g_, f'poll{name}<') + [I(x) for x in chk] + [I(f"s_cbranch_scc0 L_slow_{name}"), I(f"L_back_{name}:")] + TS(g_, f'poll{name}>')
side.add([VM(f"buffer_load_dword v{vFL}, v{vFW}, {srd(SDB)}, 0 offen sc1", 1)], nb=100)
slow_paths.append(f"""L_slow_tag:
  s_mov_b32 s{sD}, 0
L_spin_tag:
  s_sleep 2
  buffer_load_dword v{vFL}, v{vFW}, {srd(SDB)}, 0 offen sc1
  s_waitcnt vmcnt(0)
  v_readfirstlane_b32 s{sT}, v{vFL}
  s_nop 1
  s_cmp_lg_u32 s{sT}, 0
  s_cbranch_scc1 L_back_tag
  s_add_u32 s{sD}, s{sD}, 1
  s_cmp_lt_u32 s{sD}, 0x40000
  s_cbranch_scc1 L_spin_tag
  s_branch L_back_tag
""")
side.add([f"v_readfirstlane_b32 s{sT}, v{vFL}", f"s_cmp_lg_u32 s{sT}, 0", "s_cbranch_scc0 L_slow_tag", "L_back_tag:",
          f"s_and_b32 s{sT}, s{sT}, -16", f"s_xor_b32 s{sTH}, s{sT}, {THI:#x}"], nb=160)
vFW, vFK, vFR, vFL2 = 4, 5, 0, 24
p2_setup = [f"v_accvgpr_read_b32 v{vDQ}, a{aST+3}"] + [f"v_add_u32 v{vDQ+n}, {n*8192}, v{vDQ}" for n in range(1, 4)]
s_setup = [f"v_accvgpr_read_b32 v{vDQ}, a{aST+4}"] + [f"v_add_u32 v{vDQ+n}, {n*(16*1152-1024)}, v{vDQ}" for n in range(1, 4)]
def p2_scalars():
    t0, t1, t2, t3 = sDM, sDM + 1, 100, 101
    o = [[f"s_and_b32 s{t0}, s{sJ}, 1", f"s_mul_i32 s{sCA}, s{t0}, 640", f"s_lshl_b32 s{t1}, s{t0}, 6", f"s_add_u32 s{sSC}, s{t1}, 512"]]
    for u in range(4):
        o.append([f"s_add_u32 s{t1}, s{sI}, {u}", f"s_and_b32 s{t1}, s{t1}, 3", f"s_lshl_b32 s{t1}, s{t1}, 7", f"s_add_u32 s{sUC+u}, s{t1}, s{sCA}"])
    for src in range(2):
        o.append([f"s_xor_b32 s{t0}, s{sJ}, {src}", f"s_and_b32 s{t1}, s{t0}, 1", f"s_mul_i32 s{t2}, s{t0}, 288", f"s_lshl_b32 s{t3}, s{t1}, 5"])
        o.append([f"s_add_u32 s{t3}, s{t3}, s{t2}", f"s_xor_b32 s{t1}, s{t1}, 1", f"s_lshl_b32 s{t1}, s{t1}, 8", f"s_add_u32 s{t2}, s{t2}, s{t1}"])
        o.append([f"s_mul_i32 s{t1}, s{sW}, 40", f"s_add_u32 s{t1}, s{t1}, s{t3}", f"s_mul_i32 s{sW2A[src]}, s{t1}, 1152", f"s_lshl_b32 s{t1}, s{sW}, 6"])
        o.append([f"s_add_u32 s{t1}, s{t1}, s{t3}", f"s_mul_i32 s{sSA[src]}, s{t1}, 1152", f"s_lshl_b32 s{t1}, s{sW}, 5", f"s_add_u32 s{t1}, s{t1}, s{t3}"])
        o.append([f"s_add_u32 s{t1}, s{t1}, 160", f"s_cmp_eq_u32 s{sW}, 3", f"s_cselect_b32 s{t1}, s{t2}, s{t1}", f"s_mul_i32 s{sW2B[src]}, s{t1}, 1152"])
        o.append([f"s_and_b32 s{t1}, s{sW}, 1", f"s_lshl_b32 s{t1}, s{t1}, 4", f"s_add_u32 s{t1}, s{t1}, s{t2}", f"s_mul_i32 s{sSS[src]}, s{t1}, 1152"])
        o.append([f"s_mul_i32 s{t0}, s{t0}, 36", f"s_lshl_b32 s{t1}, s{sW}, 3", f"s_lshr_b32 s{t2}, s{sW}, 1", f"s_lshl_b32 s{t2}, s{t2}, 2"])
        o.append([f"s_add_u32 s{t1}, s{t1}, s{t2}", f"s_add_u32 s{t1}, s{t1}, s{t0}", f"s_mul_i32 s{sWO5[src]}, s{t1}, 1152", f"s_add_u32 s{t1}, s{t0}, 16"])
        o.append([f"s_mul_i32 s{sWO6[src]}, s{t1}, 1152", f"s_cmp_eq_u32 s{sW}, 1", f"s_cselect_b32 s{t1}, 20, 16", f"s_cmp_eq_u32 s{sW}, 0",
                  f"s_cselect_b32 s{t1}, 0, s{t1}"])
        o.append([f"s_add_u32 s{t1}, s{t1}, s{t0}", f"s_mul_i32 s{sSE[src]}, s{t1}, 1152"])
    return o

lateq = Stream('late')
import re as _re
def _fix(t):
    t = t.text if isinstance(t, I) else t
    for a_, b_ in ((vY0, vR + 8), (vY1, vR + 9), (vY2, vR + 10)): t = _re.sub(rf"\bv{a_}\b", f"v{b_}", t)
    for a_, b_ in ((sA, 40), (sB, 41), (sC, 42), (sD, 43)): t = _re.sub(rf"\bs{a_}\b", f"s{b_}", t)
    return t
skip = 0
lt = []
for x in late:
    xs = x if isinstance(x, list) else [x]
    lt.append([_fix(y) for y in xs])
out_ = []
k = 0
while k < len(lt):
    it = lt[k]
    if it[0].startswith(f"v_cmp_eq_u32 vcc, 0, v{vL}"): k += 4; continue
    out_.append(it); k += 1
seln = next((n for n, it in enumerate(out_) if f"a{aSEL+3}," in it[0]), -1)
for n in range(seln + 1):
    out_[n] = [_re.sub(r"\bv4\b", f"v{vR+13}", _re.sub(r"\bv3\b", f"v{vR+12}", _re.sub(r"\bv2\b", f"v{vR+11}", t))) for t in out_[n]]
n = 0
while n < len(out_):
    it = out_[n]
    if len(it) == 1 and it[0].startswith("v_cmp"):
        m = n
        while "v_cndmask" not in out_[m][0]: m += 1
        it = sum(out_[n:m + 1], []); n = m
    lateq.add(it, nb=0, dl=GA_END - 1); n += 1
e0 = GA_END + 2
CSC = math.log2(math.e) / math.sqrt(18.0)
def rd_cvt(acc, n, dst, scale=None, relu=False, nb=e0, tb=vE, dl=10**9):
    for k0 in range(0, n, 8):
        m = min(8, n - k0)
        for k in range(m): epi.add(f"v_accvgpr_read_b32 v{tb+k}, a{acc+k0+k}", nb=nb, dl=dl)
        if scale:
            for k in range(m): epi.add(f"v_mul_f32 v{tb+k}, {scale}, v{tb+k}", nb=nb, dl=dl)
        for k in range(0, m, 2): epi.add(f"v_cvt_pk_bf16_f32 v{dst+(k0+k)//2}, v{tb+k}, v{tb+k+1}", nb=nb, dl=dl)
        if relu:
            for k in range(0, m, 2): epi.add(f"v_pk_max_i16 v{dst+(k0+k)//2}, v{dst+(k0+k)//2}, 0", nb=nb, dl=dl)
LO = f"s[{sLO}:{sLO+1}]"
kP, x8, vP_ = vH1, vH1 + 8, vH1 + 16
st = []
URGENT = set()
def KVST(text, lines):
    x = VM(text, lines); epi.add(x, nb=e0); st.append(x); URGENT.add(id(x))
if not OPT['qv']:
    rd_cvt(aT + 16, 16, kP)
    KVST(f"buffer_store_dwordx4 {vr(kP)}, v{vL16}, {srd(SWS)}, s{sKVW} offen sc1", 8)
    rd_cvt(aT + 48 + 4, 8, x8)
    epi.add(f"v_cndmask_b32_e64 v{x8+6}, 0, v{kP+4}, {LO}", nb=e0); epi.add(f"v_cndmask_b32_e64 v{x8+7}, 0, v{x8+1}, {LO}", nb=e0)
    epi.add(f"v_cndmask_b32_e64 v{kP+4}, v{kP+4}, v{x8}, {LO}", nb=e0)
    epi.add(f"v_lshrrev_b32 v{vE+8}, 1, v{vL16}", nb=e0)
    KVST(f"buffer_store_dwordx4 {vr(kP+4)}, v{vL16}, {srd(SWS)}, s{sKVW} offen offset:1024 sc1", 8)
    epi.add(f"v_mov_b32 v{x8+4}, 0x3f803f80", nb=e0); epi.add(f"v_mov_b32 v{x8+5}, 0x3f803f80", nb=e0)
    rd_cvt(aT + 32, 8, vP_)
    KVST(f"buffer_store_dwordx2 {vr(x8+6, 2)}, v{vE+8}, {srd(SWS)}, s{sKVW} offen offset:2048 sc1", 4)
    rd_cvt(aT + 40, 8, vP_ + 4)
    KVST(f"buffer_store_dwordx4 {vr(vP_)}, v{vL16}, {srd(SWS)}, s{sKVW} offen offset:2560 sc1", 8)
    rd_cvt(aT, 8, vQ, scale=f32(CSC))
    KVST(f"buffer_store_dwordx4 {vr(vP_+4)}, v{vL16}, {srd(SWS)}, s{sKVW} offen offset:3584 sc1", 8)
    rd_cvt(aT + 8, 8, vQ + 4, scale=f32(CSC))
    KVST(f"buffer_store_dwordx4 {vr(x8+2)}, v{vVSC}, {srd(SWS)}, s{sKVW} offen offset:3584 sc1", 4)
    rd_cvt(aT + 48, 4, vQ + 14, scale=f32(CSC))
else:
    A_ = lambda t: epi.add(t, nb=e0)
    def cvt(dst, src, n):
        for k in range(n): A_(f"v_cvt_pk_bf16_f32 v{dst+k}, v{src+2*k}, v{src+2*k+1}")
    cvt(kP, 28, 4)
    KVST(f"buffer_store_dwordx4 {vr(kP)}, v{vL16}, {srd(SWS)}, s{sKVW} offen sc1", 8)
    cvt(kP + 4, 36, 4); cvt(x8, 48, 4)
    A_(f"v_cndmask_b32_e64 v{x8+6}, 0, v{kP+4}, {LO}"); A_(f"v_cndmask_b32_e64 v{x8+7}, 0, v{x8+1}, {LO}")
    A_(f"v_cndmask_b32_e64 v{kP+4}, v{kP+4}, v{x8}, {LO}"); A_(f"v_lshrrev_b32 v{vE+8}, 1, v{vL16}")
    KVST(f"buffer_store_dwordx4 {vr(kP+4)}, v{vL16}, {srd(SWS)}, s{sKVW} offen offset:1024 sc1", 8)
    cvt(60, 60, 4)
    KVST(f"buffer_store_dwordx2 {vr(x8+6, 2)}, v{vE+8}, {srd(SWS)}, s{sKVW} offen offset:2048 sc1", 4)
    cvt(64, 68, 4)
    KVST(f"buffer_store_dwordx4 {vr(60)}, v{vL16}, {srd(SWS)}, s{sKVW} offen offset:2560 sc1", 8)
    A_(f"v_mov_b32 v{x8+4}, 0x3f803f80"); A_(f"v_mov_b32 v{x8+5}, 0x3f803f80")
    KVST(f"buffer_store_dwordx4 {vr(64)}, v{vL16}, {srd(SWS)}, s{sKVW} offen offset:3584 sc1", 8)
    for k in range(4): A_(f"v_mul_f32 v{44+k}, {f32(CSC)}, v{44+k}")
    KVST(f"buffer_store_dwordx4 {vr(x8+2)}, v{vVSC}, {srd(SWS)}, s{sKVW} offen offset:3584 sc1", 4)
    for k in range(16): A_(f"v_mul_f32 v{76+k}, {f32(CSC)}, v{76+k}")
    cvt(vQ, 76, 8); cvt(vQ + 14, 44, 2)
epi.add(f"v_mov_b32 v{vQ+13}, 0x3f80", nb=e0)
epi.add(f"v_cndmask_b32_e64 v{vQ+8}, v{vQ+13}, v{vQ+4}, {LO}", nb=e0)
epi.add(f"v_cndmask_b32_e64 v{vQ+4}, v{vQ+4}, v{vQ+14}, {LO}", nb=e0)
epi.add(f"v_cndmask_b32_e64 v{vQ+13}, v{vQ+13}, v{vQ+15}, {LO}", nb=e0)
for k in (9, 10, 11, 12, 14, 15): epi.add(f"v_mov_b32 v{vQ+k}, 0", nb=e0)
hst = {}
hq = Stream('hq')
sHT = 51
def hx_store(k, reg):
    o = [I(f"s_add_u32 s{sHT}, s{sHXW}, {1024*(k & ~3)}")] if (k % 4 == 0 or k == 18) else []
    hst[k] = VM(f"buffer_store_dwordx4 {vr(reg)}, v{vL16}, {srd(SWS)}, s{sHT} offen offset:{1024*(k & 3)} sc1", 8)
    return o + [hst[k]]
for T in range(4):
    g_ = GA_END + 56 + 14*T
    rd_cvt(aT + 64 + 16*T, 16, vH1 + 8*T, relu=True, dl=g_)
    hq.add(hx_store(2*T, vH1 + 8*T), nb=g_, dl=g_ + 6); hq.add(hx_store(2*T + 1, vH1 + 8*T + 4), nb=g_ + 6, dl=g_ + 12)

def publish(count, waits):
    g_ = 'gb' if count == 1 else 'pub'
    return TS(g_, f'pub{count}<') + [WAITVM(*waits)] + TS(g_, f'pub{count}>') + [I(f"s_add_u32 s{sB}, s{sT}, {count}"), I(f"v_mov_b32 v{vFL2}, s{sB}"),
            VM(f"buffer_store_dwordx2 {vr(vFL2, 2)}, v{vFW}, {srd(SWS)}, s{sFW} offen sc1", 1)]
side.add(f"v_mov_b32 v{vFL2+1}, s{sTH}", nb=GA_END + 1)
poi = []
pq = Stream('pq')
side.add(publish(1, st + poi), nb=GA_END + OPT['kvpub'])
side.add(poll_load(vFK, 12), nb=GA_END + OPT['kvpoll'])
kvchk = side.add(poll_check('kv', 1, vFK), nb=GA_END + OPT['kvchk'], dl=GA_END + OPT['kvchk'])
KVC.nb = max(KVC.nb, GA_END + OPT['kvchk'])
vKL, vKXL = vVS, vVSC
side.add([f"v_add_u32 v{vKL}, s{sM0K}, v{vL16}", f"v_lshrrev_b32 v{vKXL}, 1, v{vL16}", f"v_add_u32 v{vKXL}, s{sM0K}, v{vKXL}"], nb=GA_END + OPT['kvchk'], dl=BKV)
if OPT['mb']:
    for t in range(9):
        epi.add(f"v_mov_b32 v{vR+4*t+2}, 0x3f803f80", nb=GA_END + 112, dl=BKV); epi.add(f"v_mov_b32 v{vR+4*t+3}, 0", nb=GA_END + 112, dl=BKV)
rld = []
def kread(h, t): return I(f"ds_read_b128 {Kf(h, t)}, v{vKL} offset:{KVB*t + 1024*h}")
for k, t in enumerate(TORD):
    x = I(f"ds_read_b64 {vr(vR + RS*t, 2)}, v{vKXL} offset:{KVB*t + 2048}"); rld.append(x)
    gaps[BKV + k // 2].post += [x]
for k, (h, t) in enumerate(steps):
    gaps[min(BKV + 2 + k, P1[k][0] - 3) if k >= 4 else BKV + k].post += [kread(h, t)]
blk = [f"  s_cmp_ge_u32 s{sI}, 2", "  s_cbranch_scc1 L_nobias", f"  s_lshl_b32 s{sA}, s{sI}, 2", f"  s_add_u32 s{sA}, s{sA}, s{sW}",
       "  s_mov_b32 exec_lo, 0"]
for t in range(8):
    blk += [f"  s_cmp_ge_u32 s{sA}, {8 - t}", f"  s_cbranch_scc1 L_bias_done", f"  v_mov_b32 v{vR+RS*t}, 0xf149", f"  v_mov_b32 v{vR+RS*t+1}, 0xf149"]
blk += ["L_bias_done:", "  s_mov_b32 exec_lo, -1", "  s_nop 1", "L_nobias:"]
gaps[P1[0][1]].pre += [WAITLG(*rld), RAW("\n".join(blk))]

epi.add([f"v_and_b32 v{vTT}, 31, v{vL}", f"v_lshrrev_b32 v{vTT+1}, 5, v{vL}", f"v_lshlrev_b32 v{vTT+1}, 2, v{vTT+1}",
         f"v_sub_u32 v{vTT}, v{vTT}, v{vTT+1}"], nb=GB_END)
epi.add([f"v_cvt_f32_i32 v{vTT}, v{vTT}", f"v_add_f32 v{vTT}, 0.5, v{vTT}", f"v_mul_f32 v{vTT+1}, {f32(1e30)}, v{vTT}"], nb=GB_END)
for k in range(16):
    cc = 8*(k >> 2) + (k & 3)
    epi.add(f"v_sub_f32 v{vM8+k}, {f32(cc*1e30)}, v{vTT+1}", nb=GB_END, dl=P1[7][0] - 1)
    epi.add(f"v_min_f32 v{vM0+k}, 0, v{vM8+k}", nb=GB_END, dl=P1[7][0] - 1)
    epi.add(f"v_min_f32_e64 v{vM8+k}, 0, -v{vM8+k}", nb=GB_END, dl=P1[7][0] - 1)
for T in range(5):
    g_ = [GB_END + int(x) for x in OPT['h2g'].split(',')][2*T:2*T+2]
    rd_cvt(aG + 16*T, 16, vH2 + 8*T, relu=True, nb=GB_END + 2, tb=vTT, dl=g_[0])
    hq.add(hx_store(8 + 2*T, vH2 + 8*T), nb=g_[0], dl=g_[0] + 2); hq.add(hx_store(9 + 2*T, vH2 + 8*T + 4), nb=g_[1], dl=g_[1] + 2)

for g in range(GA_END, GA_END + 24): gaps[g].budget = OPT['kvbud']
if OPT['hf']:
    for g in range(28): gaps[g].budget = 6
vMX = 16
def max_ops(u, half):
    h, t = steps[u]; S = vSB + 16*(u % 3) + 8*half
    o = []
    for k in range(4):
        acc = vMX + 2*h + (k & 1)
        if TORD.index(t) == 0 and half == 0 and k < 2: o.append(I(f"v_max_f32 v{acc}, v{S+2*k}, v{S+2*k+1}"))
        else: o.append(I(f"v_max3_f32 v{acc}, v{acc}, v{S+2*k}, v{S+2*k+1}"))
    return o
def fin_max(h):
    m = vMX + 2*h
    return [I(f"v_max_f32 v{m}, v{m}, v{m+1}"), I(f"v_mov_b32 v{m+1}, v{m}"), I(f"v_permlane32_swap_b32 v{m}, v{m+1}"),
            I(f"v_max_f32 v{m}, v{m}, v{m+1}"), I(f"v_sub_f32 v{m}, 0, v{m}")] + ([] if not OPT['mb'] else
           [I(f"v_cvt_pk_bf16_f32 v{m+1}, v{m}, v{m}"), I(f"v_lshlrev_b32 v{m+1}, 16, v{m+1}"), I(f"v_sub_f32 v{m}, v{m}, v{m+1}"),
            I(f"v_cvt_pk_bf16_f32 v{m}, v{m+1}, v{m}"), I(f"v_cndmask_b32_e64 v{vQ+10+4*h}, 0, v{m}, {LO}")])
def cm_ops(h): return [I(f"v_mov_b32 v{vCM+k}, v{vMX+2*h}") for k in range(16)]
for u in range(2, NS):
    gaps[P1[u][0]].post += max_ops(u - 2, 0); gaps[P1[u][1]].post += max_ops(u - 2, 1)
gaps[P1[11][0]].post += fin_max(0)
for k in range(4 if not OPT['mb'] else 0): gaps[P1[12 + k][0]].post += cm_ops(0)[4*k:4*k+4]
for u in range(2):
    gaps[P2s[u]['qa']].post += max_ops(NS - 2 + u, 0); gaps[P2s[u]['qb']].post += max_ops(NS - 2 + u, 1)
gaps[P2s[2]['pv1']].post += fin_max(1)
for u in range(1, NS + 1):
    S = vSB + 16*((u - 1) % 4)
    ex = [I(f"v_exp_f32 v{S+k}, v{S+k}") for k in range(16)]
    cv = [I(f"v_cvt_pk_bf16_f32 v{S+k}, v{S+2*k}, v{S+2*k+1}") for k in range(8)]
    e = P2s[u]
    if u == 1:
        gaps[e['qa']].post += ex[:8]; gaps[e['qb']].post += ex[8:] + cv
    elif u < NS:
        gaps[e['qa']].post += ex[:5]; gaps[e['qb']].post += ex[5:10]
        gaps[e['pv0']].post += ex[10:14] + cv[:2]; gaps[e['pv1']].post += ex[14:] + cv[2:]
    else:
        gaps[e['pv0']].post += ex[:10]; gaps[e['pv1']].post += ex[10:] + cv
    if u + 1 < NS and steps[u + 1][1] in (0, 8) and not OPT['mb']:
        h, t = steps[u + 1]; Sn = vSB + 16*((u + 1) % 4); M = vM0 if t == 0 else vM8
        gaps[e['pv1']].post += [I(f"v_add_f32 v{Sn+k}, v{M+k}, v{vMX+2*h}") for k in range(16)]
if not OPT['mb']: gaps[P2s[7]['pv0']].post += cm_ops(1)
for g in range(GB_END, ATT_END): gaps[g].budget = OPT['abud'] if g < P1_END else OPT['a2bud']
onq = Stream('onorm')
def onorm(h, nb, dl, tb):
    O = aO + 16*h; rc = 22
    A = lambda t: onq.add(t, nb=nb, dl=dl)
    A(f"v_accvgpr_read_b32 v{rc}, a{O+12}")
    for k in range(8): A(f"v_accvgpr_read_b32 v{tb+k}, a{O+k}")
    A(f"v_rcp_f32 v{rc}, v{rc}")
    A(f"v_accvgpr_read_b32 v{rc+1}, a{O+8+2*h}")
    for k in range(8): A(f"v_mul_f32 v{tb+k}, v{rc}, v{tb+k}")
    for k in range(4): A(f"v_cvt_pk_bf16_f32 v{vOX+4*h+k}, v{tb+2*k}, v{tb+2*k+1}")
    A(f"v_accvgpr_read_b32 v{tb}, a{O+9+2*h}")
    A(f"v_mul_f32 v{rc+1}, v{rc}, v{rc+1}"); A(f"v_mul_f32 v{tb}, v{rc}, v{tb}")
    A(f"v_cvt_pk_bf16_f32 v{tb}, v{rc+1}, v{tb}")
    A(f"v_cndmask_b32_e64 v{vOX+8+h}, 0, v{tb}, {LO}")
    if h == 0 and OPT['mb']: A(f"v_mov_b32 v{vOX+10}, 0")
P0 = ATT_END
onorm(0, P2s[11]['pv0'], P2s[16]['qa'], vTT)
hq.add(hx_store(18, vOX), nb=P2s[16]['qa'], dl=P0)
onorm(1, P0 + 2, P0 + 18, vTT)
for k in (19, 20): hq.add(hx_store(k, vOX + 4*(k - 18)), nb=P0 + 18, dl=P0 + 30)
ev = []
PLD = {}
def ploads(ks, g0, d):
    for n, k in enumerate(ks):
        o = [I(f"s_add_u32 s{sRS+1}, s{sHXR}, {1024*(k & ~3)}")] if (k % 4 == 0 or k == 18) else []
        x = VM(f"buffer_load_dwordx4 {ar(aPF(k))}, v{vL16}, {srd(SWS)}, s{sRS+1} offen offset:{1024*(k & 3)} sc1", 8)
        PLD[id(x)] = POS[(0, 1, k)] - 20
        ev.append((g0 + d*n, [o + [x]]))
ev.append((GA_END + 140, [[I(f"s_xor_b32 s{sA}, s{sFW}, 8"), I(f"v_mov_b32 v{vFK}, s{sA}")], publish(2, [hst[k] for k in range(8)])]))
g1 = GB_END + OPT['h1c']
ev.append((g1 - 16, [[poll_load(vFK)]])); ev.append((g1, [poll_check('h1', 2, vFK)])); ploads(range(8), g1 + 1, OPT['h1d'])
ev.append((P1_END + OPT['p3'], [publish(3, [hst[k] for k in range(8, 18)])]))
g2 = P0 + OPT['h2c']
ev.append((g2 - 16, [[poll_load(vFK)]])); ev.append((g2, [poll_check('h2', 3, vFK)])); ploads(range(8, 18), g2 + 1, OPT['h2d'])
ev.append((P0 + OPT['p4'], [publish(4, [hst[k] for k in (18, 19, 20)])]))
g3_ = P0 + OPT['oc']
ev.append((g3_ - 24, [[poll_load(vFK)]])); ev.append((g3_, [poll_check('o', 4, vFK)])); ploads((18, 19, 20), g3_ + 1, 3)
vPW, vPR, vOUT, vOUTS = 16, 17, 18, 19
RXT = [96, 104, 248, 200, 208]
ev.append((P0 + 132, [[I(f"v_accvgpr_read_b32 v{vPW}, a{aST}"), I(f"v_accvgpr_read_b32 v{vPR}, a{aST+1}"), I(f"v_accvgpr_read_b32 v{vOUT}, a{aST+2}")],
                      [I(f"v_accvgpr_read_b32 v{vS2}, a{aST+5}"), I(f"v_lshlrev_b32 v{vOUTS}, 26, v{vL}"), I(f"v_and_b32 v{vOUTS}, {OOB:#x}, v{vOUTS}")],
                      [I(f"v_or_b32 v{vOUTS}, v{vOUTS}, v{vOUT}")]]))
def p2_epi(u):
    A = UACC[u]
    o = [[I(f"s_add_u32 s{sRS}, s{sPB}, {u*PU}")]]
    sts = []
    for q4 in range(4 if u < 4 else 2):
        for k in range(4): o.append([I(f"v_cvt_pk_bf16_f32 v{vPK+4*q4+k}, v{A+8*q4+2*k}, v{A+8*q4+2*k+1}")])
        x = VM(f"buffer_store_dwordx4 {vr(vPK+4*q4)}, v{vPW}, {srd(SWS)}, s{sRS} offen offset:{128*q4} sc1", 8)
        o.append([x]); sts.append(x)
    return o, sts
DPR = {2: 152, 3: 216, 4: 232}
def rdst(u, n): return vr(DPR[u] + 4*n) if (OPT['dp'] and u >= OPT['dpu']) else ar(16*u + 4*n)
def red_loads(u):
    o = [[I(f"s_add_u32 s{sRS+1}, s{sPB}, {u*PU}")]]
    for n in range(4 if u < 4 else 2):
        o.append([VM(f"buffer_load_dwordx4 {rdst(u, n)}, v{vPR}, {srd(SWS)}, s{sRS+1} offen offset:{2048*(n&1) + 256*(n>>1)} sc1", 8)])
    return o
def col(u): return f"s{sUC+u}" if u < 4 else f"s{sSC}"
def x_load(u): return [VM(f"buffer_load_dwordx2 {vr(RXT[u], 2)}, v{vOUT if u < 4 else vOUTS}, {srd(SX)}, {col(u)} offen", 4)]
def red_comp(u):
    x = RXT[u]; C = x + 4
    o = [[I(f"v_lshlrev_b32 v{C}, 16, v{x}")], [I(f"v_and_b32 v{C+1}, 0xffff0000, v{x}")],
         [I(f"v_lshlrev_b32 v{C+2}, 16, v{x+1}")], [I(f"v_and_b32 v{C+3}, 0xffff0000, v{x+1}")]]
    mm = [[I(f"v_mfma_f32_16x16x32_bf16 {vr(C)}, {ar(aSEL if n < 2 else aSEL2)}, {rdst(u, n)}, {vr(C)}")] for n in range(4 if u < 4 else 2)]
    fin = [[I(f"v_cvt_pk_bf16_f32 v{x+2}, v{C}, v{C+1}")], [I(f"v_cvt_pk_bf16_f32 v{x+3}, v{C+2}, v{C+3}")],
           [VM(f"buffer_store_dwordx2 {vr(x+2, 2)}, v{vOUT if u < 4 else vOUTS}, {srd(SOUT)}, {col(u)} offen sc1", 4)]]
    return o, mm, fin
pst = {}
red = Stream('red')
for u in range(4):
    o, pst[u] = p2_epi(u)
    for x in o: epi.add(x, nb=UEND[u] + 3, dl=min(UEND[u] + (60 if u == 1 else 36), NG - 1))
ev.append((UEND[1] + OPT['p6'], [publish(6, pst[0] + pst[1])]))
if not (OPT['dp'] and OPT['dpu'] == 2): ev.append((UEND[2] + OPT['p7'], [publish(7, pst[2])]))
for u in range(5): ev.append((UEND[1] + 64 + 4*u, [x_load(u)]))
ev.append((NG - OPT['rbp'], [[poll_load(vFR)]]))
vDP = 216
if OPT['dp']:
    ev.append((P0 + 134, [[I(f"v_mov_b32 v{92+k}, -1") for k in range(4)]]))
    for u in range(OPT['dpu'], 5):
        for n in range(4 if u < 4 else 2):
            x = VM(f"buffer_store_dwordx4 {vr(92)}, v{vPR}, {srd(SWS)}, s{sRS+1} offen offset:{2048*(n&1) + 256*(n>>1)} sc1", 8); poi.append(x)
            ev.append((P0 + 134 + 5*len(poi), [([I(f"s_add_u32 s{sRS+1}, s{sPB}, {u*PU}")] if n == 0 else []) + [x]]))
    ev.append((P0 + 205, [publish(5, poi)]))
    ev.append((P0 + 262, [[I(f"s_lshl_b32 s{sA}, s{sI}, 9"), I(f"v_lshlrev_b32 v20, 3, v{vL}"), I(f"v_add_u32 v20, s{sA}, v20")], [poll_load(20, 4)]]))
    ev.append((P0 + 296, [poll_check('all', 5, 20)]))
for gp, items in sorted(ev, key=lambda x: x[0]):
    for it in items: side.add(it, nb=gp, dl=min([PLD.get(id(x), 10**9) for x in it]))
pf = Stream('pf')
if OPT['stch']:
    TCH = [[f"s_cmp_eq_u32 s{sW}, 1", f"s_cselect_b32 s3, 0, {OOB:#x}", f"v_min_u32 v20, 35, v{vL}", f"v_mul_u32_u24 v20, 1152, v20"],
           [f"v_or_b32 v20, s3, v20", f"s_and_b32 s3, s2, 3", f"s_mul_i32 s3, s3, {1152*1152}", f"s_lshr_b32 s43, s2, 3"],
           [f"s_mul_i32 s43, s43, {36*1152}", f"s_add_u32 s3, s3, s43", VM(f"buffer_load_dword v20, v20, {srd(S2)}, s3 offen offset:512", 9)]]
for g_ in [int(x) for x in OPT['cpf'].split(',') if x]:
    pf.add([f"s_lshr_b32 s3, s2, 3", f"s_lshl_b32 s3, s3, 2", f"s_add_u32 s3, s3, s{sW}", f"s_lshl_b32 s3, s3, 9"], nb=g_)
    pf.add([f"v_accvgpr_read_b32 v{vFL}, a{aST+6}", VM(f"buffer_load_dword v{vFL}, v{vFL}, {srd(SCODE)}, s3 offen", 1)], nb=g_)

if OPT['stch']:
    q_ = list(pf.q); pf.q.clear()
    for it in q_[:2]: pf.q.append(it)
    for it in TCH: pf.add(it, nb=P1_END + 40)
    for it in q_[2:]: pf.q.append(it)
s8 = stats(8)
c0n = len(chunks[0].items)
def c0_left(): return any(any(x is d for d in chunks[0].dmas for x in it) for it in pend)
k8 = 0
while c0_left():
    E(pend.popleft()); E(s8[k8:k8+4]); k8 += 4
E(s8[k8:])
for k in range(4): E(f"v_add_f32 v{vST+k}, v{vST+k}, v{vST+4+k}")
E(f"v_add_f32 v{vST}, v{vST}, v{vST+1}"); E(f"v_add_f32 v{vST+2}, v{vST+2}, v{vST+3}")
E(f"v_mov_b32 v{vST+1}, v{vST}"); E(f"v_mov_b32 v{vST+3}, v{vST+2}")
if pend: E(pend.popleft())
E(f"v_permlane32_swap_b32 v{vST}, v{vST+1}"); E(f"v_permlane32_swap_b32 v{vST+2}, v{vST+3}")
E(f"v_add_f32 v{vST}, v{vST}, v{vST+1}"); E(f"v_add_f32 v{vST+2}, v{vST+2}, v{vST+3}")
E(f"v_mul_f32 v{vST}, {f32(1/576)}, v{vST}")
E(f"v_mul_f32 v{vST+2}, {f32(1/576)}, v{vST+2}")
E(f"v_fma_f32 v{vST+2}, -v{vST}, v{vST}, v{vST+2}")
E(f"v_max_f32 v{vST+2}, 0, v{vST+2}")
E(f"v_add_f32 v{vST+2}, {f32(1e-5)}, v{vST+2}")
E(f"v_rsq_f32 v{vRS}, v{vST+2}")
if pend: E(pend.popleft())
E(f"v_mul_f32_e64 v{vNB}, -v{vST}, v{vRS}")
n0 = norm_ops(0)
E(n0[:8])
E(TS('pro', 'c0<')); E(WAITVM(*chunks[0].dmas)); E(TS('pro', 'c0w')); E("s_barrier"); E(TS('pro', 'b0'))
for pos_ in sorted(k for k in reads_at if k < 0):
    for g in reads_at[pos_]: E(emit_reads(g))
E(n0[8:])
STAMP("ga0")

for it in pend: dmaq.add(it, nb=0, dl=0)
for c_ in list(SUB)[OPT['qpro']:]:
    for it in SUB[c_].items: dmaq.add(it, nb=0, dl=0)
chunks[1].nb = 0
order = chunks[1:18] + [KVC] + chunks[18:]
for ch in order:
    if ch.n == 18 and ch is not KVC:
        for x_ in p2_scalars(): dmaq.add(x_, nb=0)
        dmaq.add(p2_setup, nb=0)
    if ch.kind == 'p2s' and ch.src == 0: dmaq.add(s_setup, nb=0)
    if ch.n >= 18 and ch is not KVC: ch.nb = max(ch.nb, GB_END + OPT['dmaat'])
    for k_, it in enumerate(ch.items): dmaq.add(it, nb=(ch.nb if not (ch is KVC and k_ < ch.segstart[0]) else GA_END + OPT['kvchk']), dl=(BKV if ch is KVC else min(first_use[o_] for o_ in order[order.index(ch):] if o_ is not KVC) - PD))
MT = [int(x) for x in OPT['mt'].split(',') if x]
if MT:
    q_ = list(dmaq.q); dmaq.q.clear()
    for it in q_:
        dmaq.q.append(it)
        for k_, n_ in enumerate(MT):
            if it[2][0] is chunks[n_].dmas[-1]:
                vt = vR + 10
                dmaq.add([f"s_cmp_eq_u32 s{sW}, {k_ % 4}", f"s_cselect_b32 s43, 0, {OOB:#x}", f"v_min_u32 v{vt}, {162 // len(MT) - 1}, v{vL}", f"v_lshlrev_b32 v{vt}, 7, v{vt}"], nb=0, dl=0)
                dmaq.add([f"v_or_b32 v{vt}, s43, v{vt}", f"s_mul_i32 s43, s2, {162*128}", f"s_add_u32 s43, s43, {k_ * (162 // len(MT)) * 128}",
                          VM(f"buffer_load_dword v{vt+1}, v{vt}, {srd(S2)}, s43 offen", 16)], nb=0, dl=0)
marks = {GA_END: 'gb0', GB_END: 'att0', P1_END: 'att2', ATT_END: 'p2_0'}
if 'p2' in OPT['ts'].split(','):
    for k_ in range(1, 9): marks[ATT_END + 42*k_] = f'q{k_}'
fr_list = [g for g in range(NG) if gaps[g].frag is not None]
fr_idx = {g: k for k, g in enumerate(fr_list)}
backlog = 200.0
last_dma = [-99]
issued = {id(x) for x in prog}
lastg = {}
def emit_items(ins, g):
    global backlog
    c = 0
    for x in ins:
        E(x); c += x.cost; issued.add(id(x))
        if id(x) in LINES:
            backlog += LINES[id(x)] * 4 * OPT['lc']; lastg[id(x)] = g
    return c
for g, G in enumerate(gaps):
    if g in marks: STAMP(marks[g])
    if g == GA_END - 4:
        for _ in range(OPT['pad']): E('s_nop 0')
    for s_ in (norm, lateq, pq, epi, onq, hq, side, red, pf):
        lastdl = max([k for k, (nb, dl, _) in enumerate(s_.q) if dl <= g] + [-1])
        for _ in range(lastdl + 1):
            nb, dl, ins = s_.q.popleft()
            assert nb <= g, (s_.name, nb, dl, g, ins)
            emit_items(ins, g)
    if g in bar_at:
        key = bar_at[g]
        grp_ = 'b' + key.kind[:2]; nm_ = 'KV' if key is KVC else str(key.n)
        while not all(id(d) in issued for d in key.dmas):
            print("late DMA", nm_, g, file=sys.stderr)
            nb, dl, ins = dmaq.q.popleft(); assert nb <= g; emit_items(ins, g)
        E(TS(grp_, f'B{nm_}<')); E(WAITVM(*key.dmas)); E(TS(grp_, f'B{nm_}|')); E("s_barrier")
        if grp_ != 'bp2': E(TS(grp_, f'B{nm_}>'))
    E(G.pre)
    if G.frag is not None:
        k = fr_idx[g]
        wq = OPT['wq']
        if k % wq == 0:
            kk = k + wq - 1
            while kk > k and not (kk < len(fr_list) and gaps[fr_list[kk]].rd and fr_list[kk] - g <= wq): kk -= 1
            if kk > k: E(WAITLG(*gaps[fr_list[kk]].rd))
    E(G.m)
    cost = 0
    for gg in reads_at.get(g, []):
        for x in emit_reads(gg):
            E(x)
            if x.kind != 'dsr': cost += 1
    if not reads_at.get(g): cost -= 2
    for x in G.post: E(x); cost += x.cost
    fixed = cost
    vm_done = False
    urgent_dma = dmaq.q and dmaq.q[0][1] - g < OPT['dmarg']
    for s_ in ((dmaq, norm, pf, side, hq, pq, red, onq, epi, lateq) if (urgent_dma or g < GB_END) else (side, hq, pf, red, onq, epi, dmaq)):
        n_ = 0
        while s_.q and s_.q[0][0] <= g:
            ins = s_.q[0][2]
            isvm = any(id(x) in LINES for x in ins)
            if isvm and s_ is dmaq and g >= GA_END - 40 and g - last_dma[0] < (OPT['attp'] if GB_END <= g < ATT_END else OPT['dsp']) and s_.q[0][1] - g > OPT['dmarg']: break
            if isvm and any(x.kind == 'vst' and LINES[id(x)] >= 4 and id(x) not in URGENT for x in ins) and backlog > OPT['stb']: break
            if isvm and (vm_done or backlog > OPT['tcp']) and not any(id(x) in URGENT for x in ins): break
            lim = max(G.budget, fixed + 1) if s_ in (dmaq, side, hq, pf) else G.budget
            if P1_END <= g < ATT_END and s_ is onq: lim = fixed + 2
            if cost >= lim: break
            s_.q.popleft(); cost += emit_items(ins, g); n_ += 1
            if isvm: vm_done = True
            if isvm and s_ is dmaq: last_dma[0] = g
            if s_ is dmaq: break
    backlog = max(0.0, backlog - max(33.0, 8 + 4.4 * (cost + 2.5)))
assert not dmaq.q and not norm.q and not epi.q and not onq.q, (len(dmaq.q), len(norm.q), len(epi.q))
for _, _, ins in side.q: E(ins)
STAMP('tail0')
def comp(p):
    o, mm, fin = red_comp(p); E(o + mm + fin)
assert not hq.q and not pf.q
o, pst[4] = p2_epi(4)
if OPT['t2'] and not OPT['dp']: E(o[:6]); E(publish(8, pst[3])); E(o[6:])
else: E(o)
if OPT['dp'] or OPT['t2']: E(poll_check('rb', 7 if (OPT['dpu'] == 3 or not OPT['dp']) else 6, vFR))
if not OPT['dp'] and not OPT['t2']:
    for op in OPT['tl'].split(','):
        if op[0] == 'L': E(red_loads(int(op[1])))
        elif op[0] == 'C': comp(int(op[1]))
        elif op == 'P': E(publish(9, pst[4])); STAMP('pub9')
        elif op == 'Q': E(poll_load(vFR))
        elif op == 'B': E(poll_check('rb', 7, vFR))
        elif op == 'A': E(poll_check('ra', 6, vFR)); E(poll_load(vFR))
        elif op == 'K': E(poll_check('r9', 9, vFR)); STAMP('got9')
elif not OPT['dp']:
    E(red_loads(0)); E(red_loads(1))
    E(publish(9, pst[4]))
    STAMP('pub9')
    E(poll_load(vFR))
    E(red_loads(2))
    comp(0)
    E(poll_check('r8', 8, vFR))
    E(red_loads(3))
    E(poll_load(vFR))
    comp(1); comp(2)
    E(poll_check('r9', 9, vFR))
    STAMP('got9')
    E(red_loads(4))
    comp(3); comp(4)
else:
    for u in range(OPT['dpu']): E(red_loads(u))
    E(f"s_mov_b32 s{sC}, 0")
    comp(0)
    STAMP('c0')
    E("L_dp:")
    regs_ = []
    for u in range(OPT['dpu'], 5):
        E(red_loads(u)); regs_ += list(range(DPR[u], DPR[u] + (16 if u < 4 else 8)))
    E(f"v_max_u32 v{vFL}, v{regs_[0]}, v{regs_[1]}")
    for k in range(2, len(regs_), 2): E(f"v_max3_u32 v{vFL}, v{vFL}, v{regs_[k]}, v{regs_[k+1]}")
    E(f"s_add_u32 s{sC}, s{sC}, 1")
    E(f"v_cmp_eq_u32 vcc, -1, v{vFL}")
    E(f"s_cmp_gt_u32 s{sC}, 0x10000")
    E("s_cbranch_scc1 L_dp_done")
    E("s_nop 2")
    E("s_cbranch_vccnz L_dp")
    E("L_dp_done:")
    STAMP('got')
    for u in (1, 2, 3, 4): comp(u)
if OPT['timing']:
    E("s_waitcnt vmcnt(0)"); STAMP("end")
    E(f"s_lshl_b32 s{sA}, s2, 10"); E(f"s_lshl_b32 s{sB}, s{sW}, 8"); E(f"s_add_u32 s{sA}, s{sA}, s{sB}"); E(f"s_add_u32 s{sA}, s{sA}, {DBGW}")
    E(RAW("  s_memrealtime s[98:99]\n  s_waitcnt lgkmcnt(0)\n  v_writelane_b32 v11, s98, 63\n  s_nop 4"))
    E(f"v_lshlrev_b32 v{vT0}, 2, v{vL}")
    E(f"buffer_store_dword v11, v{vT0}, {srd(SWS)}, s{sA} offen")
E("L_end:")
E("s_endpgm")

def hoist_vmem(prog):
    out_ = []
    n_ = 0
    for x in prog:
        if x.kind in ('dma', 'vld', 'vst'):
            k = len(out_)
            while k > 0:
                p = out_[k - 1]
                if p.kind == 'mfma32': break
                if p.kind not in ('dsr', 'valu', 'trans', 'salu') or (p.W & (x.R | x.W)) or (p.R & x.W) or len(out_) - k > 24: k = -1; break
                k -= 1
            if k > 0 and k < len(out_):
                out_.insert(k, x); n_ += 1; continue
        out_.append(x)
    print("hoisted", n_, file=sys.stderr)
    return out_
if OPT['hoist']: prog = hoist_vmem(prog)
seen = set()
for x in prog:
    if x.kind in ('pvm', 'plg'):
        for t in x.target: assert id(t) in seen, ("wait on unissued op", t)
    seen.add(id(x))
wr = set(); pos_of = {id(x): n for n, x in enumerate(prog)}
for x in prog:
    if x.kind in ('mfma32', 'mfma16'):
        for r in x.R: assert r in wr, ("MFMA reads unwritten register", r, x.text)
    wr |= x.W
for x in prog:
    if id(x) in PLD: assert pos_of[id(x)] < pos_of[id(gaps[PLD[id(x)] + 20].m)]
p1 = insert_waits(prog)
p2, nn = insert_nops(p1)
hdr = open('parallel_sum__sliding_block__dense_activation_relu__prompt.s.ref').read().split('\n')
hdr = [l for l in hdr if l.startswith(';') and '@launch' not in l]
txt = "\n".join(hdr) + f"\n; @launch grid=(256,1,1) block=(256,1,1) lds={LDS_TOTAL}\n"
txt += """; Generated by a hand-written scheduling script (own work).  One workgroup per CU: (token tile i of 128 rows, split j of 16).
;   1. x tile -> LDS -> registers, LayerNorm statistics, normalised bf16 B fragments
;   2. transposed GEMMs W^T * xn^T (weights HBM/L2 -> LDS by DMA, transposing LDS reads): q,k,v of one head pair, 288 hidden units
;   5. [h | o] * [W2 ; Wo] for half of the output columns over two splits, bf16 partial sums to d_ws
"""
txt += f""".amdgcn_target "amdgcn-amd-amdhsa--gfx950"
.text
.globl {KNAME}
.p2align 8
.type {KNAME},@function
{KNAME}:
"""
txt += render(p2) + "".join(slow_paths) + "L_code_end:\n  s_endpgm\n.fill 64, 4, 0xbf800000\n"
txt += f""".section .rodata,"a"
.p2align 6
.amdhsa_kernel {KNAME}
  .amdhsa_next_free_vgpr 512
  .amdhsa_next_free_sgpr 102
  .amdhsa_accum_offset 256
  .amdhsa_group_segment_fixed_size 0
  .amdhsa_kernarg_size 72
  .amdhsa_user_sgpr_count 2
  .amdhsa_user_sgpr_kernarg_segment_ptr 1
  .amdhsa_system_sgpr_workgroup_id_x 1
.end_amdhsa_kernel
"""
if OPT['timing']: txt += "; stamps: " + " ".join(stamp_names) + "\n"
assert len(stamp_names) <= 62
open(sys.argv[1], 'w').write(txt)
print("instrs", len(p2), "nop states", nn, dict(Counter(x.kind for x in p2)), file=sys.stderr)
print("chunks (n, base, nb, last dma gap, barrier gap)", [(c.n, c.base, getattr(c, 'nb', None), lastg.get(id(c.dmas[-1])), (first_use[c] - PD) if c is not KVC else BKV) for c in chunks + [KVC]], file=sys.stderr)
print("h stores", {k: lastg.get(id(v)) for k, v in hst.items()}, "ploads", sorted(lastg[i_] for i_ in PLD), file=sys.stderr)
print("kv stores at", [lastg[id(x)] - GA_END for x in st], file=sys.stderr)
```
